```python
import torch

def _softmax(x, axis=-1):
    return torch.softmax(x, dim=axis)

def _gelu(x):
    return torch.nn.functional.gelu(x, approximate='tanh')

def _silu(x):
    return torch.nn.functional.silu(x)

def _sigmoid(x):
    return torch.sigmoid(x)

def _layernorm(x, axis=-1, eps=1e-05):
    m = x.mean(dim=axis, keepdim=True)
    v = x.var(dim=axis, keepdim=True, unbiased=False)
    return (x - m) / torch.sqrt(v + eps)

def _scatter_add(tgt, idx, src, axis=0):
    return tgt.clone().index_add_(axis, idx, src)

def _segment_sum(src, seg, n):
    out = torch.zeros((n,) + src.shape[1:], dtype=src.dtype)
    return out.index_add_(0, seg, src)

def _pad(x, pw):
    flat = tuple((v for pair in reversed(pw) for v in pair))
    return torch.nn.functional.pad(x, flat)
kernel_name = 'gather_scatter__molecular_angular_painn__graph'

def setup_inputs():

    _w = lambda a: (lambda t: t.to(torch.bfloat16) if t.is_floating_point() else t)(torch.as_tensor(a))
    N, deg, D = (25000, 16, 128)
    n_rbf = max(16, 4)
    E = N * deg
    cutoff = 5.0
    freqs = (torch.arange(1, n_rbf + 1) * torch.pi / cutoff).to(float)
    return {'sv': _w((lambda *s: torch.randn(*s, dtype=torch.bfloat16) * 0.4)(N, 4, D) * 0.3), 'pos': _w((lambda *s: torch.randn(*s, dtype=torch.bfloat16) * 3.2)(N, 3) * 1.2), 'src': _w((lambda lo, hi, *s: torch.randint(lo, hi, s))(0, N, E).to(torch.int64)), 'dst': _w((lambda lo, hi, *s: torch.randint(lo, hi, s))(0, N, E).to(torch.int64)), 'freqs': _w(freqs), 'w_phi1': _w((lambda *s: torch.randn(*s, dtype=torch.bfloat16) * 3.2)(D, D) / D ** 0.5), 'w_phi2': _w((lambda *s: torch.randn(*s, dtype=torch.bfloat16) * 3.2)(D, 3 * D) / D ** 0.5), 'w_rbf': _w((lambda *s: torch.randn(*s, dtype=torch.bfloat16) * 3.2)(n_rbf, 3 * D) / n_rbf ** 0.5)}

def reference(sv, pos, src, dst, freqs, w_phi1, w_phi2, w_rbf):
    N, _, D = sv.shape
    E = src.shape[0]
    PI, cutoff = (3.141592653589793, 5.0)
    s, v = (sv[:, 0, :].clone(), sv[:, 1:, :].clone())
    r_vec = pos[src] - pos[dst]
    d = torch.sqrt((r_vec * r_vec).sum(-1) + 1e-08)
    r_hat = r_vec / d[:, None]
    rbf = torch.sin(d[:, None] * freqs[None, :]) / d[:, None]
    fcut = 0.5 * (torch.cos(PI * d / cutoff) + 1.0)
    fcut = torch.where(d < cutoff, fcut, 0.0 * d)
    Wf = rbf @ w_rbf * fcut[:, None]
    phi = (_silu(s @ w_phi1) @ w_phi2)[src]
    m = phi * Wf
    m_s, m_vv, m_vr = (m[:, :D].clone(), m[:, D:2 * D].clone(), m[:, 2 * D:].clone())
    ds = _segment_sum(m_s, dst, N)
    dv_e = m_vv[:, None, :] * v[src] + m_vr[:, None, :] * r_hat[:, :, None]
    dv = _segment_sum(dv_e.reshape(E, 3 * D), dst, N).reshape(N, 3, D)
    return sv + torch.concatenate([ds[:, None, :], dv], axis=1)
```

```python
import re

REG_RE = re.compile(r'^(v|s|a)(\d+)$|^(v|s|a)\[(\d+):(\d+)\]$')


def regs_of(tok):
    tok = tok.strip()
    neg = tok.startswith('-')
    if neg:
        tok = tok[1:]
    if tok.startswith('abs(') and tok.endswith(')'):
        tok = tok[4:-1]
    if tok.startswith('|') and tok.endswith('|'):
        tok = tok[1:-1]
    if tok == 'vcc':
        return {('s', 106), ('s', 107)}
    if tok == 'vcc_lo':
        return {('s', 106)}
    if tok == 'vcc_hi':
        return {('s', 107)}
    if tok == 'exec':
        return {('s', 126), ('s', 127)}
    if tok == 'exec_lo':
        return {('s', 126)}
    if tok == 'exec_hi':
        return {('s', 127)}
    if tok == 'm0':
        return {('s', 124)}
    m = REG_RE.match(tok)
    if not m:
        return set()
    if m.group(1):
        return {(m.group(1), int(m.group(2)))}
    return {(m.group(3), i) for i in range(int(m.group(4)), int(m.group(5)) + 1)}


TRANS = ('v_exp_f32', 'v_log_f32', 'v_rcp_f32', 'v_rsq_f32', 'v_sqrt_f32', 'v_sin_f32', 'v_cos_f32',
         'v_rcp_iflag_f32')
EXEC = {('s', 126), ('s', 127)}
VCC = {('s', 106), ('s', 107)}
M0 = {('s', 124)}


class Ins:
    def __init__(self, text):
        self.text = text
        t = text.split(';')[0].strip()
        self.label = None
        self.op = None
        self.w = set()
        self.r = set()
        self.kind = 'none'
        self.srcC = set()
        self.srcAB = set()
        self.passes = 0
        self.target = None
        self.nop = 0
        self.store_data = set()
        self.lanesel = set()
        self.valu_sgpr_r = set()
        if not t or t.startswith('.'):
            if t.endswith(':'):
                self.label = t[:-1]
            self.kind = 'dir'
            return
        if t.endswith(':'):
            self.label = t[:-1]
            self.kind = 'dir'
            return
        parts = t.split(None, 1)
        op = parts[0]
        self.op = op
        rest = parts[1] if len(parts) > 1 else ''
        ops = []
        cur = ''
        depth = 0
        for ch in rest:
            if ch in '[(':
                depth += 1
            if ch in '])':
                depth -= 1
            if ch == ',' and depth == 0:
                ops.append(cur.strip())
                cur = ''
            else:
                cur += ch
        if cur.strip():
            ops.append(cur.strip())
        mods = ''
        if ops:
            lp = ops[-1].split(None, 1)
            if len(lp) > 1:
                ops[-1] = lp[0]
                mods = lp[1]
        self.ops = ops
        self.mods = mods
        R = [regs_of(o) for o in ops]
        base = op.replace('_e32', '').replace('_e64', '')
        if op == 's_nop':
            self.kind = 'nop'
            self.nop = int(ops[0], 0) + 1
        elif op in ('s_waitcnt', 's_barrier', 's_endpgm', 's_setprio', 's_sleep', 's_set_gpr_idx_off'):
            self.kind = 'misc'
        elif op == 's_set_gpr_idx_on':
            self.kind = 'salu'
            self.r = R[0]
            self.w = set(M0)
        elif op.startswith('s_cbranch') or op == 's_branch':
            self.kind = 'branch'
            self.target = ops[0]
        elif op.startswith('s_cmp') or op.startswith('s_bitcmp'):
            self.kind = 'salu'
            for x in R:
                self.r |= x
        elif op.startswith('s_load') or op.startswith('s_buffer_load') or op.startswith('s_memtime') or op.startswith('s_memrealtime'):
            self.kind = 'smem'
            self.w = R[0]
            for x in R[1:]:
                self.r |= x
        elif op.startswith('s_'):
            self.kind = 'salu'
            if op in ('s_setpc_b64',):
                self.r = R[0]
                self.kind = 'branch'
            else:
                self.w = set(R[0])
                for x in R[1:]:
                    self.r |= x
                if 'saveexec' in op:
                    self.w |= EXEC
                    self.r |= EXEC
                if op in ('s_addk_i32', 's_mulk_i32'):
                    self.r |= R[0]
        elif op.startswith('v_mfma'):
            self.kind = 'mfma'
            self.w = R[0]
            self.srcAB = R[1] | R[2]
            self.srcC = R[3]
            self.r = self.srcAB | self.srcC
            self.passes = 8 if '32x32' in op else 4
        elif op.startswith('v_'):
            self.kind = 'valu'
            if base.startswith('v_cmpx'):
                self.w = R[0] | EXEC
                for x in R[1:]:
                    self.r |= x
            elif base in ('v_add_co_u32', 'v_sub_co_u32', 'v_addc_co_u32', 'v_subb_co_u32', 'v_mad_u64_u32',
                          'v_subrev_co_u32'):
                self.w = R[0] | R[1]
                for x in R[2:]:
                    self.r |= x
            else:
                self.w = set(R[0])
                for x in R[1:]:
                    self.r |= x
                if base in ('v_fmac_f32', 'v_writelane_b32', 'v_pk_fmac_f16', 'v_dot2c_f32_bf16'):
                    self.r |= R[0]
                if base.startswith('v_permlane') and 'swap' in base:
                    self.w |= R[1]
                    self.r |= R[0]
                if base in ('v_readlane_b32', 'v_writelane_b32'):
                    self.lanesel = R[2]
            self.valu_sgpr_r = {x for x in self.r if x[0] == 's'} - self.lanesel
            self.trans = base in TRANS
            self.base = base
        elif op.startswith('ds_'):
            self.kind = 'ds'
            if op.startswith('ds_write') or op in ('ds_add_u32', 'ds_add_f32', 'ds_or_b32', 'ds_max_u32'):
                for x in R:
                    self.r |= x
            else:
                self.w = R[0]
                for x in R[1:]:
                    self.r |= x
        elif op.startswith('buffer_') or op.startswith('global_'):
            self.kind = 'vmem'
            is_lds = re.search(r'\blds\b', mods) is not None or '_lds_' in op
            self.is_lds = is_lds
            if 'store' in op or ('atomic' in op):
                for x in R:
                    self.r |= x
                if op.startswith('buffer_') and ('x3' in op or 'x4' in op):
                    self.store_data = R[0]
                if op.startswith('global_') and ('x3' in op or 'x4' in op):
                    self.store_data = R[1]
                if 'atomic' in op and 'sc0' in mods:
                    self.w = R[0]
            elif is_lds:
                for x in R:
                    self.r |= x
                self.r |= M0
            else:
                self.w = R[0]
                for x in R[1:]:
                    self.r |= x
        else:
            raise ValueError('unknown op: ' + text)

    def states(self):
        if self.kind == 'dir':
            return 0
        if self.kind == 'nop':
            return self.nop
        return 1


def need(p, c):
    n = 0
    vr = lambda s: {x for x in s if x[0] in 'va'}
    sr = lambda s: {x for x in s if x[0] == 's'}
    if p.kind == 'valu':
        pw_v = vr(p.w)
        pw_s = sr(p.w)
        if c.kind == 'mfma' and pw_v & c.r:
            n = max(n, 2)
        if c.kind == 'mfma' and pw_s & EXEC:
            n = max(n, 4)
        if c.kind == 'vmem' and pw_s & sr(c.r):
            n = max(n, 5)
        if c.kind == 'valu':
            if pw_s & c.lanesel:
                n = max(n, 4)
            if pw_s & c.valu_sgpr_r:
                n = max(n, 2)
            if c.base in ('v_readlane_b32', 'v_readfirstlane_b32') and pw_v & c.r:
                n = max(n, 1)
            if c.base in ('v_readlane_b32', 'v_readfirstlane_b32', 'v_writelane_b32') and pw_s & EXEC:
                n = max(n, 4)
            if p.trans and not c.trans and pw_v & c.r:
                n = max(n, 1)
            if c.base.startswith('v_permlane') and pw_v & c.r:
                n = max(n, 2)
            if 'dpp' in c.text or 'row_' in c.mods or 'quad_perm' in c.mods:
                if pw_v & c.r:
                    n = max(n, 2)
                if pw_s & EXEC:
                    n = max(n, 5)
            if ('op_sel' in p.mods or 'sdwa' in p.op) and pw_v & (c.r | c.w):
                n = max(n, 1)
        if p.base.startswith('v_dot') and c.kind in ('valu', 'vmem', 'ds', 'mfma') and pw_v & (c.r | c.w):
            n = max(n, 3)
    if p.kind == 'salu':
        if (p.w & M0) and c.kind == 'vmem' and getattr(c, 'is_lds', False):
            n = max(n, 1)
    if p.kind == 'vmem' and p.store_data:
        if c.kind == 'valu' and p.store_data & c.w:
            n = max(n, 2)
        elif c.kind in ('vmem', 'ds', 'mfma') and p.store_data & c.w:
            n = max(n, 1)
    if p.kind == 'mfma':
        P = p.passes
        big = {4: 8, 8: 12}[P]
        part = {4: 6, 8: 10}[P]
        war = {4: 3, 8: 7}[P]
        if c.kind == 'mfma':
            if p.w & c.srcAB:
                n = max(n, big)
            if p.w & c.srcC:
                if p.w == c.srcC and p.passes == c.passes:
                    pass
                else:
                    n = max(n, part)
            elif p.w & c.w:
                n = max(n, part)
        elif c.kind in ('valu', 'vmem', 'ds'):
            if p.w & (c.r | c.w):
                n = max(n, big)
            if c.kind == 'valu' and p.srcC & c.w:
                n = max(n, war)
    return n


MAXD = 13


def fix_linear(ins):
    out = []
    for c in ins:
        if c.kind not in ('dir', 'nop'):
            dist = 0
            req = 0
            for p in reversed(out):
                if dist >= MAXD:
                    break
                if p.kind not in ('dir', 'nop'):
                    k = need(p, c)
                    if k > dist:
                        req = max(req, k - dist)
                if p.kind == 'branch' and p.op in ('s_branch', 's_setpc_b64'):
                    break
                if p.op == 's_endpgm':
                    break
                dist += p.states()
            while req > 0:
                k = min(req, 16)
                out.append(Ins('    s_nop %d' % (k - 1)))
                req -= k
        out.append(c)
    return out


def check_branches(ins):
    labels = {i.label: k for k, i in enumerate(ins) if i.label}
    probs = []
    for k, b in enumerate(ins):
        if b.kind == 'branch' and b.target in labels:
            hist = []
            d = 0
            j = k
            while j >= 0 and d < MAXD:
                p = ins[j]
                if j != k and p.kind == 'branch' and p.op in ('s_branch', 's_setpc_b64'):
                    break
                hist.append(p)
                d += p.states()
                j -= 1
            hist.reverse()
            t = labels[b.target]
            fut = []
            d = 0
            j = t
            while j < len(ins) and d < MAXD:
                c = ins[j]
                fut.append(c)
                d += c.states()
                if c.kind == 'branch' and c.op in ('s_branch', 's_setpc_b64'):
                    break
                j += 1
            seq = hist + fut
            for ci in range(len(hist), len(seq)):
                c = seq[ci]
                if c.kind in ('dir', 'nop'):
                    continue
                dist = 0
                for pi in range(ci - 1, -1, -1):
                    p = seq[pi]
                    if pi < len(hist) and p.kind not in ('dir', 'nop'):
                        if need(p, c) > dist:
                            probs.append((b.text.strip(), p.text.strip(), c.text.strip(), need(p, c), dist))
                    dist += p.states()
    return probs


class Asm:
    def __init__(self):
        self.lines = []

    def __call__(self, text):
        for ln in text.split('\n'):
            ln = ln.rstrip()
            if ln.strip():
                s = ln.strip()
                if s.endswith(':') or s.startswith('.'):
                    self.lines.append(s)
                else:
                    self.lines.append('    ' + s)

    def finish(self):
        ins = [Ins(l) for l in self.lines]
        ins = fix_linear(ins)
        probs = check_branches(ins)
        for p in probs:
            print('BRANCH HAZARD:', p)
        vmax = 0
        smax = 0
        for i in ins:
            for (k, n) in (i.r | i.w):
                if k == 'v':
                    vmax = max(vmax, n)
                if k == 's' and n < 102:
                    smax = max(smax, n)
        return '\n'.join(i.text for i in ins) + '\n', vmax, smax, len(probs)
```

```python
WS_H = 0
WS_W2P = 0x640000
WS_WRP = 0x660000
WS_CELL = 0x680000
CELL_WG_STRIDE = 392 * 32
CELL_BYTES = 256 * CELL_WG_STRIDE
WS_OVF = 0xA00000
OVF_BYTES = 391 * 4096
assert WS_CELL + CELL_BYTES <= WS_OVF
```

```python
from consts import *

def srd(a, r, lo, hi, nbytes, off=0):
    if off:
        a(f'''s_add_u32 s{r}, s{lo}, {off}
              s_addc_u32 s{r+1}, s{hi}, 0''')
    else:
        a(f'''s_mov_b32 s{r}, s{lo}
              s_mov_b32 s{r+1}, s{hi}''')
    a(f'''s_mov_b32 s{r+2}, {nbytes}
          s_mov_b32 s{r+3}, 0x00020000''')


def gen_ka(a):
    a(f'''
    .globl ka_kernel
    .p2align 8
    .type ka_kernel,@function
    ka_kernel:
    s_load_dwordx16 s[4:19], s[0:1], 0
    s_load_dwordx2 s[20:21], s[0:1], 80
    s_cmp_lt_u32 s2, 32
    s_cbranch_scc1 ka_prep
    s_sub_u32 s3, s2, 32
    s_lshr_b32 s22, s3, 4
    s_lshl_b32 s22, s22, 3
    s_and_b32 s23, s3, 7
    s_or_b32 s22, s22, s23
    s_cmp_ge_u32 s22, 391
    s_cbranch_scc1 ka_exit
    s_bitcmp1_b32 s3, 3
    s_cbranch_scc1 ka_h
    ''')
    a(f'''
    v_lshlrev_b32 v1, 5, v0
    v_mov_b32 v2, 0
    ds_write_b32 v1, v2
    v_mov_b32 v3, 8192
    ds_write_b32 v3, v2
    s_lshl_b32 s23, s22, 12
    v_lshlrev_b32 v3, 4, v0
    v_add_u32 v3, s23, v3
    s_waitcnt lgkmcnt(0)
    ''')
    srd(a, 24, 8, 9, 1600000)
    srd(a, 28, 10, 11, 1600000)
    srd(a, 32, 6, 7, 150000)
    a('''
    buffer_load_dwordx4 v[4:7], v3, s[24:27], 0 offen
    buffer_load_dwordx4 v[8:11], v3, s[28:31], 0 offen
    ''')
    srd(a, 36, 20, 21, CELL_BYTES, WS_CELL)
    srd(a, 40, 20, 21, OVF_BYTES, WS_OVF)
    a('''
    s_mov_b32 s44, 0xffff0000
    s_mov_b32 s45, 0x41c68000
    s_barrier
    s_waitcnt vmcnt(0)
    ''')
    for k in range(8):
        a(f'''v_mul_u32_u24 v{28+k}, 6, v{4+k}
              v_and_b32 v{28+k}, -4, v{28+k}
              buffer_load_dwordx2 v[{12+2*k}:{13+2*k}], v{28+k}, s[32:35], 0 offen''')
    for k in range(4):
        S, D = 4 + k, 8 + k
        a(f'''
        v_mul_u32_u24 v44, 0x12493, v{D}
        v_lshrrev_b32 v44, 20, v44
        v_mul_u32_u24 v45, 0x2493, v44
        v_lshrrev_b32 v45, 16, v45
        v_mul_u32_u24 v46, 14, v44
        v_sub_u32 v46, v{D}, v46
        v_mul_u32_u24 v47, 7, v45
        v_sub_u32 v47, v44, v47
        v_lshl_add_u32 v46, v47, 4, v46
        v_lshl_or_b32 v46, v45, 8, v46
        v_lshl_or_b32 v{36+k}, v46, 16, v{S}
        v_lshlrev_b32 v{40+k}, 5, v45
        ''')
    for k in range(8):
        a(f'''v_and_b32 v{28+k}, 1, v{4+k}
              v_lshlrev_b32 v{28+k}, 4, v{28+k}''')
    for k in range(4):
        ps, pd = 12 + 2 * k, 20 + 2 * k
        a(f'''
        s_waitcnt vmcnt({3-k})
        v_alignbit_b32 v44, v{ps+1}, v{ps}, v{28+k}
        v_lshrrev_b32 v45, v{28+k}, v{ps+1}
        v_alignbit_b32 v46, v{pd+1}, v{pd}, v{32+k}
        v_lshrrev_b32 v47, v{32+k}, v{pd+1}
        v_lshlrev_b32 v48, 16, v44
        v_and_b32 v49, s44, v44
        v_lshlrev_b32 v50, 16, v45
        v_lshlrev_b32 v51, 16, v46
        v_and_b32 v52, s44, v46
        v_lshlrev_b32 v53, 16, v47
        v_sub_f32 v48, v48, v51
        v_sub_f32 v49, v49, v52
        v_sub_f32 v50, v50, v53
        v_cvt_pk_bf16_f32 v44, v48, v49
        v_cvt_pk_bf16_f32 v45, v50, v50
        v_lshlrev_b32 v48, 16, v44
        v_and_b32 v49, s44, v44
        v_and_b32 v50, s44, v45
        v_mul_f32 v48, v48, v48
        v_mul_f32 v49, v49, v49
        v_mul_f32 v50, v50, v50
        v_cvt_pk_bf16_f32 v44, v48, v49
        v_cvt_pk_bf16_f32 v45, v50, v50
        v_lshlrev_b32 v48, 16, v44
        v_and_b32 v49, s44, v44
        v_and_b32 v50, s44, v45
        v_add_f32 v48, v48, v49
        v_add_f32 v48, v48, v50
        v_cmp_ge_f32 s[{46+2*k}:{47+2*k}], s45, v48
        v_cmp_gt_u32 vcc, {1600000 - 4*k}, v3
        s_and_b64 s[{46+2*k}:{47+2*k}], s[{46+2*k}:{47+2*k}], vcc
        ''')
    a('v_mov_b32 v2, 1')
    for k in range(4):
        a(f'''s_mov_b64 exec, s[{46+2*k}:{47+2*k}]
              ds_add_rtn_u32 v{44+k}, v{40+k}, v2''')
    a('''s_mov_b64 exec, -1
         s_waitcnt lgkmcnt(0)
         s_mov_b64 s[54:55], 0''')
    for k in range(4):
        a(f'''
        v_cmp_gt_u32 vcc, 7, v{44+k}
        v_lshl_add_u32 v{40+k}, v{44+k}, 2, v{40+k}
        s_and_b64 exec, vcc, s[{46+2*k}:{47+2*k}]
        ds_write_b32 v{40+k}, v{36+k} offset:4
        s_andn2_b64 s[{46+2*k}:{47+2*k}], s[{46+2*k}:{47+2*k}], vcc
        s_or_b64 s[54:55], s[54:55], s[{46+2*k}:{47+2*k}]
        s_mov_b64 exec, -1
        ''')
    a('''
    s_cmp_eq_u64 s[54:55], 0
    s_cbranch_scc1 ka_e_noovf
    v_mov_b32 v48, 8192
    ''')
    for k in range(4):
        a(f'''
        s_mov_b64 exec, s[{46+2*k}:{47+2*k}]
        ds_add_rtn_u32 v49, v48, v2
        s_waitcnt lgkmcnt(0)
        v_lshl_add_u32 v49, v49, 2, s23
        buffer_store_dword v{36+k}, v49, s[40:43], 0 offen
        ''')
    a(f'''
    s_mov_b64 exec, -1
    ka_e_noovf:
    s_waitcnt lgkmcnt(0)
    s_barrier
    v_mov_b32 v3, 8192
    ds_read_b128 v[4:7], v1
    ds_read_b128 v[8:11], v1 offset:16
    ds_read_b32 v12, v3
    v_mul_u32_u24 v13, {CELL_WG_STRIDE}, v0
    s_lshl_b32 s23, s22, 5
    v_add_u32 v13, s23, v13
    s_waitcnt lgkmcnt(0)
    v_lshl_or_b32 v4, v12, 16, v4
    buffer_store_dwordx4 v[4:7], v13, s[36:39], 0 offen
    buffer_store_dwordx4 v[8:11], v13, s[36:39], 0 offen offset:16
    s_endpgm
    ''')
    a(f'''
    ka_h:
    v_lshrrev_b32 v1, 6, v0
    v_readfirstlane_b32 s23, v1
    v_and_b32 v1, 63, v0
    v_lshrrev_b32 v2, 4, v1
    v_and_b32 v3, 15, v1
    v_lshlrev_b32 v4, 2, v2
    v_xor_b32 v4, v4, v3
    v_lshlrev_b32 v4, 4, v4
    v_lshl_or_b32 v4, v2, 8, v4
    s_lshl_b32 s24, s23, 13
    s_add_u32 s25, s24, 4096
    s_waitcnt lgkmcnt(0)
    ''')
    srd(a, 28, 14, 15, 32768)
    srd(a, 32, 4, 5, 25600000)
    a('s_mov_b32 m0, s24')
    for i in range(4):
        a(f'buffer_load_dwordx4 v4, s[28:31], s24 offen offset:{1024*i} lds')
    a('s_mov_b32 m0, s25')
    for i in range(4):
        a(f'buffer_load_dwordx4 v4, s[28:31], s25 offen offset:{1024*i} lds')
    a(f'''
    s_and_b32 s26, s23, 1
    s_lshl_b32 s26, s26, 5
    s_lshl_b32 s27, s22, 6
    s_add_u32 s26, s26, s27
    v_and_b32 v5, 31, v1
    v_add_u32 v5, s26, v5
    v_lshrrev_b32 v6, 5, v1
    v_lshlrev_b32 v7, 10, v5
    v_lshl_or_b32 v7, v6, 4, v7
    ''')
    for s in range(8):
        a(f'buffer_load_dwordx4 v[{16+4*s}:{19+4*s}], v7, s[32:35], 0 offen offset:{32*s}')
    srd(a, 36, 20, 21, 6400000, WS_H)
    a(f'''
    v_bfe_u32 v8, v1, 2, 2
    v_and_b32 v9, 1, v1
    v_lshlrev_b32 v9, 5, v9
    v_and_b32 v10, 1, v2
    v_lshl_or_b32 v9, v10, 4, v9
    v_bfe_u32 v10, v1, 1, 1
    v_lshl_or_b32 v9, v10, 3, v9
    s_lshr_b32 s27, s23, 1
    s_lshl_b32 s27, s27, 7
    v_or_b32 v9, s27, v9
    v_lshlrev_b32 v10, 6, v8
    v_xor_b32 v11, v9, v10
    v_or_b32 v9, 64, v9
    v_xor_b32 v12, v9, v10
    v_lshl_add_u32 v10, v6, 3, v8
    v_lshl_or_b32 v11, v10, 8, v11
    v_lshl_or_b32 v12, v10, 8, v12
    v_lshlrev_b32 v13, 8, v5
    v_lshl_or_b32 v13, v6, 5, v13
    v_add_u32 v13, s27, v13
    s_waitcnt vmcnt(8)
    s_barrier
    ''')
    ACC = [80, 96]
    def rd(s):
        b = 48 + 8 * (s % 4)
        for mt in range(2):
            for u in range(2):
                a(f'ds_read_b64_tr_b16 v[{b+4*mt+2*u}:{b+4*mt+2*u+1}], v{11+mt} offset:{s*4096+u*1024}')
    rd(0); rd(1); rd(2)
    for s in range(8):
        b = 48 + 8 * (s % 4)
        rem = min(2, 7 - s) * 4
        a(f's_waitcnt vmcnt({7-s}) lgkmcnt({rem})')
        for mt in range(2):
            c = '0' if s == 0 else f'v[{ACC[mt]}:{ACC[mt]+15}]'
            a(f'v_mfma_f32_32x32x16_bf16 v[{ACC[mt]}:{ACC[mt]+15}], v[{b+4*mt}:{b+4*mt+3}], v[{16+4*s}:{19+4*s}], {c}')
        if s + 3 < 8:
            rd(s + 3)
    a('s_mov_b32 s40, 0xbfb8aa3b')
    for mt in range(2):
        A = ACC[mt]
        for i in range(16):
            a(f'v_mul_f32 v{48+i}, s40, v{A+i}')
        for i in range(16):
            a(f'v_exp_f32 v{48+i}, v{48+i}')
        for i in range(16):
            a(f'v_add_f32 v{48+i}, 1.0, v{48+i}')
        for i in range(16):
            a(f'v_rcp_f32 v{48+i}, v{48+i}')
        for i in range(16):
            a(f'v_mul_f32 v{48+i}, v{48+i}, v{A+i}')
        o = 64 + 8 * mt
        for i in range(8):
            a(f'v_cvt_pk_bf16_f32 v{o+i}, v{48+2*i}, v{49+2*i}')
        a(f'''buffer_store_dwordx4 v[{o}:{o+3}], v13, s[36:39], 0 offen offset:{64*mt}
              buffer_store_dwordx4 v[{o+4}:{o+7}], v13, s[36:39], 0 offen offset:{64*mt+16}''')
    a('s_endpgm')
    a(f'''
    ka_prep:
    s_cmp_ge_u32 s2, 30
    s_cbranch_scc1 ka_exit
    v_and_b32 v1, 15, v0
    v_bfe_u32 v2, v0, 4, 2
    v_lshrrev_b32 v3, 6, v0
    s_cmp_ge_u32 s2, 24
    s_cbranch_scc1 ka_prep_wr
    s_mul_i32 s22, s2, 0x5556
    s_lshr_b32 s22, s22, 16
    s_mul_i32 s23, s22, 3
    s_sub_u32 s23, s2, s23
    s_lshl_b32 s22, s22, 5
    s_lshl_b32 s23, s23, 8
    s_add_u32 s22, s22, s23
    v_lshl_add_u32 v4, v3, 2, v2
    v_mul_u32_u24 v4, {8*768}, v4
    v_lshl_add_u32 v4, v1, 1, v4
    v_add_u32 v4, s22, v4
    s_lshl_b32 s23, s2, 12
    v_lshlrev_b32 v5, 4, v0
    v_add_u32 v5, s23, v5
    v_add_u32 v6, {4*768}, v4
    s_waitcnt lgkmcnt(0)
    ''')
    srd(a, 24, 16, 17, 98304)
    srd(a, 28, 20, 21, 98304, WS_W2P)
    for j in range(8):
        a(f'buffer_load_ushort v{12+j}, v{4 if j < 4 else 6}, s[24:27], 0 offen offset:{768*(j&3)}')
    a('s_waitcnt vmcnt(0)')
    for j in range(4):
        a(f'v_lshl_or_b32 v{8+j}, v{13+2*j}, 16, v{12+2*j}')
    a(f'''
    buffer_store_dwordx4 v[8:11], v5, s[28:31], 0 offen
    s_endpgm
    ka_prep_wr:
    s_sub_u32 s22, s2, 24
    s_lshl_b32 s22, s22, 2
    v_add_u32 v3, s22, v3
    v_mul_u32_u24 v4, 0x5556, v3
    v_lshrrev_b32 v4, 16, v4
    v_mul_u32_u24 v5, 3, v4
    v_sub_u32 v5, v3, v5
    v_lshlrev_b32 v4, 5, v4
    v_lshl_add_u32 v4, v5, 8, v4
    v_lshl_add_u32 v4, v1, 1, v4
    v_mul_u32_u24 v5, {4*768}, v2
    v_add_u32 v4, v4, v5
    s_lshl_b32 s23, s22, 9
    v_lshlrev_b32 v5, 3, v0
    v_add_u32 v5, s23, v5
    s_waitcnt lgkmcnt(0)
    ''')
    srd(a, 24, 18, 19, 12288)
    srd(a, 28, 20, 21, 12288, WS_WRP)
    for j in range(4):
        a(f'buffer_load_ushort v{12+j}, v4, s[24:27], 0 offen offset:{768*j}')
    a('s_waitcnt vmcnt(0)')
    for j in range(2):
        a(f'v_lshl_or_b32 v{8+j}, v{13+2*j}, 16, v{12+2*j}')
    a(f'''
    buffer_store_dwordx2 v[8:9], v5, s[28:31], 0 offen
    ka_exit:
    s_endpgm
    ''')
```

```python
from consts import *
from gen_ka import srd

L_RING = 0
L_TMP = 131072
L_GCNT = L_TMP + 3584
L_RBF = L_GCNT + 64
L_SEL = L_RBF + 16384
L_END = L_SEL + 16 * 320
assert L_RBF % 16 == 0 and L_SEL % 16 == 0
LISTCAP = 416
PADSRC = 0x100000

class RA:
    def __init__(self, start=1):
        self.n = start
    def __call__(self, k=1, align=1):
        self.n = (self.n + align - 1) // align * align
        r = self.n
        self.n += k
        return r

def vr(b, k):
    return f'v[{b}:{b+k-1}]'

def gen_kb(a, opts):
    R = RA(1)
    vSwzH, vSwzV, vAV, vAR, vAS, vBP, vKey, vOut, vSrc, vSrcB, vOH, vOV = [R() for _ in range(12)]
    vAH = R(4)
    W2 = R(48, 4); WR = R(6, 2); RBF = R(4, 2)
    OWN = R(56, 2); ACC = R(16, 4)
    PHI = [R(12, 4), R(12, 4)]; WRD = R(12, 4)
    HA = R(16, 4); HB = R(16, 4)
    V = R(12, 2); MSG = R(20, 4); FZ = R(4, 4)
    assert R.n <= 256, R.n
    SS = [HA, HA + 4, HA + 8, HA + 12, FZ]
    EQ = HB; SEL = [HB + 4, HB + 8, HB + 12]
    S_SV, S_OUT, S_H, S_POS, S_WS, S_BASE = 28, 32, 36, 40, 44, 48
    sW, sMask, sNode0, sMode, sI, sQ, sC, sLen, sBase = 52, 53, 54, 55, 26, 27, 3, 88, 89
    FR = 64
    GE = 80
    sGP = 90
    sTot, sTe, sGend, sGst, sG, sStA, sStB, sStC, sDma, sX = 92, 93, 94, 95, 96, 97, 98, 99, 100, 101
    s256, s512, s768 = 56, 57, 58
    sT0, sT1, sT2, sT3 = 59, 60, 61, 62
    WSO = WS_W2P
    sr = lambda b: f's[{b}:{b+3}]'

    a(f'''
    .globl kb_kernel
    .p2align 8
    .type kb_kernel,@function
    kb_kernel:
    s_cmp_ge_u32 s2, 256
    s_cbranch_scc1 kb_exit
    s_load_dwordx16 s[4:19], s[0:1], 0
    s_load_dwordx4 s[20:23], s[0:1], 64
    s_load_dwordx2 s[24:25], s[0:1], 80
    ''')
    T = PHI[0]
    U = HA
    CE = MSG
    tL, tN, tG = T, T + 1, T + 2
    a(f'''
    v_lshrrev_b32 v{T+3}, 6, v0
    v_readfirstlane_b32 s{sW}, v{T+3}
    v_lshlrev_b32 v{T+4}, 5, v0
    v_mov_b32 v{T+5}, 0x40000000
    v_cmp_gt_u32 vcc, 391, v0
    v_cndmask_b32 v{T+4}, v{T+5}, v{T+4}, vcc
    s_mul_i32 s{sT0}, s2, {CELL_WG_STRIDE}
    s_add_u32 s{sT0}, s{sT0}, {WS_CELL - WSO}
    v_add_u32 v{T+4}, s{sT0}, v{T+4}
    v_and_b32 v{tL}, 63, v0
    v_lshlrev_b32 v{T+6}, 4, v{tL}
    v_lshlrev_b32 v{T+7}, 3, v{tL}
    s_mul_i32 s{sT1}, s{sW}, 12288
    s_mul_i32 s{sT2}, s{sW}, 1536
    s_add_u32 s{sT2}, s{sT2}, {WS_WRP - WSO}
    s_mul_i32 s{sNode0}, s2, 98
    s_mov_b32 s{sMask}, 0xffff0000
    s_mov_b32 s{sMode}, 0
    s_movk_i32 s{s256}, 256
    s_movk_i32 s{s512}, 512
    s_movk_i32 s{s768}, 768
    s_waitcnt lgkmcnt(0)
    ''')
    srd(a, S_WS, 24, 25, WS_OVF + OVF_BYTES - WSO, WSO)
    a(f'''
    buffer_load_dwordx4 {vr(CE,4)}, v{T+4}, {sr(S_WS)}, 0 offen
    buffer_load_dwordx4 {vr(CE+4,4)}, v{T+4}, {sr(S_WS)}, 0 offen offset:16
    s_load_dwordx8 s[{FR}:{FR+7}], s[12:13], 0
    ''')
    srd(a, S_SV, 4, 5, 25600000)
    srd(a, S_BASE, 4, 5, 25600000)
    srd(a, S_OUT, 20, 21, 25600000)
    srd(a, S_H, 24, 25, 6400000, WS_H)
    srd(a, S_POS, 6, 7, 150000)
    a(f'''
    v_and_b32 v{T+8}, 7, v0
    v_lshlrev_b32 v{T+8}, 2, v{T+8}
    v_add_u32 v{T+8}, {L_GCNT}, v{T+8}
    v_mov_b32 v{T+9}, 0
    ds_write_b32 v{T+8}, v{T+9}
    ''')
    for i in range(12):
        so = f's{sT1}'
        if i % 4 == 0 and i:
            a(f's_add_u32 s{sT1}, s{sT1}, 4096')
        a(f'buffer_load_dwordx4 {vr(W2+4*i,4)}, v{T+6}, {sr(S_WS)}, {so} offen offset:{1024*(i%4)}')
    for b in range(3):
        a(f'buffer_load_dwordx2 {vr(WR+2*b,2)}, v{T+7}, {sr(S_WS)}, s{sT2} offen offset:{512*b}')

    def out_base():
        a(f'''
        v_and_b32 v{tL}, 63, v0
        v_and_b32 v{tN}, 15, v0
        v_bfe_u32 v{tG}, v0, 4, 2
        v_add_u32 v{T+10}, s{sNode0}, v{tN}
        v_lshlrev_b32 v{T+10}, 10, v{T+10}
        v_lshl_add_u32 v{T+10}, v{tG}, 3, v{T+10}
        s_lshl_b32 s{sT3}, s{sW}, 5
        v_add_u32 v{T+10}, s{sT3}, v{T+10}
        v_mov_b32 v{T+11}, 0x40000000
        v_cmp_gt_u32 vcc, 14, v{tN}
        v_cndmask_b32 v{vOut}, v{T+11}, v{T+10}, vcc
        ''')

    def own_loads(flags):
        for j in range(7):
            if j == 0:
                ad = vOut
            else:
                ad = T + 12 + j
                a(f'v_add_u32 v{ad}, {14336*j}, v{vOut}')
            for b in range(4):
                a(f'buffer_load_dwordx2 {vr(OWN+8*j+2*b,2)}, v{ad}, {sr(S_BASE)}, 0 offen offset:{256*b}{flags}')
    out_base()
    own_loads('')
    a(f'''
    s_lshr_b32 s{sT0}, s{sW}, 1
    s_lshl_b32 s{sT1}, s{sT0}, 2
    v_add_u32 v{T+3}, s{sT1}, v{tG}
    v_xor_b32 v{T+3}, v{T+3}, v{tN}
    v_lshlrev_b32 v{vSwzH}, 4, v{T+3}
    s_and_b32 s{sT1}, s{sT1}, 4
    v_or_b32 v{T+3}, s{sT1}, v{tG}
    v_lshlrev_b32 v{T+3}, 1, v{T+3}
    v_xor_b32 v{T+3}, v{T+3}, v{tN}
    v_lshlrev_b32 v{vSwzV}, 4, v{T+3}
    s_waitcnt lgkmcnt(0)
    ''')
    for k in range(7, -1, -1):
        a(f'''s_and_b32 s{FR+2*k+1}, s{FR+k}, s{sMask}
              s_lshl_b32 s{FR+2*k}, s{FR+k}, 16''')
    a(f'''
    s_barrier
    s_waitcnt vmcnt(43)
    v_and_b32 v{CE}, 0xffff, v{CE}
    kb_propose:
    v_mov_b32 v{T+9}, 1
    ''')
    def prop(lo, hi):
        for i in range(lo, hi):
            q = i - lo
            a(f'''
            v_cmp_lt_u32 s[{GE+2*q-0}:{GE+2*q+1}], {i}, v{CE}
            v_bfe_u32 v{U+q}, v{CE+1+i}, 20, 3
            v_lshlrev_b32 v{U+4+q}, 2, v{U+q}
            v_add_u32 v{U+4+q}, {L_GCNT}, v{U+4+q}
            ''')
        for i in range(lo, hi):
            q = i - lo
            a(f'''s_mov_b64 exec, s[{GE+2*q}:{GE+2*q+1}]
                  ds_add_rtn_u32 v{U+8+q}, v{U+4+q}, v{T+9}''')
        a('s_mov_b64 exec, -1')
        for i in range(lo, hi):
            q = i - lo
            a(f'''v_lshlrev_b32 v{U+q}, 9, v{U+q}
                  v_add_u32 v{U+q}, {L_TMP}, v{U+q}''')
        a('s_waitcnt lgkmcnt(0)')
        for i in range(lo, hi):
            q = i - lo
            a(f'''v_min_u32 v{U+8+q}, 0x7f, v{U+8+q}
                  v_lshl_add_u32 v{U+q}, v{U+8+q}, 2, v{U+q}''')
        for i in range(lo, hi):
            q = i - lo
            a(f'''s_mov_b64 exec, s[{GE+2*q}:{GE+2*q+1}]
                  ds_write_b32 v{U+q}, v{CE+1+i}''')
        a('s_mov_b64 exec, -1')
    prop(0, 4)
    a(f'''
    v_cmp_lt_u32 vcc, 4, v{CE}
    s_cbranch_vccz kb_prop_done
    ''')
    prop(4, 7)
    a(f'''
    v_cmp_lt_u32 vcc, 7, v{CE}
    v_mov_b32 v{U}, {L_GCNT + 28}
    s_mov_b64 exec, vcc
    ds_add_u32 v{U}, v{T+9}
    s_mov_b64 exec, -1
    kb_prop_done:
    v_mov_b32 v{U}, {L_GCNT}
    s_waitcnt lgkmcnt(0)
    s_barrier
    ds_read_b128 {vr(U+4,4)}, v{U}
    ds_read_b128 {vr(U+8,4)}, v{U} offset:16
    ''')
    tP = T + 3
    a(f'''
    v_and_b32 v{tL}, 63, v0
    v_and_b32 v{tN}, 15, v0
    v_bfe_u32 v{tG}, v0, 4, 2
    v_lshrrev_b32 v{T+4}, 2, v{tL}
    v_and_b32 v{T+5}, 3, v{tL}
    s_lshl_b32 s{sT0}, s{sW}, 2
    v_add_u32 v{T+6}, s{sT0}, v{T+5}
    v_lshl_add_u32 v{tP}, v{T+4}, 5, v{T+6}
    v_lshlrev_b32 v{T+7}, 2, v{tP}
    v_add_u32 v{T+7}, {L_TMP}, v{T+7}
    s_waitcnt lgkmcnt(0)
    ''')
    for j in range(7):
        a(f'v_readfirstlane_b32 s{GE+j}, v{U+4+j}')
    a(f'v_readfirstlane_b32 s{sT0}, v{U+11}')
    a(f'''
    s_max_u32 s{sT1}, s{GE}, s{GE+1}
    s_max_u32 s{sT2}, s{GE+2}, s{GE+3}
    s_max_u32 s{sT3}, s{GE+4}, s{GE+5}
    s_max_u32 s{sT1}, s{sT1}, s{GE+6}
    s_max_u32 s{sT2}, s{sT2}, s{sT3}
    s_max_u32 s{sT1}, s{sT1}, s{sT2}
    s_mov_b32 s{sTot}, 0
    ''')
    for j in range(7):
        a(f's_add_u32 s{sTot}, s{sTot}, s{GE+j}')
        if j < 6:
            a(f'''s_lshl_b32 s{sT2}, s{GE+j}, 2
                  s_sub_u32 s{sT2}, 512, s{sT2}
                  v_cmpx_le_u32 vcc, s{sTot}, v{tP}
                  v_add_u32 v{T+7}, s{sT2}, v{T+7}''')
        a(f's_mov_b32 s{GE+j}, s{sTot}')
    a(f'''
    s_mov_b64 exec, -1
    ds_read_b32 v{T+8}, v{T+7}
    s_cmp_gt_u32 s{sT1}, 128
    s_cselect_b32 s{sT0}, 1, s{sT0}
    s_cmp_gt_u32 s{sTot}, {LISTCAP}
    s_cselect_b32 s{sT0}, 1, s{sT0}
    s_cmp_lg_u32 s{sT0}, 0
    s_cbranch_scc1 kb_go_slow
    s_cmp_eq_u32 s{sTot}, 0
    s_cbranch_scc1 kb_empty
    ''')
    a(f'''
    s_lshl_b32 s{sT0}, s{GE+1}, 9
    s_or_b32 s{sGP}, s{GE}, s{sT0}
    s_lshl_b32 s{sT0}, s{GE+2}, 18
    s_or_b32 s{sGP}, s{sGP}, s{sT0}
    s_lshl_b32 s{sT0}, s{GE+3}, 27
    s_or_b32 s{sGP}, s{sGP}, s{sT0}
    s_lshr_b32 s{sGP+1}, s{GE+3}, 5
    s_lshl_b32 s{sT0}, s{GE+4}, 4
    s_or_b32 s{sGP+1}, s{sGP+1}, s{sT0}
    s_lshl_b32 s{sT0}, s{GE+5}, 13
    s_or_b32 s{sGP+1}, s{sGP+1}, s{sT0}
    s_lshl_b32 s{sT0}, s{GE+6}, 22
    s_or_b32 s{sGP+1}, s{sGP+1}, s{sT0}
    v_cmp_gt_u32 vcc, s{sTot}, v{tP}
    v_mov_b32 v{T+9}, {PADSRC}
    v_mov_b32 v{T+10}, 0xffff
    v_lshlrev_b32 v{vBP}, 2, v{tG}
    s_waitcnt lgkmcnt(0)
    v_and_b32 v{T+11}, 0xffff, v{T+8}
    v_bfe_u32 v{T+12}, v{T+8}, 16, 7
    v_cndmask_b32 v{vSrc}, v{T+9}, v{T+11}, vcc
    v_cndmask_b32 v{T+10}, v{T+10}, v{T+12}, vcc
    ds_bpermute_b32 v{U}, v{vBP}, v{vSrc}
    ds_bpermute_b32 v{U+1}, v{vBP}, v{vSrc} offset:16
    ds_bpermute_b32 v{U+2}, v{vBP}, v{vSrc} offset:32
    ds_bpermute_b32 v{vSrcB}, v{vBP}, v{vSrc} offset:48
    v_add_u32 v{vBP}, 64, v{vBP}
    v_lshrrev_b32 v{T+13}, 4, v{T+12}
    v_lshlrev_b32 v{T+13}, 1, v{T+13}
    v_sub_u32 v{T+13}, v{T+12}, v{T+13}
    v_add_u32 v{T+13}, s{sNode0}, v{T+13}
    v_cndmask_b32 v{T+13}, v{T+9}, v{T+13}, vcc
    v_mul_u32_u24 v{T+14}, 6, v{vSrc}
    v_and_b32 v{T+14}, -4, v{T+14}
    buffer_load_dwordx2 {vr(T+16,2)}, v{T+14}, {sr(S_POS)}, 0 offen
    v_mul_u32_u24 v{T+15}, 6, v{T+13}
    v_and_b32 v{T+15}, -4, v{T+15}
    buffer_load_dwordx2 {vr(T+18,2)}, v{T+15}, {sr(S_POS)}, 0 offen
    s_lshl_b32 s{sDma}, s{sW}, 12
    s_waitcnt lgkmcnt(1)
    ''')
    def dma(srcb):
        a(f'''
        v_lshl_add_u32 v{vOH}, v{srcb}, 8, v{vSwzH}
        v_lshl_add_u32 v{vOV}, v{srcb}, 10, v{vSwzV}
        s_mov_b32 m0, s{sDma}
        buffer_load_dwordx4 v{vOH}, {sr(S_H)}, 0 offen lds
        s_add_u32 m0, s{sDma}, 1024
        buffer_load_dwordx4 v{vOV}, {sr(S_SV)}, s{s256} offen lds
        s_add_u32 m0, s{sDma}, 2048
        buffer_load_dwordx4 v{vOV}, {sr(S_SV)}, s{s512} offen lds
        s_add_u32 m0, s{sDma}, 3072
        buffer_load_dwordx4 v{vOV}, {sr(S_SV)}, s{s768} offen lds
        s_add_u32 s{sDma}, s{sDma}, 0x8000
        s_and_b32 s{sDma}, s{sDma}, 0x1ffff
        ''')
    for i in range(3):
        dma(U + i)
    a(f'''
    v_lshrrev_b32 v{U}, 2, v{tN}
    v_lshlrev_b32 v{U}, 13, v{U}
    v_and_b32 v{U+1}, 3, v{tN}
    v_lshl_or_b32 v{U}, v{U+1}, 8, v{U}
    v_xor_b32 v{U+1}, v{tG}, v{tN}
    ''')
    for s in range(4):
        a(f'''v_xor_b32 v{U+2}, {4*s}, v{U+1}
              v_lshl_or_b32 v{vAH+s}, v{U+2}, 4, v{U}''')
    a(f'''
    v_bfe_u32 v{U}, v{tL}, 2, 2
    v_and_b32 v{U+1}, 1, v{tG}
    v_lshl_or_b32 v{U+1}, v{U+1}, 2, v{U}
    v_xor_b32 v{U+1}, s{sW}, v{U+1}
    v_lshlrev_b32 v{U+1}, 5, v{U+1}
    v_lshl_or_b32 v{U+1}, v{U}, 8, v{U+1}
    v_lshl_or_b32 v{U+1}, v{tG}, 13, v{U+1}
    v_lshl_or_b32 v{vAV}, v{T+5}, 3, v{U+1}
    v_lshlrev_b32 v{vAR}, 3, v{tL}
    v_add_u32 v{vAR}, {L_RBF}, v{vAR}
    v_lshlrev_b32 v{vAS}, 4, v{tG}
    v_add_u32 v{vAS}, {L_SEL}, v{vAS}
    v_lshl_or_b32 v{vKey}, v{tN}, 16, v{tN}
    ''')
    tWR, tWS = T + 20, T + 21
    a(f'''
    s_and_b32 s{sT0}, s{sW}, 1
    s_lshl_b32 s{sT0}, s{sT0}, 9
    s_lshr_b32 s{sT1}, s{sW}, 1
    s_lshl_b32 s{sT1}, s{sT1}, 5
    s_add_u32 s{sT0}, s{sT0}, s{sT1}
    s_add_u32 s{sT0}, s{sT0}, {L_RBF}
    v_lshlrev_b32 v{tWR}, 10, v{T+4}
    v_lshl_add_u32 v{tWR}, v{T+5}, 3, v{tWR}
    v_add_u32 v{tWR}, s{sT0}, v{tWR}
    v_mul_u32_u24 v{tWS}, 320, v{T+4}
    v_lshl_add_u32 v{tWS}, v{T+6}, 1, v{tWS}
    v_add_u32 v{tWS}, {L_SEL}, v{tWS}
    ds_write_b16 v{tWS}, v{T+10}
    v_and_b32 v{T+14}, 1, v{vSrc}
    v_lshlrev_b32 v{T+14}, 4, v{T+14}
    v_and_b32 v{T+15}, 1, v{T+13}
    v_lshlrev_b32 v{T+15}, 4, v{T+15}
    s_waitcnt vmcnt(12)
    ''')
    x, y, z = U, U + 1, U + 2
    M = f's{sMask}'
    a(f'''
    v_alignbit_b32 v{U+8}, v{T+17}, v{T+16}, v{T+14}
    v_lshrrev_b32 v{U+9}, v{T+14}, v{T+17}
    v_alignbit_b32 v{U+10}, v{T+19}, v{T+18}, v{T+15}
    v_lshrrev_b32 v{U+11}, v{T+15}, v{T+19}
    v_lshlrev_b32 v{x}, 16, v{U+8}
    v_and_b32 v{y}, {M}, v{U+8}
    v_lshlrev_b32 v{z}, 16, v{U+9}
    v_lshlrev_b32 v{U+3}, 16, v{U+10}
    v_and_b32 v{U+4}, {M}, v{U+10}
    v_lshlrev_b32 v{U+5}, 16, v{U+11}
    v_sub_f32 v{x}, v{x}, v{U+3}
    v_sub_f32 v{y}, v{y}, v{U+4}
    v_sub_f32 v{z}, v{z}, v{U+5}
    v_cvt_pk_bf16_f32 v{U+8}, v{x}, v{y}
    v_cvt_pk_bf16_f32 v{U+9}, v{z}, v{z}
    v_lshlrev_b32 v{x}, 16, v{U+8}
    v_and_b32 v{y}, {M}, v{U+8}
    v_and_b32 v{z}, {M}, v{U+9}
    v_mul_f32 v{U+3}, v{x}, v{x}
    v_mul_f32 v{U+4}, v{y}, v{y}
    v_mul_f32 v{U+5}, v{z}, v{z}
    v_cvt_pk_bf16_f32 v{U+8}, v{U+3}, v{U+4}
    v_cvt_pk_bf16_f32 v{U+9}, v{U+5}, v{U+5}
    v_lshlrev_b32 v{U+3}, 16, v{U+8}
    v_and_b32 v{U+4}, {M}, v{U+8}
    v_and_b32 v{U+5}, {M}, v{U+9}
    v_add_f32 v{U+3}, v{U+3}, v{U+4}
    v_add_f32 v{U+3}, v{U+3}, v{U+5}
    v_cvt_pk_bf16_f32 v{U+3}, v{U+3}, v{U+3}
    v_and_b32 v{U+3}, {M}, v{U+3}
    v_add_f32 v{U+3}, 0x322bcc77, v{U+3}
    v_cvt_pk_bf16_f32 v{U+3}, v{U+3}, v{U+3}
    v_and_b32 v{U+3}, {M}, v{U+3}
    v_sqrt_f32 v{U+3}, v{U+3}
    v_cvt_pk_bf16_f32 v{U+3}, v{U+3}, v{U+3}
    v_and_b32 v{U+3}, {M}, v{U+3}
    v_rcp_f32 v{U+4}, v{U+3}
    ''')
    d, rd = U + 3, U + 4
    a(f'''
    v_mul_f32 v{U+5}, 0x40490fdb, v{d}
    v_cvt_pk_bf16_f32 v{U+5}, v{U+5}, v{U+5}
    v_and_b32 v{U+5}, {M}, v{U+5}
    v_mul_f32 v{U+5}, 0x3e4ccccd, v{U+5}
    v_cvt_pk_bf16_f32 v{U+5}, v{U+5}, v{U+5}
    v_and_b32 v{U+5}, {M}, v{U+5}
    v_mul_f32 v{U+5}, 0.15915494, v{U+5}
    v_cos_f32 v{U+5}, v{U+5}
    v_cvt_pk_bf16_f32 v{U+5}, v{U+5}, v{U+5}
    v_and_b32 v{U+5}, {M}, v{U+5}
    v_add_f32 v{U+5}, 1.0, v{U+5}
    v_cvt_pk_bf16_f32 v{U+5}, v{U+5}, v{U+5}
    v_and_b32 v{U+5}, {M}, v{U+5}
    v_mul_f32 v{U+5}, 0.5, v{U+5}
    v_cmp_gt_f32 vcc, 0x40a00000, v{d}
    v_cndmask_b32 v{U+5}, 0, v{U+5}, vcc
    v_mul_f32 v{x}, v{x}, v{rd}
    v_mul_f32 v{y}, v{y}, v{rd}
    v_mul_f32 v{z}, v{z}, v{rd}
    v_cvt_pk_bf16_f32 v{U+8}, v{x}, v{y}
    v_cvt_pk_bf16_f32 v{U+9}, v{z}, v{z}
    v_lshlrev_b32 v{x}, 16, v{U+8}
    v_and_b32 v{y}, {M}, v{U+8}
    v_and_b32 v{z}, {M}, v{U+9}
    v_mul_f32 v{x}, v{x}, v{U+5}
    v_mul_f32 v{y}, v{y}, v{U+5}
    v_mul_f32 v{z}, v{z}, v{U+5}
    v_cvt_pk_bf16_f32 v{U+8}, v{x}, v{y}
    v_cvt_pk_bf16_f32 v{U+9}, v{z}, v{z}
    ds_write_b16_d16_hi v{tWS}, v{U+5} offset:64
    ds_write_b16 v{tWS}, v{U+8} offset:128
    ds_write_b16_d16_hi v{tWS}, v{U+8} offset:192
    ds_write_b16 v{tWS}, v{U+9} offset:256
    ''')
    X = U + 12
    P = T + 24
    for k in range(16):
        a(f'v_mul_f32 v{X+k}, s{FR+k}, v{d}')
    for k in range(8):
        a(f'v_cvt_pk_bf16_f32 v{P+k}, v{X+2*k}, v{X+2*k+1}')
    for k in range(8):
        a(f'''v_lshlrev_b32 v{X+2*k}, 16, v{P+k}
              v_and_b32 v{X+2*k+1}, {M}, v{P+k}''')
    for k in range(16):
        a(f'v_mul_f32 v{X+k}, 0.15915494, v{X+k}')
    for k in range(16):
        a(f'v_sin_f32 v{X+k}, v{X+k}')
    for k in range(16):
        a(f'v_mul_f32 v{X+k}, v{X+k}, v{rd}')
    for k in range(8):
        a(f'v_cvt_pk_bf16_f32 v{P+k}, v{X+2*k}, v{X+2*k+1}')
    for g in range(4):
        a(f'ds_write_b64 v{tWR}, {vr(P+2*g,2)} offset:{128*g}')
    def acc_init_static():
        for i in range(8):
            a(f'''v_lshlrev_b32 v{ACC+2*i}, 16, v{OWN+i}
                  v_and_b32 v{ACC+2*i+1}, {M}, v{OWN+i}''')
    acc_init_static()
    a(f'''
    s_mov_b32 s{sG}, 0
    s_and_b32 s{sGend}, s{sGP}, 0x1ff
    s_mov_b32 s{sTe}, 32
    s_mov_b32 s{sStA}, 0
    s_mov_b32 s{sStB}, 0
    s_mov_b32 s{sStC}, 0
    s_mov_b32 s{sX}, 0x8000
    s_waitcnt vmcnt(8) lgkmcnt(0)
    kb_loop:
    s_barrier
    ''')
    for s in range(4):
        a(f'ds_read_b128 {vr(HA+4*s,4)}, v{vAH+s}')
    a(f'''ds_read_b64 {vr(RBF,2)}, v{vAR}
          ds_read_b64 {vr(RBF+2,2)}, v{vAR} offset:512''')
    dma(vSrcB)
    for s in range(4):
        a(f'ds_read_b128 {vr(HB+4*s,4)}, v{vAH+s} offset:4096')
    for c in range(3):
        a(f'ds_read_b64_tr_b16 {vr(V+4*c,2)}, v{vAV} offset:{1024*(c+1)}')
    def gemm(t, s):
        H = HA if t == 0 else HB
        out = []
        for b in range(3):
            c = '0' if s == 0 else vr(PHI[t] + 4 * b, 4)
            out.append(f'v_mfma_f32_16x16x32_bf16 {vr(PHI[t]+4*b,4)}, {vr(H+4*s,4)}, {vr(W2+16*b+4*s,4)}, {c}')
        return out
    def wf(t):
        return [f'v_mfma_f32_16x16x16_bf16 {vr(WRD+4*b,4)}, {vr(RBF+2*t,2)}, {vr(WR+2*b,2)}, 0' for b in range(3)]
    for s in range(4):
        a(f's_waitcnt lgkmcnt({12-s})')
        for m in gemm(0, s):
            a(m)
    a('s_waitcnt lgkmcnt(7)')
    for m in wf(0):
        a(m)
    a('s_waitcnt lgkmcnt(3)')
    for c in range(3):
        a(f'ds_read_b64_tr_b16 {vr(V+4*c+2,2)}, v{vAV} offset:{4096+1024*(c+1)}')
    a(f'ds_bpermute_b32 v{vSrcB}, v{vBP}, v{vSrc}')
    for k in range(5):
        a(f'ds_read_b128 {vr(SS[k],4)}, v{vAS} offset:{64*k}')
    def valu_half(t):
        p = PHI[t]
        out = []
        for i in range(12):
            out.append(f'v_mul_f32 v{p+i}, v{p+i}, v{WRD+i}')
        out.append('@wrd_done')
        out.append(f'v_cvt_pk_bf16_f32 v{MSG+2*t}, v{p}, v{p+1}')
        out.append(f'v_cvt_pk_bf16_f32 v{MSG+2*t+1}, v{p+2}, v{p+3}')
        out.append(f'v_cvt_pk_bf16_f32 v{MSG+16+2*t}, v{p+8}, v{p+9}')
        out.append(f'v_cvt_pk_bf16_f32 v{MSG+16+2*t+1}, v{p+10}, v{p+11}')
        tmps = [p, p + 8]
        for c in range(3):
            q = tmps[c & 1]
            v = V + 4 * c + 2 * t
            out += [f'v_lshlrev_b32 v{q}, 16, v{v}', f'v_and_b32 v{q+1}, {M}, v{v}',
                    f'v_lshlrev_b32 v{q+2}, 16, v{v+1}', f'v_and_b32 v{q+3}, {M}, v{v+1}']
            out += [f'v_mul_f32 v{q+i}, v{q+i}, v{p+4+i}' for i in range(4)]
            out += [f'v_cvt_pk_bf16_f32 v{MSG+4+4*c+2*t}, v{q}, v{q+1}',
                    f'v_cvt_pk_bf16_f32 v{MSG+4+4*c+2*t+1}, v{q+2}, v{q+3}']
        return out
    va = valu_half(0)
    mf = []
    for s in range(4):
        g = gemm(1, s)
        mf += [(s, x) for x in g]
    vi = 0
    first = True
    for k, (s, m) in enumerate(mf):
        a(m)
        if k >= 2:
            for _ in range(4):
                if vi < len(va):
                    if va[vi] == '@wrd_done':
                        vi += 1
                        a('s_waitcnt lgkmcnt(9)')
                    a(va[vi]); vi += 1
    for m in wf(1):
        a(m)
    while vi < len(va):
        if va[vi] != '@wrd_done':
            a(va[vi])
        vi += 1
    for s in range(4):
        a(f'v_xor_b32 v{vAH+s}, s{sX}, v{vAH+s}')
    a(f'''
    v_xor_b32 v{vAV}, s{sX}, v{vAV}
    v_add_u32 v{vAR}, 1024, v{vAR}
    v_add_u32 v{vAS}, 320, v{vAS}
    v_add_u32 v{vBP}, 16, v{vBP}
    s_xor_b32 s{sX}, s{sX}, 0x10000
    s_waitcnt lgkmcnt(6)
    ''')
    for x_ in valu_half(1):
        if x_ != '@wrd_done':
            a(x_)
    a('s_waitcnt lgkmcnt(0)')
    a('kb_seg:')
    for i in range(4):
        a(f'v_pk_sub_u16 v{EQ+i}, v{SS[0]+i}, v{vKey}')
    for i in range(4):
        a(f'v_pk_sub_u16 v{EQ+i}, 1, v{EQ+i} op_sel_hi:[0,1] clamp')
    def sel(dst, k):
        for i in range(4):
            a(f'v_pk_mul_lo_u16 v{dst+i}, v{EQ+i}, v{SS[k]+i}')
    def sm(acc, msg, s_):
        a(f'v_mfma_f32_16x16x32_bf16 {vr(ACC+4*acc,4)}, {vr(MSG+4*msg,4)}, {vr(s_,4)}, {vr(ACC+4*acc,4)}')
    sel(SEL[0], 1)
    sel(SEL[1], 2)
    sm(0, 0, SEL[0])
    sm(1, 1, SEL[0])
    sel(SEL[2], 3)
    sm(2, 2, SEL[0])
    sm(3, 3, SEL[0])
    sm(1, 4, SEL[1])
    sel(SEL[0], 4)
    sm(2, 4, SEL[2])
    sm(3, 4, SEL[0])
    ST = PHI[0]
    a(f'''
    s_cmp_gt_u32 s{sGend}, s{sTe}
    s_cbranch_scc1 kb_next
    kb_flush:
    s_nop 6
    ''')
    for i in range(8):
        a(f'v_cvt_pk_bf16_f32 v{ST+i}, v{ACC+2*i}, v{ACC+2*i+1}')
    for b in range(4):
        a(f'buffer_store_dwordx2 {vr(ST+2*b,2)}, v{vOut}, {sr(S_OUT)}, 0 offen offset:{256*b}')
    a(f'''
    s_add_u32 s{sG}, s{sG}, 8
    s_add_u32 s{sStA}, s{sStA}, 1
    s_cmp_eq_u32 s{sG}, 56
    s_cbranch_scc1 kb_done
    s_set_gpr_idx_on s{sG}, 0x2
    s_nop 1
    ''')
    acc_init_static()
    a(f'''
    s_set_gpr_idx_off
    v_add_u32 v{vKey}, 0x00100010, v{vKey}
    v_add_u32 v{vOut}, 14336, v{vOut}
    s_lshr_b64 s[{sGP}:{sGP+1}], s[{sGP}:{sGP+1}], 9
    s_mov_b32 s{sGst}, s{sGend}
    s_and_b32 s{sGend}, s{sGP}, 0x1ff
    s_cmp_ge_u32 s{sGst}, s{sTe}
    s_cbranch_scc1 kb_next
    s_cmp_eq_u32 s{sGst}, s{sGend}
    s_cbranch_scc1 kb_flush
    s_branch kb_seg
    kb_next:
    s_cmp_ge_u32 s{sTe}, s{sTot}
    s_cbranch_scc1 kb_tail
    s_add_u32 s{sTe}, s{sTe}, 32
    s_add_u32 s{sT0}, s{sStA}, s{sStB}
    s_add_u32 s{sT0}, s{sT0}, s{sStC}
    s_mov_b32 s{sStC}, s{sStB}
    s_mov_b32 s{sStB}, s{sStA}
    s_mov_b32 s{sStA}, 0
    s_cmp_eq_u32 s{sT0}, 0
    s_cbranch_scc1 kb_w8
    s_cmp_eq_u32 s{sT0}, 1
    s_cbranch_scc1 kb_w12
    s_cmp_eq_u32 s{sT0}, 2
    s_cbranch_scc1 kb_w16
    s_waitcnt vmcnt(20)
    s_branch kb_loop
    kb_w16:
    s_waitcnt vmcnt(16)
    s_branch kb_loop
    kb_w12:
    s_waitcnt vmcnt(12)
    s_branch kb_loop
    kb_w8:
    s_waitcnt vmcnt(8)
    s_branch kb_loop
    kb_tail:
    s_mov_b32 s{sTe}, 0x7fffffff
    s_branch kb_flush
    ''')
    a(f'''
    kb_go_slow:
    s_mov_b32 s{sMode}, 1
    s_mov_b32 s{sI}, 0
    s_mov_b32 s{sQ}, 0
    s_mov_b32 s{sC}, -1
    s_mov_b32 s{sLen}, 0
    s_mov_b32 s{sBase}, 0
    s_branch kb_copy
    kb_empty:
    s_cmp_lg_u32 s{sMode}, 0
    s_cbranch_scc1 kb_done
    kb_copy:
    s_mov_b64 s[{sGP}:{sGP+1}], 0
    s_mov_b32 s{sG}, 0
    s_mov_b32 s{sGend}, 0
    s_mov_b32 s{sTot}, 0
    s_mov_b32 s{sStA}, 0
    s_waitcnt vmcnt(0)
    ''')
    acc_init_static()
    a(f'''
    s_branch kb_tail
    kb_done:
    s_waitcnt vmcnt(4)
    s_cmp_eq_u32 s{sMode}, 0
    s_cbranch_scc1 kb_exit
    s_waitcnt vmcnt(0) lgkmcnt(0)
    s_barrier
    v_and_b32 v{T+8}, 7, v0
    v_lshlrev_b32 v{T+8}, 2, v{T+8}
    v_add_u32 v{T+8}, {L_GCNT}, v{T+8}
    v_mov_b32 v{T+9}, 0
    ds_write_b32 v{T+8}, v{T+9}
    s_mov_b32 s{S_BASE}, s20
    s_mov_b32 s{S_BASE+1}, s21
    s_cmp_ge_u32 s{sI}, 7
    s_cbranch_scc1 kb_mode2
    v_lshrrev_b32 v{T+3}, 7, v0
    v_cmp_eq_u32 vcc, s{sQ}, v{T+3}
    s_mov_b64 s[{GE}:{GE+1}], vcc
    v_cmp_gt_u32 vcc, 391, v0
    s_and_b64 vcc, vcc, s[{GE}:{GE+1}]
    v_lshlrev_b32 v{T+4}, 5, v0
    v_mov_b32 v{T+5}, 0x40000000
    v_cndmask_b32 v{T+4}, v{T+5}, v{T+4}, vcc
    s_mul_i32 s{sT0}, s2, {CELL_WG_STRIDE}
    s_add_u32 s{sT0}, s{sT0}, {WS_CELL - WSO}
    v_add_u32 v{T+4}, s{sT0}, v{T+4}
    s_lshl_b32 s{sT1}, s{sI}, 2
    buffer_load_dword v{CE}, v{T+4}, {sr(S_WS)}, 0 offen
    buffer_load_dword v{CE+1}, v{T+4}, {sr(S_WS)}, s{sT1} offen offset:4
    s_waitcnt vmcnt(0)
    v_and_b32 v{CE}, 0xffff, v{CE}
    v_cmp_lt_u32 vcc, s{sI}, v{CE}
    v_cndmask_b32 v{CE}, 0, 1, vcc
    s_add_u32 s{sQ}, s{sQ}, 1
    s_lshr_b32 s{sT0}, s{sQ}, 2
    s_add_u32 s{sI}, s{sI}, s{sT0}
    s_and_b32 s{sQ}, s{sQ}, 3
    s_branch kb_round
    kb_mode2:
    s_cmp_lt_u32 s{sBase}, s{sLen}
    s_cbranch_scc1 kb_m2_go
    s_add_u32 s{sC}, s{sC}, 1
    s_cmp_ge_u32 s{sC}, 391
    s_cbranch_scc1 kb_exit
    s_mul_i32 s{sT0}, s2, {CELL_WG_STRIDE}
    s_lshl_b32 s{sT1}, s{sC}, 5
    s_add_u32 s{sT0}, s{sT0}, s{sT1}
    s_add_u32 s{sT0}, s{sT0}, {WS_CELL}
    s_load_dword s{sT1}, s[24:25], s{sT0}
    s_waitcnt lgkmcnt(0)
    s_and_b32 s{sT2}, s{sT1}, 0xffff
    s_lshr_b32 s{sLen}, s{sT1}, 16
    s_cmp_gt_u32 s{sT2}, 7
    s_cselect_b32 s{sLen}, s{sLen}, 0
    s_mov_b32 s{sBase}, 0
    s_branch kb_mode2
    kb_m2_go:
    v_add_u32 v{T+3}, s{sBase}, v0
    v_cmp_gt_u32 vcc, s{sLen}, v{T+3}
    s_mov_b64 s[{GE}:{GE+1}], vcc
    v_cmp_gt_u32 vcc, 128, v0
    s_and_b64 s[{GE}:{GE+1}], vcc, s[{GE}:{GE+1}]
    s_mov_b64 vcc, s[{GE}:{GE+1}]
    v_lshlrev_b32 v{T+4}, 2, v{T+3}
    v_mov_b32 v{T+5}, 0x40000000
    v_cndmask_b32 v{T+4}, v{T+5}, v{T+4}, vcc
    s_lshl_b32 s{sT0}, s{sC}, 12
    s_add_u32 s{sT0}, s{sT0}, {WS_OVF - WSO}
    v_add_u32 v{T+4}, s{sT0}, v{T+4}
    buffer_load_dword v{CE+1}, v{T+4}, {sr(S_WS)}, 0 offen
    s_waitcnt vmcnt(0)
    v_lshrrev_b32 v{T+3}, 24, v{CE+1}
    v_cmp_eq_u32 vcc, s2, v{T+3}
    s_and_b64 vcc, vcc, s[{GE}:{GE+1}]
    v_cndmask_b32 v{CE}, 0, 1, vcc
    s_add_u32 s{sBase}, s{sBase}, 128
    kb_round:
    ''')
    out_base()
    own_loads(' sc0 sc1')
    a(f'''
    s_waitcnt lgkmcnt(0)
    s_barrier
    s_branch kb_propose
    kb_exit:
    s_endpgm
    ''')
    return L_END
```

```python
import sys
from asmlib import Asm
from consts import *
import gen_ka
try:
    import gen_kb
except ImportError:
    gen_kb = None

def desc(name, v, s):
    v = (v + 8) // 8 * 8
    return f'''.p2align 6
.amdhsa_kernel {name}
  .amdhsa_next_free_vgpr {v}
  .amdhsa_next_free_sgpr {max(s + 1, 16)}
  .amdhsa_accum_offset {v}
  .amdhsa_group_segment_fixed_size 0
  .amdhsa_kernarg_size 88
  .amdhsa_user_sgpr_count 2
  .amdhsa_user_sgpr_kernarg_segment_ptr 1
  .amdhsa_system_sgpr_workgroup_id_x 1
.end_amdhsa_kernel
'''

def build(out, opts=None):
    opts = opts or {}
    a = Asm(); gen_ka.gen_ka(a, opts)
    ta, va, sa, pa = a.finish()
    head = '; PaiNN message passing: edge binning + h table (ka), gather/MFMA/segment-sum (kb)\n'
    head += f'; @launch kernel=ka_kernel grid=({KA_GRID},1,1) block=(512,1,1) lds={KA_LDS}\n'
    body = ta
    descs = desc('ka_kernel', va, sa)
    print('ka v', va, 's', sa, 'hazards', pa)
    if gen_kb is not None:
        b = Asm(); lds = gen_kb.gen_kb(b, opts)
        tb, vb, sb, pb = b.finish()
        head += f'; @launch kernel=kb_kernel grid=(256,1,1) block=(512,1,1) lds={lds}\n'
        body += tb
        descs += desc('kb_kernel', vb, sb)
        print('kb v', vb, 's', sb, 'hazards', pb, 'lds', lds)
    else:
        head += '; @launch kernel=ka_kernel grid=(816,1,1) block=(256,1,1) lds=32768\n'
    txt = head + '.amdgcn_target "amdgcn-amd-amdhsa--gfx950"\n.text\n' + body + '.section .rodata,"a"\n' + descs
    import pads
    txt = pads.apply(txt)
    open(out, 'w').write(txt)

if __name__ == '__main__':
    out = sys.argv[1] if len(sys.argv) > 1 else 'k.s'
    opts = dict(x.split('=') for x in sys.argv[2:])
    build(out, opts)
```

```python
WS_H = 0
WS_W2P = 0x640000
WS_WRP = 0x660000
WS_CELL = 0x680000
NCHUNK = 128
CHUNK = 3128
CELL_WG_STRIDE = NCHUNK * 64
CELL_BYTES = 256 * CELL_WG_STRIDE
WS_OVF = 0xA00000
OVF_STRIDE = 12544
OVF_BYTES = NCHUNK * OVF_STRIDE
INL = 15
assert WS_CELL + CELL_BYTES <= WS_OVF
KA_LDS = 157696
KA_GRID = 256
```

```python
from consts import *

def srd(a, r, lo, hi, nbytes, off=0):
    if off:
        a(f'''s_add_u32 s{r}, s{lo}, {off}
              s_addc_u32 s{r+1}, s{hi}, 0''')
    else:
        a(f'''s_mov_b32 s{r}, s{lo}
              s_mov_b32 s{r+1}, s{hi}''')
    a(f'''s_mov_b32 s{r+2}, {nbytes}
          s_mov_b32 s{r+3}, 0x00020000''')

NP = 19
L_OVC = 1024
L_TAB = 2048
assert L_TAB + 8 * NP * 1024 <= KA_LDS

def gen_ka(a, opts={}):
    STAMP = opts.get('stampa')
    cnt = [0]
    def stamp(reset=False):
        if reset:
            cnt[0] = 1
        if STAMP:
            a(f'''s_memrealtime s[80:81]
                 s_waitcnt lgkmcnt(0)
                 v_writelane_b32 v160, s80, {cnt[0]}''')
            cnt[0] += 1
    def stamp_out():
        if STAMP:
            stamp()
            a('s_waitcnt vmcnt(0)')
            stamp()
            srd(a, 76, 20, 21, 0x100000, 0x1100000)
            a('''v_lshlrev_b32 v161, 2, v0
                 s_lshl_b32 s82, s2, 12
                 v_add_u32 v161, s82, v161
                 buffer_store_dword v160, v161, s[76:79], 0 offen''')
    a(f'''
    .globl ka_kernel
    .p2align 8
    .type ka_kernel,@function
    ka_kernel:
    s_load_dwordx16 s[4:19], s[0:1], 0
    s_load_dwordx2 s[20:21], s[0:1], 80
    ''')
    stamp()
    a(f'''
    s_cmp_ge_u32 s2, {KA_GRID}
    s_cbranch_scc1 ka_exit
    v_lshrrev_b32 v1, 6, v0
    v_readfirstlane_b32 s23, v1
    v_and_b32 v1, 63, v0
    s_lshr_b32 s62, s2, 4
    s_lshl_b32 s22, s62, 3
    s_and_b32 s3, s2, 7
    s_or_b32 s22, s22, s3
    s_bitcmp1_b32 s2, 3
    s_cbranch_scc1 ka_h
    ''')
    SV = [4, 5, 6, 7, 8, 9, 10]
    DV = [12, 13, 14, 15, 16, 17, 18]
    a(f"""
    s_mul_i32 s44, s22, {CHUNK*4}
    v_lshl_add_u32 v20, v0, 4, s44
    s_add_u32 s45, s44, {2048*4}
    v_lshl_add_u32 v21, v0, 3, s45
    s_add_u32 s45, s44, {3072*4}
    v_lshl_add_u32 v22, v0, 2, s45
    v_mov_b32 v2, 0x40000000
    v_cmp_gt_u32 vcc, {CHUNK-3072}, v0
    v_cndmask_b32 v22, v2, v22, vcc
    v_lshlrev_b32 v2, 4, v1
    s_mul_i32 s45, s23, {NP*1024}
    s_add_u32 s46, s45, {NP*1024}
    s_mul_i32 s47, s62, {NP}
    s_lshr_b32 s47, s47, 4
    s_lshl_b32 s47, s47, 10
    s_add_u32 s47, s47, s45
    s_waitcnt lgkmcnt(0)
    """)
    srd(a, 32, 6, 7, 150000)
    srd(a, 24, 8, 9, 1600000)
    srd(a, 28, 10, 11, 1600000)
    PRE = int(opts.get('pre', 2))
    for i in range(NP):
        if i == PRE:
            a("""
            buffer_load_dwordx4 v[4:7], v20, s[24:27], 0 offen
            buffer_load_dwordx4 v[12:15], v20, s[28:31], 0 offen
            buffer_load_dwordx2 v[8:9], v21, s[24:27], 0 offen
            buffer_load_dwordx2 v[16:17], v21, s[28:31], 0 offen
            buffer_load_dword v10, v22, s[24:27], 0 offen
            buffer_load_dword v18, v22, s[28:31], 0 offen
            s_barrier
            """)
        a(f"""s_add_u32 m0, s47, {L_TAB}
              buffer_load_dwordx4 v2, s[32:35], s47 offen lds""")
        if i < NP - 1:
            a(f"""s_add_u32 s47, s47, 1024
                  s_cmp_eq_u32 s47, s46
                  s_cselect_b32 s47, s45, s47""")
    stamp(True)
    a(f"""
    v_lshlrev_b32 v3, 2, v0
    v_mov_b32 v2, 4
    v_cmp_gt_u32 vcc, 256, v0
    v_cndmask_b32 v23, 0, v2, vcc
    ds_write_b32 v3, v23
    v_cmp_gt_u32 s[46:47], s26, v20
    v_cmp_gt_u32 s[54:55], s26, v21
    v_cmp_gt_u32 s[58:59], s26, v22
    s_mov_b64 s[48:49], s[46:47]
    s_mov_b64 s[50:51], s[46:47]
    s_mov_b64 s[52:53], s[46:47]
    s_mov_b64 s[56:57], s[54:55]
    """)
    srd(a, 36, 20, 21, CELL_BYTES, WS_CELL)
    srd(a, 40, 20, 21, OVF_BYTES, WS_OVF)
    a(f"""
    s_mov_b32 s44, 0xffff0000
    s_mov_b32 s45, 0x41c80000
    s_mov_b32 s64, 0x0000bf80
    s_mov_b32 s65, 0xbf800000
    s_movk_i32 s66, {L_TAB}
    s_waitcnt vmcnt({NP-PRE})
    """)
    stamp()
    REC = [64 + k for k in range(7)]
    CA = [80 + k for k in range(7)]
    AS = [88 + k for k in range(7)]
    AD = [96 + k for k in range(7)]
    RK = [104 + k for k in range(7)]
    PS = [24 + 2 * k for k in range(7)]
    PD = [40 + 2 * k for k in range(7)]
    MK = lambda k: f's[{46+2*k}:{47+2*k}]'
    UNAL = opts.get('unal', '0') == '1'
    for k in range(7):
        S, D = SV[k], DV[k]
        a(f"""
        v_mad_u32_u24 v{AS[k]}, v{S}, 6, s66
        v_mad_u32_u24 v{AD[k]}, v{D}, 6, s66
        v_and_b32 v{AS[k]}, -4, v{AS[k]}
        v_and_b32 v{AD[k]}, -4, v{AD[k]}""")
        a(f"""
        v_mul_u32_u24 v56, 10700, v{D}
        v_lshrrev_b32 v56, 20, v56
        v_lshlrev_b32 v{CA[k]}, 2, v56
        v_lshl_or_b32 v{REC[k]}, v{D}, 16, v{S}
        """)
    a("""
    s_waitcnt vmcnt(0) lgkmcnt(0)
    s_barrier
    """)
    stamp()
    a(f's_mov_b64 exec, {MK(6)}')
    for k in [6, 0, 1, 2, 3, 4, 5]:
        if UNAL:
            a(f"""ds_read_b64 v[{PS[k]}:{PS[k]+1}], v{AS[k]} offset:{L_TAB}
                  ds_read_b64 v[{PD[k]}:{PD[k]+1}], v{AD[k]} offset:{L_TAB}""")
        elif opts.get('b64'):
            a(f"""ds_read_b64 v[{PS[k]}:{PS[k]+1}], v{AS[k]}
                  ds_read_b64 v[{PD[k]}:{PD[k]+1}], v{AD[k]}""")
        else:
            a(f"""ds_read2_b32 v[{PS[k]}:{PS[k]+1}], v{AS[k]} offset1:1
                  ds_read2_b32 v[{PD[k]}:{PD[k]+1}], v{AD[k]} offset1:1""")
        if k == 6:
            a('s_mov_b64 exec, -1')
    if not UNAL:
        for k in range(7):
            a(f"""v_lshlrev_b32 v{SV[k]}, 4, v{SV[k]}
                  v_lshlrev_b32 v{DV[k]}, 4, v{DV[k]}""")
    order = [6, 0, 1, 2, 3, 4, 5]
    def fin(i):
        k = order[i]; t = 56 + 3 * (i & 1)
        a(f"""
        v_mul_f32 v{t}, v{t}, v{t}
        v_fmac_f32 v{t}, v{t+1}, v{t+1}
        v_fmac_f32 v{t}, v{t+2}, v{t+2}
        v_cmp_gt_f32 vcc, s45, v{t}
        s_and_b64 {MK(k)}, {MK(k)}, vcc
        """)
    for i, k in enumerate(order):
        ps, pd = PS[k], PD[k]
        t = 56 + 3 * (i & 1)
        a(f's_waitcnt lgkmcnt({12-2*i})')
        if not UNAL:
            a(f"""
            v_alignbit_b32 v{ps}, v{ps+1}, v{ps}, v{SV[k]}
            v_lshrrev_b32 v{ps+1}, v{SV[k]}, v{ps+1}
            v_alignbit_b32 v{pd}, v{pd+1}, v{pd}, v{DV[k]}
            v_lshrrev_b32 v{pd+1}, v{DV[k]}, v{pd+1}
            """)
        if i:
            fin(i - 1)
        a(f"""
        v_lshlrev_b32 v{t}, 16, v{ps}
        v_and_b32 v{t+1}, s44, v{ps}
        v_lshlrev_b32 v{t+2}, 16, v{ps+1}
        v_dot2_f32_bf16 v{t}, v{pd}, s64, v{t}
        v_dot2_f32_bf16 v{t+1}, v{pd}, s65, v{t+1}
        v_dot2_f32_bf16 v{t+2}, v{pd+1}, s64, v{t+2}
        """)
    fin(6)
    if STAMP == '4': stamp()
    for k in range(7):
        a(f"""s_mov_b64 exec, {MK(k)}
              ds_add_rtn_u32 v{RK[k]}, v{CA[k]}, v2""")
    a(f"""s_mov_b64 exec, -1
         v_and_b32 v3, -4, v0
         v_mov_b32 v12, {L_OVC}
         v_lshrrev_b32 v13, 2, v0
         v_and_b32 v14, 3, v0
         v_lshlrev_b32 v1, 2, v14
         v_lshl_or_b32 v1, v13, 6, v1
         v_add_u32 v1, {L_TAB}, v1
         v_add_u32 v19, 8192, v1
         v_lshlrev_b32 v13, 13, v13
         v_lshl_or_b32 v13, v14, 4, v13
         s_lshl_b32 s3, s22, 6
         v_add_u32 v13, s3, v13
         s_mov_b64 s[60:61], 0
         s_waitcnt lgkmcnt(0)
         s_barrier""")
    stamp()
    for k in range(7):
        a(f"""
        v_cmp_gt_u32 vcc, 64, v{RK[k]}
        v_lshl_add_u32 v{CA[k]}, v{CA[k]}, 4, v{RK[k]}
        s_and_b64 exec, vcc, {MK(k)}
        ds_write_b32 v{CA[k]}, v{REC[k]} offset:{L_TAB}
        s_andn2_b64 {MK(k)}, {MK(k)}, vcc
        s_or_b64 s[60:61], s[60:61], {MK(k)}
        s_mov_b64 exec, -1
        """)
    a(f"""
    s_cmp_eq_u64 s[60:61], 0
    s_cbranch_scc1 ka_e_noovf
    s_mul_i32 s3, s22, {OVF_STRIDE}
    """)
    for k in range(7):
        a(f"""
        s_mov_b64 exec, {MK(k)}
        ds_add_rtn_u32 v57, v12, v2
        s_waitcnt lgkmcnt(0)
        v_add_u32 v57, s3, v57
        buffer_store_dword v{REC[k]}, v57, s[40:43], 0 offen
        """)
    a(f"""
    s_mov_b64 exec, -1
    ka_e_noovf:
    v_cmp_eq_u32 vcc, 0, v14
    s_mov_b32 s3, {128*CELL_WG_STRIDE}
    s_waitcnt lgkmcnt(0)
    s_barrier
    """)
    stamp()
    a(f"""
    ds_read_b32 v16, v12
    ds_read2_b32 v[4:5], v1 offset1:4
    ds_read2_b32 v[6:7], v1 offset0:8 offset1:12
    ds_read_b32 v14, v3
    ds_read2_b32 v[8:9], v19 offset1:4
    ds_read2_b32 v[10:11], v19 offset0:8 offset1:12
    ds_read_b32 v15, v3 offset:512
    s_waitcnt lgkmcnt(3)
    v_lshl_or_b32 v14, v16, 14, v14
    v_cndmask_b32 v4, v4, v14, vcc
    buffer_store_dwordx4 v[4:7], v13, s[36:39], 0 offen
    s_waitcnt lgkmcnt(0)
    v_lshl_or_b32 v15, v16, 14, v15
    v_cndmask_b32 v8, v8, v15, vcc
    buffer_store_dwordx4 v[8:11], v13, s[36:39], s3 offen
    """)
    stamp_out()
    a('s_endpgm')
    a(f'''
    ka_h:
    v_lshrrev_b32 v2, 4, v1
    v_and_b32 v3, 15, v1
    s_cmp_ge_u32 s22, 112
    s_cbranch_scc1 ka_prep
    v_lshlrev_b32 v4, 2, v2
    v_xor_b32 v4, v4, v3
    v_lshlrev_b32 v4, 4, v4
    v_lshl_or_b32 v4, v2, 8, v4
    s_and_b32 s24, s23, 3
    s_lshl_b32 s24, s24, 13
    s_and_b32 s42, s62, 7
    s_lshl_b32 s42, s42, 10
    s_lshl_b32 s26, s23, 5
    s_mul_i32 s27, s22, 224
    s_add_u32 s26, s26, s27
    s_lshl_b32 s25, s23, 13
    s_add_u32 s25, s25, 32768
    v_xor_b32 v7, v2, v3
    v_lshlrev_b32 v7, 4, v7
    v_add_u32 v8, s26, v2
    v_lshl_or_b32 v7, v8, 10, v7
    s_waitcnt lgkmcnt(0)
    ''')
    srd(a, 28, 14, 15, 32768)
    srd(a, 32, 4, 5, 25600000)
    a('''s_or_b32 s3, s24, s42
         s_cmp_lt_u32 s23, 4
         s_cbranch_scc1 ka_hs0''')
    for i in range(7):
        a(f'''s_add_u32 s42, s42, 1024
              s_and_b32 s42, s42, 0x1fff
              s_or_b32 s3, s24, s42
              s_mov_b32 m0, s3
              buffer_load_dwordx4 v4, s[28:31], s3 offen lds''')
    a('''s_waitcnt vmcnt(0)
         s_barrier
         s_cmp_eq_u32 s23, 7
         s_cbranch_scc1 ka_exit
         s_branch ka_hs
         ka_hs0:
         s_mov_b32 m0, s3
         buffer_load_dwordx4 v4, s[28:31], s3 offen lds
         ka_hs:''')
    for i in range(8):
        a(f'''v_xor_b32 v{16+i}, {((4*i) & 15) << 4}, v7
              s_add_u32 m0, s25, {1024*i}
              s_movk_i32 s3, {4096*i}
              buffer_load_dwordx4 v{16+i}, s[32:35], s3 offen lds''')
    srd(a, 36, 20, 21, 6400000, WS_H)
    a(f'''
    v_lshrrev_b32 v6, 5, v1
    v_bfe_u32 v8, v1, 2, 2
    v_and_b32 v9, 1, v1
    v_lshlrev_b32 v9, 5, v9
    v_and_b32 v10, 1, v2
    v_lshl_or_b32 v9, v10, 4, v9
    v_bfe_u32 v10, v1, 1, 1
    v_lshl_or_b32 v9, v10, 3, v9
    v_lshlrev_b32 v10, 6, v8
    v_xor_b32 v9, v9, v10
    v_lshl_add_u32 v10, v6, 3, v8
    v_lshl_or_b32 v11, v10, 8, v9
    v_xor_b32 v12, 64, v11
    v_xor_b32 v13, 0x80, v11
    v_xor_b32 v14, 0xc0, v11
    v_and_b32 v5, 31, v1
    v_xor_b32 v15, v6, v3
    v_lshlrev_b32 v15, 4, v15
    v_lshl_or_b32 v15, v5, 8, v15
    v_add_u32 v15, s25, v15
    v_add_u32 v5, s26, v5
    v_lshlrev_b32 v5, 8, v5
    v_lshl_or_b32 v5, v6, 5, v5
    s_mov_b32 s40, 0xbfb8aa3b
    s_mov_b32 s41, 0xbfb8aa3b
    ''')
    stamp(True)
    a('''
    s_cmp_ge_u32 s23, 4
    s_cbranch_scc1 ka_hnb
    s_waitcnt vmcnt(8)
    s_barrier
    ka_hnb:
    ''')
    stamp()
    BF = 16
    AF = 48
    ACC = [80, 96]
    TM = 112
    OUT = 128
    def rdA(j):
        mt, s = j >> 3, j & 7
        b = AF + 4 * (j % 8)
        for u in range(2):
            a(f'ds_read_b64_tr_b16 v[{b+2*u}:{b+2*u+1}], v{11+mt} offset:{s*4096+u*1024}')
    for j in range(3):
        rdA(j)
    a('s_waitcnt vmcnt(0)')
    stamp()
    for s in range(8):
        if s:
            a(f'v_xor_b32 v{TM+s}, {32*s}, v15')
        a(f'ds_read_b128 v[{BF+4*s}:{BF+4*s+3}], v{TM+s if s else 15}')
    def silu(mt):
        A = ACC[mt & 1]
        o = OUT + 8 * (mt & 1)
        out = []
        for h in range(2):
            r = range(4 * h, 4 * h + 4)
            out += [f'v_pk_mul_f32 v[{TM+2*i}:{TM+2*i+1}], v[{A+2*i}:{A+2*i+1}], s[40:41]' for i in r]
            out += [f'v_exp_f32 v{TM+i}, v{TM+i}' for i in range(8 * h, 8 * h + 8)]
            out += [f'v_pk_add_f32 v[{TM+2*i}:{TM+2*i+1}], v[{TM+2*i}:{TM+2*i+1}], 1.0 op_sel_hi:[1,0]' for i in r]
            out += [f'v_rcp_f32 v{TM+i}, v{TM+i}' for i in range(8 * h, 8 * h + 8)]
            out += [f'v_pk_mul_f32 v[{TM+2*i}:{TM+2*i+1}], v[{TM+2*i}:{TM+2*i+1}], v[{A+2*i}:{A+2*i+1}]' for i in r]
            out += [f'v_cvt_pk_bf16_f32 v{o+i}, v{TM+2*i}, v{TM+2*i+1}' for i in r]
            out += [f'buffer_store_dwordx4 v[{o+4*h}:{o+4*h+3}], v5, s[36:39], 0 offen offset:{64*mt+16*h}']
        return out
    pend = []
    q = ['A0', 'A0', 'A1', 'A1', 'A2', 'A2'] + [f'B{s}' for s in range(8)]
    nextA = 3
    for j in range(32):
        mt, s = j >> 3, j & 7
        while nextA < 32 and nextA <= j + 5 and len(q) <= 13:
            rdA(nextA); q += [f'A{nextA}'] * 2; nextA += 1
        need = [i for i, t in enumerate(q) if t == f'A{j}' or (mt == 0 and t == f'B{s}')]
        if need:
            last = max(need)
            a(f's_waitcnt lgkmcnt({len(q) - 1 - last})')
            q = q[last + 1:]
        b = AF + 4 * (j % 8)
        A = ACC[mt & 1]
        c = '0' if s == 0 else f'v[{A}:{A+15}]'
        a(f'v_mfma_f32_32x32x16_bf16 v[{A}:{A+15}], v[{b}:{b+3}], v[{BF+4*s}:{BF+4*s+3}], {c}')
        if s == 1 and mt > 0:
            pend = silu(mt - 1)
        if pend and s >= 1:
            n = (len(pend) + (7 - s)) // (8 - s)
            for x in pend[:n]:
                a(x)
            pend = pend[n:]
    stamp()
    for x in silu(3):
        a(x)
    stamp_out()
    a('s_endpgm')
    a(f'''
    ka_prep:
    s_sub_u32 s24, s22, 112
    s_lshl_b32 s24, s24, 3
    s_add_u32 s24, s24, s23
    s_waitcnt lgkmcnt(0)
    s_cmp_ge_u32 s24, 120
    s_cbranch_scc1 ka_exit
    s_cmp_ge_u32 s24, 96
    s_cbranch_scc1 ka_prep_wr
    s_lshr_b32 s25, s24, 2
    s_and_b32 s26, s24, 3
    s_mul_i32 s27, s25, 0x5556
    s_lshr_b32 s27, s27, 16
    s_mul_i32 s3, s27, 3
    s_sub_u32 s3, s25, s3
    s_lshl_b32 s27, s27, 5
    s_lshl_b32 s3, s3, 8
    s_add_u32 s27, s27, s3
    s_mul_i32 s26, s26, {32*768}
    s_add_u32 s27, s27, s26
    v_mul_u32_u24 v4, {8*768}, v2
    v_lshl_add_u32 v4, v3, 1, v4
    v_add_u32 v4, s27, v4
    s_lshl_b32 s3, s24, 10
    v_lshlrev_b32 v5, 4, v1
    v_add_u32 v5, s3, v5
    v_add_u32 v6, {4*768}, v4
    ''')
    srd(a, 40, 16, 17, 98304)
    srd(a, 44, 20, 21, 98304, WS_W2P)
    for j in range(8):
        a(f'buffer_load_ushort v{12+j}, v{4 if j < 4 else 6}, s[40:43], 0 offen offset:{768*(j&3)}')
    a('s_waitcnt vmcnt(0)')
    for j in range(4):
        a(f'v_lshl_or_b32 v{8+j}, v{13+2*j}, 16, v{12+2*j}')
    a(f'''
    buffer_store_dwordx4 v[8:11], v5, s[44:47], 0 offen
    s_endpgm
    ka_prep_wr:
    s_sub_u32 s25, s24, 96
    s_mul_i32 s27, s25, 0x5556
    s_lshr_b32 s27, s27, 16
    s_mul_i32 s3, s27, 3
    s_sub_u32 s3, s25, s3
    s_lshl_b32 s27, s27, 5
    s_lshl_b32 s3, s3, 8
    s_add_u32 s27, s27, s3
    v_mul_u32_u24 v4, {4*768}, v2
    v_lshl_add_u32 v4, v3, 1, v4
    v_add_u32 v4, s27, v4
    s_lshl_b32 s3, s25, 9
    v_lshlrev_b32 v5, 3, v1
    v_add_u32 v5, s3, v5
    ''')
    srd(a, 40, 18, 19, 12288)
    srd(a, 44, 20, 21, 12288, WS_WRP)
    for j in range(4):
        a(f'buffer_load_ushort v{12+j}, v4, s[40:43], 0 offen offset:{768*j}')
    a('s_waitcnt vmcnt(0)')
    for j in range(2):
        a(f'v_lshl_or_b32 v{8+j}, v{13+2*j}, 16, v{12+2*j}')
    a(f'''
    buffer_store_dwordx2 v[8:9], v5, s[44:47], 0 offen
    ka_exit:
    s_endpgm
    ''')
```

```python
from consts import *
from gen_ka import srd

L_RING = 0
L_TMP = 131072
L_GCNT = L_TMP + 3584
L_RBF = L_GCNT + 64
L_META = L_RBF + 16384
L_END = L_META + 16 * 512
assert L_RBF % 16 == 0 and L_META % 16 == 0 and L_END <= 163840
LISTCAP = 416
PADSRC = 0x100000

class RA:
    def __init__(self, start=1):
        self.n = start
    def __call__(self, k=1, align=1):
        self.n = (self.n + align - 1) // align * align
        r = self.n
        self.n += k
        return r

def vr(b, k):
    return f'v[{b}:{b+k-1}]'

def gen_kb(a, opts):
    R = RA(1)
    vSwzH, vSwzV, vAV, vAR, vAS, vBP, vKey, vOut, vSrc, vSrcB, vOH, vOV, vOne, vOwnA, vStamp = [R() for _ in range(15)]
    vAH = R(4)
    W2 = R(48, 4); WR = R(6, 2); RBF = R(4, 2)
    OWN = R(56, 2); ACC = R(16, 4)
    PHI = [R(12, 4), R(12, 4)]; WRD = R(12, 4)
    HA = R(16, 4); HB = R(16, 4)
    V = R(24, 4)
    assert R.n <= 256, R.n
    RR = [HA, HB]
    DL = HA + 12; SEL = HB + 12
    MSG = [RBF, WRD, WRD + 4, WRD + 8]
    S_SV, S_OUT, S_H, S_POS, S_WS, S_BASE = 28, 32, 36, 40, 44, 48
    sW, sMask, sNode0, sMode, sI, sQ, sC, sLen, sBase = 52, 53, 54, 55, 26, 27, 3, 88, 89
    FR = 64
    GE = 80
    sGP = 90
    sTot, sTe, sGend, sGst, sG, sStA, sStB, sStC, sDma, sX = 92, 93, 94, 95, 96, 97, 98, 99, 100, 101
    s256, s512, s768 = 56, 57, 58
    sT0, sT1, sT2, sT3 = 59, 60, 61, 62
    sOk, sOwnN, sK8, sNeg, sGC, sTM = 8, 9, 10, 11, 14, 15
    WSO = WS_W2P
    sr = lambda b: f's[{b}:{b+3}]'
    M = f's{sMask}'
    STAMP = opts.get('stamp')
    def stamp():
        if STAMP:
            a(f'''{"s_memtime" if STAMP == "2" else "s_memrealtime"} s[22:23]
                 s_waitcnt lgkmcnt(0)
                 s_mov_b32 m0, s63
                 s_nop 1
                 v_writelane_b32 v{vStamp}, s22, m0
                 s_add_u32 s63, s63, 1
                 s_min_u32 s63, s63, 63''')
    a(f'''
    .globl kb_kernel
    .p2align 8
    .type kb_kernel,@function
    kb_kernel:
    s_cmp_ge_u32 s2, 256
    s_cbranch_scc1 kb_exit
    s_load_dwordx2 s[24:25], s[0:1], 80
    s_load_dwordx4 s[4:7], s[0:1], 0
    s_load_dwordx2 s[20:21], s[0:1], 64
    s_load_dwordx2 s[12:13], s[0:1], 32
    ''')
    T = PHI[0]
    U = HA
    CE = V
    tL, tN, tG = T, T + 1, T + 2
    def out_base():
        a(f'''
        v_and_b32 v{tN}, 15, v0
        v_bfe_u32 v{tG}, v0, 4, 2
        v_add_u32 v{T+10}, s{sNode0}, v{tN}
        v_lshlrev_b32 v{T+10}, 10, v{T+10}
        v_lshl_add_u32 v{T+10}, v{tG}, 3, v{T+10}
        s_lshl_b32 s{sT3}, s{sW}, 5
        v_add_u32 v{T+10}, s{sT3}, v{T+10}
        v_mov_b32 v{T+11}, 0x40000000
        v_cmp_gt_u32 vcc, 14, v{tN}
        v_cndmask_b32 v{vOut}, v{T+11}, v{T+10}, vcc
        v_mov_b32 v{vOwnA}, v{vOut}
        ''')
    def own_load(j, flags=''):
        a(f's_mov_b32 s{sT3}, {14336*j}')
        for b in range(4):
            a(f'buffer_load_dwordx2 {vr(OWN+8*j+2*b,2)}, v{vOwnA}, {sr(S_BASE)}, s{sT3} offen offset:{256*b}{flags}')
    a(f'''
    v_lshrrev_b32 v{T+3}, 6, v0
    v_readfirstlane_b32 s{sW}, v{T+3}
    s_lshl_b32 s{sT0}, s2, 13
    s_add_u32 s{sT0}, s{sT0}, {WS_CELL - WSO}
    v_lshl_add_u32 v{T+4}, v0, 4, s{sT0}
    s_mul_i32 s{sNode0}, s2, 98
    s_mov_b32 s63, 0
    ''')
    out_base()
    a('s_waitcnt lgkmcnt(0)')
    stamp()
    srd(a, S_WS, 24, 25, WS_OVF + OVF_BYTES - WSO, WSO)
    a(f'''
    buffer_load_dwordx4 {vr(CE,4)}, v{T+4}, {sr(S_WS)}, 0 offen
    s_load_dwordx8 s[{FR}:{FR+7}], s[12:13], 0
    ''')
    srd(a, S_BASE, 4, 5, 25600000)
    a(f'''
    v_and_b32 v{T+8}, 7, v0
    v_lshlrev_b32 v{T+8}, 2, v{T+8}
    v_add_u32 v{T+8}, {L_GCNT}, v{T+8}
    v_mov_b32 v{T+9}, 0
    ds_write_b32 v{T+8}, v{T+9}
    s_waitcnt lgkmcnt(0)
    s_barrier
    ''')
    NPRE = int(opts.get('npre', 4))
    for j in range(NPRE):
        own_load(j)
    srd(a, S_SV, 4, 5, 25600000)
    srd(a, S_OUT, 20, 21, 25600000)
    srd(a, S_H, 24, 25, 6400000, WS_H)
    srd(a, S_POS, 6, 7, 150000)
    a(f'''
    s_mov_b32 s{sMask}, 0xffff0000
    s_mov_b32 s{sMode}, 0
    s_movk_i32 s{s256}, 256
    s_movk_i32 s{s512}, 512
    s_movk_i32 s{s768}, 768
    s_mov_b32 s{sK8}, 0x80008000
    s_mul_i32 s{sNeg}, s2, {-147*98}
    s_mov_b32 s{sGC}, {L_GCNT}
    s_mov_b32 s{sTM}, {L_TMP}
    s_mov_b32 s{sOk}, {32*(NPRE-1)}
    s_mov_b32 s{sOwnN}, {NPRE}
    v_mov_b32 v{vOne}, 0x3f803f80
    s_lshr_b32 s{sT0}, s{sW}, 1
    s_lshl_b32 s{sT1}, s{sT0}, 2
    v_add_u32 v{T+3}, s{sT1}, v{tG}
    v_xor_b32 v{T+3}, v{T+3}, v{tN}
    v_lshlrev_b32 v{vSwzH}, 4, v{T+3}
    v_and_b32 v{T+3}, 1, v{tG}
    v_lshl_or_b32 v{T+3}, v{T+3}, 1, s{sT1}
    v_xor_b32 v{T+3}, v{T+3}, v{tN}
    v_lshlrev_b32 v{vSwzV}, 4, v{T+3}
    v_and_b32 v{T+5}, 3, v0
    v_lshlrev_b32 v{T+5}, 2, v{T+5}
    v_cmp_ne_u32 s[{GE+2}:{GE+3}], 0, v{T+5}
    ''')
    for k in range(7, -1, -1):
        a(f'''s_and_b32 s{FR+2*k+1}, s{FR+k}, s{sMask}
              s_lshl_b32 s{FR+2*k}, s{FR+k}, 16''')
    stamp()
    a(f'''
    s_waitcnt vmcnt({4*NPRE})
    v_and_b32 v{CE+4}, 0xffff, v{CE}
    v_mov_b32_dpp v{CE+4}, v{CE+4} quad_perm:[0,0,0,0] row_mask:0xf bank_mask:0xf
    v_sub_u32 v{CE+5}, v{CE+4}, v{T+5}
    v_cmp_lt_i32 vcc, 0, v{CE+5}
    s_and_b64 s[{GE}:{GE+1}], vcc, s[{GE+2}:{GE+3}]
    v_cmp_lt_i32 s[{GE+2}:{GE+3}], 16, v{CE+5}
    kb_propose:
    v_mov_b32 v{T+9}, 1
    v_mov_b32 v{CE+6}, 147
    v_and_b32 v{tL}, 63, v0
    v_lshlrev_b32 v{CE+7}, 4, v{tL}
    v_lshlrev_b32 v{CE+8}, 3, v{tL}
    s_mul_i32 s{sT1}, s{sW}, 12288
    s_mul_i32 s{sT2}, s{sW}, 1536
    s_add_u32 s{sT2}, s{sT2}, {WS_WRP - WSO}
    ''')
    stamp()
    wq = [('w', i) for i in range(12)] + [('r', b) for b in range(3)]
    def wload(n):
        for _ in range(n):
            if not wq:
                return
            k, i = wq.pop(0)
            if k == 'w':
                if i % 4 == 0 and i:
                    a(f's_add_u32 s{sT1}, s{sT1}, 4096')
                a(f'buffer_load_dwordx4 {vr(W2+4*i,4)}, v{CE+7}, {sr(S_WS)}, s{sT1} offen offset:{1024*(i%4)}')
            else:
                a(f'buffer_load_dwordx2 {vr(WR+2*i,2)}, v{CE+8}, {sr(S_WS)}, s{sT2} offen offset:{512*i}')
    def prop(lo, nw):
        for q in range(2):
            a(f'''
            v_lshrrev_b32 v{U+q}, 16, v{CE+lo+q}
            v_mad_u32_u24 v{U+q}, v{U+q}, v{CE+6}, s{sNeg}
            v_lshrrev_b32 v{U+q}, 11, v{U+q}
            v_lshl_add_u32 v{U+4+q}, v{U+q}, 2, s{sGC}
            ''')
        for q in range(2):
            a(f'''s_mov_b64 exec, s[{GE+2*q}:{GE+2*q+1}]
                  ds_add_rtn_u32 v{U+8+q}, v{U+4+q}, v{T+9}''')
        a('s_mov_b64 exec, -1')
        for q in range(2):
            a(f'v_lshl_add_u32 v{U+q}, v{U+q}, 9, s{sTM}')
        wload(nw)
        a('s_waitcnt lgkmcnt(0)')
        for q in range(2):
            a(f'''v_min_u32 v{U+8+q}, 0x7f, v{U+8+q}
                  v_lshl_add_u32 v{U+q}, v{U+8+q}, 2, v{U+q}''')
        for q in range(2):
            a(f'''s_mov_b64 exec, s[{GE+2*q}:{GE+2*q+1}]
                  ds_write_b32 v{U+q}, v{CE+lo+q}''')
        a('s_mov_b64 exec, -1')
    W1N, W2N, W3N = [int(x) for x in opts.get('wsplit', '4,4,4').split(',')]
    prop(0, W1N)
    a(f'''
    v_cmp_lt_u32 vcc, 32, v{CE+4}
    s_cbranch_vccz kb_prop_done
    v_cmp_lt_i32 s[{GE}:{GE+1}], 32, v{CE+5}
    v_cmp_lt_i32 s[{GE+2}:{GE+3}], 48, v{CE+5}
    ''')
    prop(2, 0)
    a(f'''
    v_cmp_lt_u32 vcc, 64, v{CE+4}
    v_mov_b32 v{U}, {L_GCNT + 28}
    s_mov_b64 exec, vcc
    ds_add_u32 v{U}, v{T+9}
    s_mov_b64 exec, -1
    kb_prop_done:
    v_mov_b32 v{U}, {L_GCNT}
    s_waitcnt lgkmcnt(0)
    s_barrier
    ds_read_b128 {vr(U+4,4)}, v{U}
    ds_read_b128 {vr(U+8,4)}, v{U} offset:16
    ''')
    wload(W2N)
    tP = T + 3
    a(f'''
    v_and_b32 v{tN}, 15, v0
    v_bfe_u32 v{tG}, v0, 4, 2
    v_lshrrev_b32 v{T+4}, 2, v{tL}
    v_and_b32 v{T+5}, 3, v{tL}
    s_lshl_b32 s{sT0}, s{sW}, 2
    v_add_u32 v{T+6}, s{sT0}, v{T+5}
    v_lshl_add_u32 v{tP}, v{T+4}, 5, v{T+6}
    v_lshl_add_u32 v{T+7}, v{tP}, 2, s{sTM}
    s_waitcnt lgkmcnt(0)
    ''')
    stamp()
    for j in range(8):
        a(f'v_readfirstlane_b32 s{GE+j}, v{U+4+j}')
    sA, sB, sD = sStA, sStB, sStC
    a(f'''
    s_max_u32 s{sA}, s{GE}, s{GE+1}
    s_max_u32 s{sB}, s{GE+2}, s{GE+3}
    s_max_u32 s{sD}, s{GE+4}, s{GE+5}
    s_max_u32 s{sA}, s{sA}, s{GE+6}
    s_max_u32 s{sB}, s{sB}, s{sD}
    s_max_u32 s{sA}, s{sA}, s{sB}
    s_mov_b32 s{sTot}, 0
    ''')
    for j in range(7):
        a(f's_add_u32 s{sTot}, s{sTot}, s{GE+j}')
        if j < 6:
            a(f'''s_lshl_b32 s{sB}, s{GE+j}, 2
                  s_sub_u32 s{sB}, 512, s{sB}
                  v_cmpx_le_u32 vcc, s{sTot}, v{tP}
                  v_add_u32 v{T+7}, s{sB}, v{T+7}''')
        a(f's_mov_b32 s{GE+j}, s{sTot}')
    a(f'''
    s_mov_b64 exec, -1
    ds_read_b32 v{T+8}, v{T+7}
    ''')
    wload(W3N)
    a(f'''
    s_cmp_gt_u32 s{sA}, 128
    s_cselect_b32 s{GE+7}, 1, s{GE+7}
    s_cmp_gt_u32 s{sTot}, {LISTCAP}
    s_cselect_b32 s{GE+7}, 1, s{GE+7}
    s_cmp_lg_u32 s{GE+7}, 0
    s_cbranch_scc1 kb_go_slow
    s_cmp_eq_u32 s{sTot}, 0
    s_cbranch_scc1 kb_empty
    ''')
    a(f'''
    s_lshl_b32 s{sT0}, s{GE+1}, 9
    s_or_b32 s{sGP}, s{GE}, s{sT0}
    s_lshl_b32 s{sT0}, s{GE+2}, 18
    s_or_b32 s{sGP}, s{sGP}, s{sT0}
    s_lshl_b32 s{sT0}, s{GE+3}, 27
    s_or_b32 s{sGP}, s{sGP}, s{sT0}
    s_lshr_b32 s{sGP+1}, s{GE+3}, 5
    s_lshl_b32 s{sT0}, s{GE+4}, 4
    s_or_b32 s{sGP+1}, s{sGP+1}, s{sT0}
    s_lshl_b32 s{sT0}, s{GE+5}, 13
    s_or_b32 s{sGP+1}, s{sGP+1}, s{sT0}
    s_lshl_b32 s{sT0}, s{GE+6}, 22
    s_or_b32 s{sGP+1}, s{sGP+1}, s{sT0}
    v_cmp_gt_u32 vcc, s{sTot}, v{tP}
    v_mov_b32 v{T+9}, {PADSRC}
    v_mov_b32 v{T+10}, 0x3fff
    v_lshlrev_b32 v{vBP}, 2, v{tG}
    s_waitcnt lgkmcnt(0)
    v_and_b32 v{T+11}, 0xffff, v{T+8}
    v_lshrrev_b32 v{T+12}, 16, v{T+8}
    v_cndmask_b32 v{vSrc}, v{T+9}, v{T+11}, vcc
    v_cndmask_b32 v{T+13}, v{T+9}, v{T+12}, vcc
    ds_bpermute_b32 v{U}, v{vBP}, v{vSrc}
    ds_bpermute_b32 v{U+1}, v{vBP}, v{vSrc} offset:16
    ds_bpermute_b32 v{U+2}, v{vBP}, v{vSrc} offset:32
    ds_bpermute_b32 v{vSrcB}, v{vBP}, v{vSrc} offset:48
    v_add_u32 v{vBP}, 64, v{vBP}
    v_mul_u32_u24 v{T+14}, 6, v{vSrc}
    v_and_b32 v{T+14}, -4, v{T+14}
    v_mul_u32_u24 v{T+15}, 6, v{T+13}
    v_and_b32 v{T+15}, -4, v{T+15}
    ''')
    wload(15)
    a(f'''
    buffer_load_dwordx2 {vr(T+16,2)}, v{T+14}, {sr(S_POS)}, 0 offen
    buffer_load_dwordx2 {vr(T+18,2)}, v{T+15}, {sr(S_POS)}, 0 offen
    v_subrev_u32 v{T+12}, s{sNode0}, v{T+12}
    v_cndmask_b32 v{T+10}, v{T+10}, v{T+12}, vcc
    v_lshlrev_b32 v{T+10}, 1, v{T+10}
    s_lshl_b32 s{sDma}, s{sW}, 12
    s_waitcnt lgkmcnt(1)
    ''')
    def dma(srcb):
        if opts.get('fakesrc'):
            a(f'v_and_b32 v{srcb}, {opts["fakesrc"]}, v{srcb}')
        a(f'''
        v_lshl_add_u32 v{vOH}, v{srcb}, 8, v{vSwzH}
        v_lshl_add_u32 v{vOV}, v{srcb}, 10, v{vSwzV}
        s_mov_b32 m0, s{sDma}
        buffer_load_dwordx4 v{vOH}, {sr(S_H)}, 0 offen lds
        s_add_u32 m0, s{sDma}, 1024
        buffer_load_dwordx4 v{vOV}, {sr(S_SV)}, s{s256} offen lds
        s_add_u32 m0, s{sDma}, 2048
        buffer_load_dwordx4 v{vOV}, {sr(S_SV)}, s{s512} offen lds
        s_add_u32 m0, s{sDma}, 3072
        buffer_load_dwordx4 v{vOV}, {sr(S_SV)}, s{s768} offen lds
        s_add_u32 s{sDma}, s{sDma}, 0x8000
        s_and_b32 s{sDma}, s{sDma}, 0x1ffff
        ''')
    for i in range(3):
        dma(U + i)
    stamp()
    a(f'''
    v_lshrrev_b32 v{U}, 2, v{tN}
    v_lshlrev_b32 v{U}, 13, v{U}
    v_and_b32 v{U+1}, 3, v{tN}
    v_lshl_or_b32 v{U}, v{U+1}, 8, v{U}
    v_xor_b32 v{U+1}, v{tG}, v{tN}
    ''')
    for s in range(4):
        a(f'''v_xor_b32 v{U+2}, {4*s}, v{U+1}
              v_lshl_or_b32 v{vAH+s}, v{U+2}, 4, v{U}''')
    a(f'''
    v_bfe_u32 v{U}, v{tL}, 3, 1
    v_lshl_or_b32 v{U+1}, v{tG}, 1, v{U}
    v_xor_b32 v{U+1}, s{sW}, v{U+1}
    v_lshlrev_b32 v{U+1}, 5, v{U+1}
    v_lshl_or_b32 v{U+1}, v{U}, 8, v{U+1}
    v_lshl_or_b32 v{U+1}, v{tG}, 13, v{U+1}
    v_lshl_or_b32 v{U+1}, v{T+5}, 3, v{U+1}
    v_and_b32 v{U+2}, 4, v{tL}
    v_xor_b32 v{U+2}, 4, v{U+2}
    v_lshl_or_b32 v{vAV}, v{U+2}, 18, v{U+1}
    v_lshlrev_b32 v{vAR}, 3, v{tL}
    v_add_u32 v{vAR}, {L_RBF}, v{vAR}
    v_lshlrev_b32 v{vAS}, 5, v{tG}
    v_add_u32 v{vAS}, {L_META}, v{vAS}
    v_lshlrev_b32 v{vKey}, 1, v{tN}
    v_lshl_or_b32 v{vKey}, v{vKey}, 16, v{vKey}
    ''')
    tWR, tWS, tWD = T + 20, T + 21, T + 22
    a(f'''
    s_and_b32 s{sT0}, s{sW}, 1
    s_lshl_b32 s{sT2}, s{sT0}, 3
    s_lshl_b32 s{sT0}, s{sT0}, 9
    s_lshr_b32 s{sT1}, s{sW}, 1
    s_lshl_b32 s{sT1}, s{sT1}, 5
    s_add_u32 s{sT2}, s{sT2}, s{sT1}
    s_add_u32 s{sT2}, s{sT2}, {L_META + 384}
    s_add_u32 s{sT0}, s{sT0}, s{sT1}
    s_add_u32 s{sT0}, s{sT0}, {L_RBF}
    v_lshlrev_b32 v{tWR}, 10, v{T+4}
    v_lshl_add_u32 v{tWR}, v{T+5}, 3, v{tWR}
    v_add_u32 v{tWR}, s{sT0}, v{tWR}
    v_lshlrev_b32 v{tWS}, 9, v{T+4}
    v_lshl_add_u32 v{tWD}, v{T+5}, 1, v{tWS}
    v_add_u32 v{tWD}, s{sT2}, v{tWD}
    v_lshl_add_u32 v{tWS}, v{T+6}, 2, v{tWS}
    v_add_u32 v{tWS}, {L_META}, v{tWS}
    ds_write_b16 v{tWD}, v{T+10}
    v_lshlrev_b32 v{T+14}, 4, v{vSrc}
    v_lshlrev_b32 v{T+15}, 4, v{T+13}
    s_waitcnt vmcnt(12)
    ''')
    stamp()
    x, y, z = U, U + 1, U + 2
    a(f'''
    v_alignbit_b32 v{U+8}, v{T+17}, v{T+16}, v{T+14}
    v_lshrrev_b32 v{U+9}, v{T+14}, v{T+17}
    v_alignbit_b32 v{U+10}, v{T+19}, v{T+18}, v{T+15}
    v_lshrrev_b32 v{U+11}, v{T+15}, v{T+19}
    v_lshlrev_b32 v{x}, 16, v{U+8}
    v_and_b32 v{y}, {M}, v{U+8}
    v_lshlrev_b32 v{z}, 16, v{U+9}
    v_lshlrev_b32 v{U+3}, 16, v{U+10}
    v_and_b32 v{U+4}, {M}, v{U+10}
    v_lshlrev_b32 v{U+5}, 16, v{U+11}
    v_sub_f32 v{x}, v{x}, v{U+3}
    v_sub_f32 v{y}, v{y}, v{U+4}
    v_sub_f32 v{z}, v{z}, v{U+5}
    v_cvt_pk_bf16_f32 v{x}, 0, v{x}
    v_cvt_pk_bf16_f32 v{y}, 0, v{y}
    v_cvt_pk_bf16_f32 v{z}, 0, v{z}
    v_mul_f32 v{U+3}, v{x}, v{x}
    v_mul_f32 v{U+4}, v{y}, v{y}
    v_mul_f32 v{U+5}, v{z}, v{z}
    v_cvt_pk_bf16_f32 v{U+3}, 0, v{U+3}
    v_cvt_pk_bf16_f32 v{U+4}, 0, v{U+4}
    v_cvt_pk_bf16_f32 v{U+5}, 0, v{U+5}
    v_add_f32 v{U+3}, v{U+3}, v{U+4}
    v_add_f32 v{U+3}, v{U+3}, v{U+5}
    v_cvt_pk_bf16_f32 v{U+3}, 0, v{U+3}
    v_add_f32 v{U+3}, 0x322bcc77, v{U+3}
    v_cvt_pk_bf16_f32 v{U+3}, 0, v{U+3}
    v_sqrt_f32 v{U+3}, v{U+3}
    v_cvt_pk_bf16_f32 v{U+3}, 0, v{U+3}
    v_rcp_f32 v{U+4}, v{U+3}
    ''')
    d, rd = U + 3, U + 4
    X = U + 12
    P = T + 24
    for k in range(16):
        a(f'v_mul_f32 v{X+k}, s{FR+k}, v{d}')
    a(f'''
    v_mul_f32 v{U+5}, 0x40490fdb, v{d}
    v_mul_f32 v{x}, v{x}, v{rd}
    v_cvt_pk_bf16_f32 v{U+5}, 0, v{U+5}
    v_mul_f32 v{y}, v{y}, v{rd}
    v_mul_f32 v{U+5}, 0x3e4ccccd, v{U+5}
    v_mul_f32 v{z}, v{z}, v{rd}
    v_cvt_pk_bf16_f32 v{U+5}, 0, v{U+5}
    v_cvt_pk_bf16_f32 v{x}, 0, v{x}
    v_mul_f32 v{U+5}, 0.15915494, v{U+5}
    v_cvt_pk_bf16_f32 v{y}, 0, v{y}
    v_cos_f32 v{U+5}, v{U+5}
    v_cvt_pk_bf16_f32 v{z}, 0, v{z}
    v_cvt_pk_bf16_f32 v{U+5}, 0, v{U+5}
    ds_write_b32 v{tWS}, v{x}
    v_add_f32 v{U+5}, 1.0, v{U+5}
    ds_write_b32 v{tWS}, v{y} offset:128
    v_cvt_pk_bf16_f32 v{U+5}, 0, v{U+5}
    ds_write_b32 v{tWS}, v{z} offset:256
    v_mul_f32 v{U+5}, 0.5, v{U+5}
    v_cmp_gt_f32 vcc, 0x40a00000, v{d}
    v_cndmask_b32 v{U+5}, 0, v{U+5}, vcc
    v_mul_f32 v{rd}, v{rd}, v{U+5}
    ''')
    for k in range(16):
        a(f'v_cvt_pk_bf16_f32 v{X+k}, 0, v{X+k}')
    for k in range(16):
        a(f'v_mul_f32 v{X+k}, 0.15915494, v{X+k}')
    for k in range(16):
        a(f'v_sin_f32 v{X+k}, v{X+k}')
    for k in range(16):
        a(f'v_mul_f32 v{X+k}, v{X+k}, v{rd}')
    for k in range(8):
        a(f'v_cvt_pk_bf16_f32 v{P+k}, v{X+2*k}, v{X+2*k+1}')
    for g in range(4):
        a(f'ds_write_b64 v{tWR}, {vr(P+2*g,2)} offset:{128*g}')
    def acc_init_static():
        for i in range(8):
            a(f'''v_lshlrev_b32 v{ACC+2*i}, 16, v{OWN+i}
                  v_and_b32 v{ACC+2*i+1}, {M}, v{OWN+i}''')
    acc_init_static()
    a(f'''
    s_mov_b32 s{sG}, 0
    s_and_b32 s{sGend}, s{sGP}, 0x1ff
    s_mov_b32 s{sTe}, 32
    s_mov_b32 s{sStA}, 0
    s_mov_b32 s{sStB}, 0
    s_mov_b32 s{sStC}, 0
    s_mov_b32 s{sX}, 0x8000
    ''')
    stamp()
    a(f'''
    s_cmp_ge_u32 s{sW}, {opts.get('bfrom', 4)}
    s_waitcnt vmcnt(8) lgkmcnt(0)
    s_cbranch_scc1 kb_B_entry
    ''')

    def gemm(t, s):
        H = HA if t == 0 else HB
        out = []
        for b in range(3):
            c = '0' if s == 0 else vr(PHI[t] + 4 * b, 4)
            out.append(f'v_mfma_f32_16x16x32_bf16 {vr(PHI[t]+4*b,4)}, {vr(H+4*s,4)}, {vr(W2+16*b+4*s,4)}, {c}')
        return out
    def wf(t):
        return [f'v_mfma_f32_16x16x16_bf16 {vr(WRD+4*b,4)}, {vr(RBF+2*t,2)}, {vr(WR+2*b,2)}, 0' for b in range(3)]
    def sm(k):
        a(f'v_mfma_f32_16x16x32_bf16 {vr(ACC+4*k,4)}, {vr(MSG[k],4)}, {vr(SEL,4)}, {vr(ACC+4*k,4)}')
    def selb():
        for i in range(4):
            a(f'v_xor_b32 v{SEL+i}, v{DL+i}, v{vKey}')
        for i in range(4):
            a(f'v_pk_mad_i16 v{SEL+i}, v{SEL+i}, s{sK8}, v{vOne} clamp')
    def vread(t):
        for c in range(3):
            for p in range(2):
                a(f'ds_read_b64_tr_b16 {vr(V+12*t+4*c+2*p,2)}, v{vAV} offset:{4096*t+1024*(c+1)+512*p}')
    tail_blocks = []
    def issue(X_):
        a(f'''
        s_cmp_lt_u32 s{sOwnN}, 7
        s_cbranch_scc1 kb_own{X_}
        kb_ownr{X_}:
        ''')
        def blk():
            a(f'''kb_own{X_}:
                  s_add_u32 s{sStA}, s{sStA}, 1
                  s_add_u32 s{sOwnN}, s{sOwnN}, 1''')
            for j in range(NPRE, 7):
                if j < 6:
                    a(f'''s_cmp_lg_u32 s{sOwnN}, {j+1}
                          s_cbranch_scc1 kb_own{X_}_{j+1}''')
                own_load(j)
                a(f's_branch kb_ownr{X_}')
                if j < 6:
                    a(f'kb_own{X_}_{j+1}:')
        tail_blocks.append(blk)
        if not opts.get('nodma'):
            dma(vSrcB)
        a(f'''
        s_mov_b32 s{sStC}, s{sStB}
        s_mov_b32 s{sStB}, s{sStA}
        s_mov_b32 s{sStA}, 0
        ds_bpermute_b32 v{vSrcB}, v{vBP}, v{vSrc}
        v_add_u32 v{vBP}, 16, v{vBP}
        ''')
    def wait_tree(X_, dest):
        a(f'''
        s_add_u32 s{sT0}, s{sStA}, s{sStB}
        s_add_u32 s{sT0}, s{sT0}, s{sStC}
        ''')
        def rec(lo, hi):
            if hi - lo == 1:
                a(f'''s_waitcnt vmcnt({8+4*lo})
                      s_branch {dest}''')
                return
            mid = (lo + hi) // 2
            a(f'''s_cmp_ge_u32 s{sT0}, {mid}
                  s_cbranch_scc1 kb_w{X_}_{mid}_{hi}''')
            rec(lo, mid)
            a(f'kb_w{X_}_{mid}_{hi}:')
            rec(mid, hi)
        rec(0, 8)
    def G(X_, with_issue):
        for s in range(4):
            a(f'ds_read_b128 {vr(HA+4*s,4)}, v{vAH+s}')
        a(f'''ds_read_b64 {vr(RBF,2)}, v{vAR}
              ds_read_b64 {vr(RBF+2,2)}, v{vAR} offset:512''')
        for s in range(4):
            a(f'ds_read_b128 {vr(HB+4*s,4)}, v{vAH+s} offset:4096')
        n = 10
        if with_issue:
            issue(X_); n += 1
        for s in range(4):
            a(f's_waitcnt lgkmcnt({n-1-s})')
            for m in gemm(0, s):
                a(m)
            if s == 1:
                vread(0); n += 6
        a(f's_waitcnt lgkmcnt({n-6})')
        for m in wf(0):
            a(m)
        n -= 6
        mu = [f'v_mul_f32 v{PHI[0]+i}, v{PHI[0]+i}, v{WRD+i}' for i in range(12)]
        upd = [f'v_xor_b32 v{vAH+s}, s{sX}, v{vAH+s}' for s in range(4)] + [f'v_add_u32 v{vAR}, 1024, v{vAR}']
        k = 0
        for s in range(4):
            a(f's_waitcnt lgkmcnt({n-1-s})')
            if s == 3:
                vread(1)
            for m in gemm(1, s):
                a(m)
                k += 1
                if k <= 3:
                    for _ in range(2):
                        if upd:
                            a(upd.pop(0))
                elif k >= 5:
                    for _ in range(2):
                        if mu:
                            a(mu.pop(0))
        assert not mu and not upd
        a('s_waitcnt lgkmcnt(8)')
        for c in range(3):
            a(f'ds_read_b128 {vr(RR[0]+4*c,4)}, v{vAS} offset:{128*c}')
        a(f'ds_read_b128 {vr(DL,4)}, v{vAS} offset:384')
        for m in wf(1):
            a(m)
        for c in range(3):
            a(f'ds_read_b128 {vr(RR[1]+4*c,4)}, v{vAS} offset:{128*c+16}')
        a(f'''
        v_xor_b32 v{vAV}, s{sX}, v{vAV}
        v_add_u32 v{vAS}, 512, v{vAS}
        s_xor_b32 s{sX}, s{sX}, 0x10000
        ''')
    def Mphase(extra):
        p0, p1 = PHI
        a(f'''v_cvt_pk_bf16_f32 v{MSG[0]}, v{p0}, v{p0+1}
              v_cvt_pk_bf16_f32 v{MSG[0]+1}, v{p0+2}, v{p0+3}
              s_waitcnt lgkmcnt({3+extra})''')
        selb()
        for c in range(3):
            for i in range(4):
                a(f'v_mul_f32 v{RR[0]+4*c+i}, v{RR[0]+4*c+i}, v{p0+8+i}')
        for i in range(12):
            a(f'v_mul_f32 v{p1+i}, v{p1+i}, v{WRD+i}')
        a(f'''v_cvt_pk_bf16_f32 v{MSG[0]+2}, v{p1}, v{p1+1}
              v_cvt_pk_bf16_f32 v{MSG[0]+3}, v{p1+2}, v{p1+3}
              s_waitcnt lgkmcnt({extra})''')
        for c in range(3):
            for i in range(4):
                a(f'v_fmac_f32 v{RR[0]+4*c+i}, v{V+4*c+i}, v{p0+4+i}')
            if c == 0:
                sm(0)
            else:
                sm(c)
            for i in range(4):
                a(f'v_mul_f32 v{RR[1]+4*c+i}, v{RR[1]+4*c+i}, v{p1+8+i}')
            for i in range(4):
                a(f'v_fmac_f32 v{RR[1]+4*c+i}, v{V+12+4*c+i}, v{p1+4+i}')
            for t in range(2):
                for h in range(2):
                    a(f'v_cvt_pk_bf16_f32 v{MSG[1+c]+2*t+h}, v{RR[t]+4*c+2*h}, v{RR[t]+4*c+2*h+1}')
        sm(3)
    ST = PHI[0]
    def Sflush(X_):
        a(f'''
        kb_segend{X_}:
        s_cmp_gt_u32 s{sGend}, s{sTe}
        s_cbranch_scc1 kb_next{X_}
        kb_flush{X_}:
        s_add_u32 s{sG}, s{sG}, 8
        s_lshl_b32 s{sT0}, s{sG}, 2
        s_add_u32 s{sStA}, s{sStA}, 1
        s_nop 3
        ''')
        for i in range(8):
            a(f'v_cvt_pk_bf16_f32 v{ST+i}, v{ACC+2*i}, v{ACC+2*i+1}')
        for b in range(4):
            a(f'buffer_store_dwordx2 {vr(ST+2*b,2)}, v{vOut}, {sr(S_OUT)}, 0 offen offset:{256*b}')
        a(f'''
        s_cmp_eq_u32 s{sG}, 56
        s_cbranch_scc1 kb_done
        s_cmp_gt_u32 s{sT0}, s{sOk}
        s_cbranch_scc1 kb_fb{X_}
        kb_fbr{X_}:
        s_set_gpr_idx_on s{sG}, 0x2
        s_nop 1
        ''')
        def blk():
            a(f'kb_fb{X_}:')
            a(f'''s_cmp_ge_u32 s{sOwnN}, 7
                  s_cbranch_scc1 kb_fb2{X_}''')
            for j in range(NPRE, 7):
                own_load(j)
            a(f'''kb_fb2{X_}:
                  s_mov_b32 s{sOwnN}, 7
                  s_mov_b32 s{sOk}, 0x7fffffff
                  s_waitcnt vmcnt(0)
                  s_branch kb_fbr{X_}''')
        tail_blocks.append(blk)
        acc_init_static()
        a(f'''
        s_set_gpr_idx_off
        v_add_u32 v{vKey}, 0x001c001c, v{vKey}
        v_add_u32 v{vOut}, 14336, v{vOut}
        s_lshr_b64 s[{sGP}:{sGP+1}], s[{sGP}:{sGP+1}], 9
        s_mov_b32 s{sGst}, s{sGend}
        s_and_b32 s{sGend}, s{sGP}, 0x1ff
        s_cmp_ge_u32 s{sGst}, s{sTe}
        s_cbranch_scc1 kb_next{X_}
        s_cmp_eq_u32 s{sGst}, s{sGend}
        s_cbranch_scc1 kb_flush{X_}
        ''')
        selb()
        for k in range(4):
            sm(k)
        a(f'''
        s_branch kb_segend{X_}
        kb_tail{X_}:
        s_mov_b32 s{sTe}, 0x7fffffff
        s_branch kb_flush{X_}
        kb_next{X_}:
        s_cmp_ge_u32 s{sTe}, s{sTot}
        s_cbranch_scc1 kb_tail{X_}
        s_add_u32 s{sTe}, s{sTe}, 32
        s_max_u32 s{sOk}, s{sOk}, s{sTe}
        ''')
    a('kb_loopA:')
    stamp()
    a('s_barrier')
    stamp()
    G('A', True)
    Mphase(0)
    Sflush('A')
    wait_tree('A', 'kb_loopA')
    a('''kb_B_entry:
         s_barrier''')
    issue('B0')
    a('s_waitcnt lgkmcnt(0)')
    a('kb_loopB:')
    G('B', False)
    a(f'''
    s_cmp_ge_u32 s{sTe}, s{sTot}
    s_cbranch_scc1 kb_B_m0
    s_waitcnt lgkmcnt(7)
    ''')
    wait_tree('B', 'kb_B_bar')
    a('''kb_B_m0:
         s_waitcnt lgkmcnt(0)
         s_branch kb_B_m
         kb_B_bar:''')
    stamp()
    a('s_barrier')
    stamp()
    issue('B')
    a('kb_B_m:')
    Mphase(1)
    Sflush('B')
    a('''s_waitcnt lgkmcnt(0)
         s_branch kb_loopB''')
    for b in tail_blocks:
        b()
    a(f'''
    kb_go_slow:
    s_mov_b32 s{sMode}, 1
    s_mov_b32 s{sI}, 0
    s_mov_b32 s{sQ}, 0
    s_mov_b32 s{sC}, -1
    s_mov_b32 s{sLen}, 0
    s_mov_b32 s{sBase}, 0
    s_branch kb_copy
    kb_empty:
    s_cmp_lg_u32 s{sMode}, 0
    s_cbranch_scc1 kb_done
    kb_copy:
    s_mov_b64 s[{sGP}:{sGP+1}], 0
    s_mov_b32 s{sG}, 0
    s_mov_b32 s{sGend}, 0
    s_mov_b32 s{sTot}, 0
    s_mov_b32 s{sStA}, 0
    s_waitcnt vmcnt(0)
    ''')
    acc_init_static()
    a(f'''
    s_branch kb_tailA
    kb_done:
    ''')
    if STAMP:
        stamp()
        a('s_waitcnt vmcnt(0)')
        stamp()
        srd(a, S_POS, 24, 25, 0x100000, 0x1000000)
        a(f'''v_lshlrev_b32 v{T}, 2, v0
              s_lshl_b32 s{sT0}, s2, 11
              v_add_u32 v{T}, s{sT0}, v{T}
              buffer_store_dword v{vStamp}, v{T}, {sr(S_POS)}, 0 offen''')
    a(f'''
    s_waitcnt vmcnt(4)
    s_cmp_eq_u32 s{sMode}, 0
    s_cbranch_scc1 kb_exit
    s_waitcnt vmcnt(0) lgkmcnt(0)
    s_barrier
    v_and_b32 v{T+8}, 7, v0
    v_lshlrev_b32 v{T+8}, 2, v{T+8}
    v_add_u32 v{T+8}, {L_GCNT}, v{T+8}
    v_mov_b32 v{T+9}, 0
    ds_write_b32 v{T+8}, v{T+9}
    s_mov_b32 s{S_BASE}, s20
    s_mov_b32 s{S_BASE+1}, s21
    s_cmp_ge_u32 s{sI}, 4
    s_cbranch_scc1 kb_mode2
    s_lshl_b32 s{sT0}, s2, 13
    s_add_u32 s{sT0}, s{sT0}, {WS_CELL - WSO}
    v_lshl_add_u32 v{T+4}, v0, 4, s{sT0}
    v_and_b32 v{T+6}, -64, v{T+4}
    s_lshl_b32 s{sT1}, s{sI}, 2
    buffer_load_dword v{CE+4}, v{T+6}, {sr(S_WS)}, 0 offen
    buffer_load_dword v{CE}, v{T+4}, {sr(S_WS)}, s{sT1} offen
    v_lshrrev_b32 v{T+3}, 7, v0
    v_cmp_eq_u32 s[{GE}:{GE+1}], s{sQ}, v{T+3}
    v_and_b32 v{T+5}, 3, v0
    v_add_u32 v{T+5}, s{sT1}, v{T+5}
    v_lshlrev_b32 v{T+5}, 2, v{T+5}
    v_cmp_ne_u32 vcc, 0, v{T+5}
    s_and_b64 s[{GE}:{GE+1}], vcc, s[{GE}:{GE+1}]
    s_waitcnt vmcnt(0)
    v_and_b32 v{CE+4}, 0xffff, v{CE+4}
    v_cmp_lt_u32 vcc, v{T+5}, v{CE+4}
    s_and_b64 s[{GE}:{GE+1}], vcc, s[{GE}:{GE+1}]
    s_add_u32 s{sQ}, s{sQ}, 1
    s_lshr_b32 s{sT0}, s{sQ}, 2
    s_add_u32 s{sI}, s{sI}, s{sT0}
    s_and_b32 s{sQ}, s{sQ}, 3
    s_branch kb_round
    kb_mode2:
    s_cmp_lt_u32 s{sBase}, s{sLen}
    s_cbranch_scc1 kb_m2_go
    s_add_u32 s{sC}, s{sC}, 1
    s_cmp_ge_u32 s{sC}, {NCHUNK}
    s_cbranch_scc1 kb_exit
    s_lshl_b32 s{sT0}, s2, 13
    s_lshl_b32 s{sT1}, s{sC}, 6
    s_add_u32 s{sT0}, s{sT0}, s{sT1}
    s_add_u32 s{sT0}, s{sT0}, {WS_CELL}
    s_load_dword s{sT1}, s[24:25], s{sT0}
    s_waitcnt lgkmcnt(0)
    s_and_b32 s{sT2}, s{sT1}, 0xffff
    s_lshr_b32 s{sLen}, s{sT1}, 16
    s_cmp_gt_u32 s{sT2}, 64
    s_cselect_b32 s{sLen}, s{sLen}, 0
    s_mov_b32 s{sBase}, 0
    s_branch kb_mode2
    kb_m2_go:
    v_add_u32 v{T+3}, s{sBase}, v0
    v_cmp_gt_u32 s[{GE}:{GE+1}], s{sLen}, v{T+3}
    v_cmp_gt_u32 vcc, 128, v0
    s_and_b64 s[{GE}:{GE+1}], vcc, s[{GE}:{GE+1}]
    s_mov_b64 vcc, s[{GE}:{GE+1}]
    s_mul_i32 s{sT0}, s{sC}, {OVF_STRIDE}
    s_add_u32 s{sT0}, s{sT0}, {WS_OVF - WSO}
    v_lshl_add_u32 v{T+4}, v{T+3}, 2, s{sT0}
    v_mov_b32 v{T+5}, 0x40000000
    v_cndmask_b32 v{T+4}, v{T+5}, v{T+4}, vcc
    buffer_load_dword v{CE}, v{T+4}, {sr(S_WS)}, 0 offen
    s_waitcnt vmcnt(0)
    v_lshrrev_b32 v{T+3}, 16, v{CE}
    v_subrev_u32 v{T+3}, s{sNode0}, v{T+3}
    v_cmp_gt_u32 vcc, 98, v{T+3}
    s_and_b64 s[{GE}:{GE+1}], vcc, s[{GE}:{GE+1}]
    s_add_u32 s{sBase}, s{sBase}, 128
    kb_round:
    s_mov_b64 s[{GE+2}:{GE+3}], 0
    v_mov_b32 v{CE+4}, 0
    s_mov_b32 s{sOwnN}, 7
    s_mov_b32 s{sOk}, 0x7fffffff
    ''')
    out_base()
    for j in range(7):
        own_load(j, ' sc0 sc1')
    a(f'''
    s_waitcnt lgkmcnt(0)
    s_barrier
    s_branch kb_propose
    kb_exit:
    s_endpgm
    ''')
    return L_END
```

```python
from consts import *

def srd(a, r, lo, hi, nbytes, off=0):
    if off:
        a(f'''s_add_u32 s{r}, s{lo}, {off}
              s_addc_u32 s{r+1}, s{hi}, 0''')
    else:
        a(f'''s_mov_b32 s{r}, s{lo}
              s_mov_b32 s{r+1}, s{hi}''')
    a(f'''s_mov_b32 s{r+2}, {nbytes}
          s_mov_b32 s{r+3}, 0x00020000''')

NP = 19
L_OVC = 1024
L_TAB = 2048
assert L_TAB + 8 * NP * 1024 <= KA_LDS

def gen_ka(a, opts={}):
    STAMP = opts.get('stampa')
    cnt = [0]
    def stamp(reset=False):
        if reset:
            cnt[0] = 1
        if STAMP:
            a(f'''s_memrealtime s[80:81]
                 s_waitcnt lgkmcnt(0)
                 v_writelane_b32 v160, s80, {cnt[0]}''')
            cnt[0] += 1
    def stamp_out():
        if STAMP:
            stamp()
            a('s_waitcnt vmcnt(0)')
            stamp()
            srd(a, 76, 20, 21, 0x100000, 0x1100000)
            a('''v_lshlrev_b32 v161, 2, v0
                 s_lshl_b32 s82, s2, 12
                 v_add_u32 v161, s82, v161
                 buffer_store_dword v160, v161, s[76:79], 0 offen''')
    PFE, PFH, PFN = int(opts.get('pfe', 1)), int(opts.get('pfh', 1)), int(opts.get('pfn', 2))
    def pf():
        srd(a, 68, 4, 5, 25600000)
        a('''s_mul_i32 s72, s2, 100352
             v_lshlrev_b32 v144, 7, v0
             buffer_load_dword v145, v144, s[68:71], s72 offen''')
        if PFN > 1:
            a('''s_add_u32 s72, s72, 65536
                 v_mov_b32 v146, 0x40000000
                 v_cmp_gt_u32 vcc, 272, v0
                 v_cndmask_b32 v144, v146, v144, vcc
                 buffer_load_dword v146, v144, s[68:71], s72 offen''')
    a(f'''
    .globl ka_kernel
    .p2align 8
    .type ka_kernel,@function
    ka_kernel:
    s_load_dwordx16 s[4:19], s[0:1], 0
    s_load_dwordx2 s[20:21], s[0:1], 80
    ''')
    stamp()
    a(f'''
    s_cmp_ge_u32 s2, {KA_GRID}
    s_cbranch_scc1 ka_exit
    v_lshrrev_b32 v1, 6, v0
    v_readfirstlane_b32 s23, v1
    v_and_b32 v1, 63, v0
    s_lshr_b32 s62, s2, 4
    s_lshl_b32 s22, s62, 3
    s_and_b32 s3, s2, 7
    s_or_b32 s22, s22, s3
    s_bitcmp1_b32 s2, 3
    s_cbranch_scc1 ka_h
    ''')
    SV = [4, 5, 6, 7, 8, 9, 10]
    DV = [12, 13, 14, 15, 16, 17, 18]
    a(f"""
    s_mul_i32 s44, s22, {CHUNK*4}
    v_lshl_add_u32 v20, v0, 4, s44
    s_add_u32 s45, s44, {2048*4}
    v_lshl_add_u32 v21, v0, 3, s45
    s_add_u32 s45, s44, {3072*4}
    v_lshl_add_u32 v22, v0, 2, s45
    v_mov_b32 v2, 0x40000000
    v_cmp_gt_u32 vcc, {CHUNK-3072}, v0
    v_cndmask_b32 v22, v2, v22, vcc
    v_lshlrev_b32 v2, 4, v1
    s_mul_i32 s45, s23, {NP*1024}
    s_add_u32 s46, s45, {NP*1024}
    s_mul_i32 s47, s62, {NP}
    s_lshr_b32 s47, s47, 4
    s_lshl_b32 s47, s47, 10
    s_add_u32 s47, s47, s45
    s_waitcnt lgkmcnt(0)
    """)
    srd(a, 32, 6, 7, 150000)
    srd(a, 24, 8, 9, 1600000)
    srd(a, 28, 10, 11, 1600000)
    PRE = int(opts.get('pre', 2))
    for i in range(NP):
        if i == PRE:
            a("""
            buffer_load_dwordx4 v[4:7], v20, s[24:27], 0 offen
            buffer_load_dwordx4 v[12:15], v20, s[28:31], 0 offen
            buffer_load_dwordx2 v[8:9], v21, s[24:27], 0 offen
            buffer_load_dwordx2 v[16:17], v21, s[28:31], 0 offen
            buffer_load_dword v10, v22, s[24:27], 0 offen
            buffer_load_dword v18, v22, s[28:31], 0 offen
            s_barrier
            """)
        a(f"""s_add_u32 m0, s47, {L_TAB}
              buffer_load_dwordx4 v2, s[32:35], s47 offen lds""")
        if i < NP - 1:
            a(f"""s_add_u32 s47, s47, 1024
                  s_cmp_eq_u32 s47, s46
                  s_cselect_b32 s47, s45, s47""")
    if PFE == 1:
        pf()
    XE = PFN if PFE == 1 else 0
    stamp(True)
    a(f"""
    v_lshlrev_b32 v3, 2, v0
    v_mov_b32 v2, 4
    v_cmp_gt_u32 vcc, 256, v0
    v_cndmask_b32 v23, 0, v2, vcc
    ds_write_b32 v3, v23
    v_cmp_gt_u32 s[46:47], s26, v20
    v_cmp_gt_u32 s[54:55], s26, v21
    v_cmp_gt_u32 s[58:59], s26, v22
    s_mov_b64 s[48:49], s[46:47]
    s_mov_b64 s[50:51], s[46:47]
    s_mov_b64 s[52:53], s[46:47]
    s_mov_b64 s[56:57], s[54:55]
    """)
    srd(a, 36, 20, 21, CELL_BYTES, WS_CELL)
    srd(a, 40, 20, 21, OVF_BYTES, WS_OVF)
    a(f"""
    s_mov_b32 s44, 0xffff0000
    s_mov_b32 s45, 0x41c28000
    s_mov_b32 s64, 0x0000bf80
    s_mov_b32 s65, 0xbf800000
    s_movk_i32 s66, {L_TAB}
    s_waitcnt vmcnt({NP-PRE+XE})
    """)
    stamp()
    REC = [64 + k for k in range(7)]
    CA = [80 + k for k in range(7)]
    AS = [88 + k for k in range(7)]
    AD = [96 + k for k in range(7)]
    RK = [104 + k for k in range(7)]
    PS = [24 + 2 * k for k in range(7)]
    PD = [40 + 2 * k for k in range(7)]
    MK = lambda k: f's[{46+2*k}:{47+2*k}]'
    UNAL = opts.get('unal', '0') == '1'
    for k in range(7):
        S, D = SV[k], DV[k]
        a(f"""
        v_mad_u32_u24 v{AS[k]}, v{S}, 6, s66
        v_mad_u32_u24 v{AD[k]}, v{D}, 6, s66
        v_and_b32 v{AS[k]}, -4, v{AS[k]}
        v_and_b32 v{AD[k]}, -4, v{AD[k]}""")
        a(f"""
        v_mul_u32_u24 v56, 10700, v{D}
        v_lshrrev_b32 v56, 20, v56
        v_lshlrev_b32 v{CA[k]}, 2, v56
        v_lshl_or_b32 v{REC[k]}, v{D}, 16, v{S}
        """)
    a(f"""
    s_waitcnt vmcnt({XE}) lgkmcnt(0)
    s_barrier
    """)
    if PFE == 2:
        pf()
    stamp()
    a(f's_mov_b64 exec, {MK(6)}')
    for k in [6, 0, 1, 2, 3, 4, 5]:
        if UNAL:
            a(f"""ds_read_b64 v[{PS[k]}:{PS[k]+1}], v{AS[k]} offset:{L_TAB}
                  ds_read_b64 v[{PD[k]}:{PD[k]+1}], v{AD[k]} offset:{L_TAB}""")
        elif opts.get('b64'):
            a(f"""ds_read_b64 v[{PS[k]}:{PS[k]+1}], v{AS[k]}
                  ds_read_b64 v[{PD[k]}:{PD[k]+1}], v{AD[k]}""")
        else:
            a(f"""ds_read2_b32 v[{PS[k]}:{PS[k]+1}], v{AS[k]} offset1:1
                  ds_read2_b32 v[{PD[k]}:{PD[k]+1}], v{AD[k]} offset1:1""")
        if k == 6:
            a('s_mov_b64 exec, -1')
    if not UNAL:
        for k in range(7):
            a(f"""v_lshlrev_b32 v{SV[k]}, 4, v{SV[k]}
                  v_lshlrev_b32 v{DV[k]}, 4, v{DV[k]}""")
    order = [6, 0, 1, 2, 3, 4, 5]
    def fin(i):
        k = order[i]; t = 56 + 3 * (i & 1)
        a(f"""
        v_mul_f32 v{t}, v{t}, v{t}
        v_fmac_f32 v{t}, v{t+1}, v{t+1}
        v_fmac_f32 v{t}, v{t+2}, v{t+2}
        v_cmp_gt_f32 vcc, s45, v{t}
        s_and_b64 {MK(k)}, {MK(k)}, vcc
        """)
    for i, k in enumerate(order):
        ps, pd = PS[k], PD[k]
        t = 56 + 3 * (i & 1)
        a(f's_waitcnt lgkmcnt({12-2*i})')
        if not UNAL:
            a(f"""
            v_alignbit_b32 v{ps}, v{ps+1}, v{ps}, v{SV[k]}
            v_lshrrev_b32 v{ps+1}, v{SV[k]}, v{ps+1}
            v_alignbit_b32 v{pd}, v{pd+1}, v{pd}, v{DV[k]}
            v_lshrrev_b32 v{pd+1}, v{DV[k]}, v{pd+1}
            """)
        if i:
            fin(i - 1)
        a(f"""
        v_lshlrev_b32 v{t}, 16, v{ps}
        v_and_b32 v{t+1}, s44, v{ps}
        v_lshlrev_b32 v{t+2}, 16, v{ps+1}
        v_dot2_f32_bf16 v{t}, v{pd}, s64, v{t}
        v_dot2_f32_bf16 v{t+1}, v{pd}, s65, v{t+1}
        v_dot2_f32_bf16 v{t+2}, v{pd+1}, s64, v{t+2}
        """)
    fin(6)
    if STAMP == '4': stamp()
    for k in range(7):
        a(f"""s_mov_b64 exec, {MK(k)}
              ds_add_rtn_u32 v{RK[k]}, v{CA[k]}, v2""")
    a(f"""s_mov_b64 exec, -1
         v_and_b32 v3, -4, v0
         v_mov_b32 v12, {L_OVC}
         v_lshrrev_b32 v13, 2, v0
         v_and_b32 v14, 3, v0
         v_lshlrev_b32 v1, 2, v14
         v_lshl_or_b32 v1, v13, 6, v1
         v_add_u32 v1, {L_TAB}, v1
         v_add_u32 v19, 8192, v1
         v_lshlrev_b32 v13, 13, v13
         v_lshl_or_b32 v13, v14, 4, v13
         s_lshl_b32 s3, s22, 6
         v_add_u32 v13, s3, v13
         s_mov_b64 s[60:61], 0
         s_waitcnt lgkmcnt(0)
         s_barrier""")
    stamp()
    for k in range(7):
        a(f"""
        v_cmp_gt_u32 vcc, 64, v{RK[k]}
        v_lshl_add_u32 v{CA[k]}, v{CA[k]}, 4, v{RK[k]}
        s_and_b64 exec, vcc, {MK(k)}
        ds_write_b32 v{CA[k]}, v{REC[k]} offset:{L_TAB}
        s_andn2_b64 {MK(k)}, {MK(k)}, vcc
        s_or_b64 s[60:61], s[60:61], {MK(k)}
        s_mov_b64 exec, -1
        """)
    a(f"""
    s_cmp_eq_u64 s[60:61], 0
    s_cbranch_scc1 ka_e_noovf
    s_mul_i32 s3, s22, {OVF_STRIDE}
    """)
    for k in range(7):
        a(f"""
        s_mov_b64 exec, {MK(k)}
        ds_add_rtn_u32 v57, v12, v2
        s_waitcnt lgkmcnt(0)
        v_add_u32 v57, s3, v57
        buffer_store_dword v{REC[k]}, v57, s[40:43], 0 offen
        """)
    a(f"""
    s_mov_b64 exec, -1
    ka_e_noovf:
    v_cmp_eq_u32 vcc, 0, v14
    s_mov_b32 s3, {128*CELL_WG_STRIDE}
    s_waitcnt lgkmcnt(0)
    s_barrier
    """)
    stamp()
    a(f"""
    ds_read_b32 v16, v12
    ds_read2_b32 v[4:5], v1 offset1:4
    ds_read2_b32 v[6:7], v1 offset0:8 offset1:12
    ds_read_b32 v14, v3
    ds_read2_b32 v[8:9], v19 offset1:4
    ds_read2_b32 v[10:11], v19 offset0:8 offset1:12
    ds_read_b32 v15, v3 offset:512
    s_waitcnt lgkmcnt(3)
    v_lshl_or_b32 v14, v16, 14, v14
    v_cndmask_b32 v4, v4, v14, vcc
    buffer_store_dwordx4 v[4:7], v13, s[36:39], 0 offen
    s_waitcnt lgkmcnt(0)
    v_lshl_or_b32 v15, v16, 14, v15
    v_cndmask_b32 v8, v8, v15, vcc
    buffer_store_dwordx4 v[8:11], v13, s[36:39], s3 offen
    """)
    stamp_out()
    a('s_endpgm')
    a(f'''
    ka_h:
    v_lshrrev_b32 v2, 4, v1
    v_and_b32 v3, 15, v1
    s_cmp_ge_u32 s22, 112
    s_cbranch_scc1 ka_prep
    v_lshlrev_b32 v4, 2, v2
    v_xor_b32 v4, v4, v3
    v_lshlrev_b32 v4, 4, v4
    v_lshl_or_b32 v4, v2, 8, v4
    s_and_b32 s24, s23, 3
    s_lshl_b32 s24, s24, 13
    s_and_b32 s42, s62, 7
    s_lshl_b32 s42, s42, 10
    s_lshl_b32 s26, s23, 5
    s_mul_i32 s27, s22, 224
    s_add_u32 s26, s26, s27
    s_lshl_b32 s25, s23, 13
    s_add_u32 s25, s25, 32768
    v_xor_b32 v7, v2, v3
    v_lshlrev_b32 v7, 4, v7
    v_add_u32 v8, s26, v2
    v_lshl_or_b32 v7, v8, 10, v7
    s_waitcnt lgkmcnt(0)
    ''')
    srd(a, 28, 14, 15, 32768)
    srd(a, 32, 4, 5, 25600000)
    a('''s_or_b32 s3, s24, s42
         s_cmp_lt_u32 s23, 4
         s_cbranch_scc1 ka_hs0''')
    for i in range(7):
        a(f'''s_add_u32 s42, s42, 1024
              s_and_b32 s42, s42, 0x1fff
              s_or_b32 s3, s24, s42
              s_mov_b32 m0, s3
              buffer_load_dwordx4 v4, s[28:31], s3 offen lds''')
    a('''s_waitcnt vmcnt(0)
         s_barrier
         s_cmp_eq_u32 s23, 7
         s_cbranch_scc1 ka_pfexit
         s_branch ka_hs
         ka_hs0:
         s_mov_b32 m0, s3
         buffer_load_dwordx4 v4, s[28:31], s3 offen lds
         ka_hs:''')
    for i in range(8):
        a(f'''v_xor_b32 v{16+i}, {((4*i) & 15) << 4}, v7
              s_add_u32 m0, s25, {1024*i}
              s_movk_i32 s3, {4096*i}
              buffer_load_dwordx4 v{16+i}, s[32:35], s3 offen lds''')
    if PFH == 1:
        pf()
    XH = PFN if PFH == 1 else 0
    srd(a, 36, 20, 21, 6400000, WS_H)
    a(f'''
    v_lshrrev_b32 v6, 5, v1
    v_bfe_u32 v8, v1, 2, 2
    v_and_b32 v9, 1, v1
    v_lshlrev_b32 v9, 5, v9
    v_and_b32 v10, 1, v2
    v_lshl_or_b32 v9, v10, 4, v9
    v_bfe_u32 v10, v1, 1, 1
    v_lshl_or_b32 v9, v10, 3, v9
    v_lshlrev_b32 v10, 6, v8
    v_xor_b32 v9, v9, v10
    v_lshl_add_u32 v10, v6, 3, v8
    v_lshl_or_b32 v11, v10, 8, v9
    v_xor_b32 v12, 64, v11
    v_xor_b32 v13, 0x80, v11
    v_xor_b32 v14, 0xc0, v11
    v_and_b32 v5, 31, v1
    v_xor_b32 v15, v6, v3
    v_lshlrev_b32 v15, 4, v15
    v_lshl_or_b32 v15, v5, 8, v15
    v_add_u32 v15, s25, v15
    v_add_u32 v5, s26, v5
    v_lshlrev_b32 v5, 8, v5
    v_lshl_or_b32 v5, v6, 5, v5
    s_mov_b32 s40, 0xbfb8aa3b
    s_mov_b32 s41, 0xbfb8aa3b
    ''')
    stamp(True)
    a(f'''
    s_cmp_ge_u32 s23, 4
    s_cbranch_scc1 ka_hnb
    s_waitcnt vmcnt({8+XH})
    s_barrier
    ka_hnb:
    ''')
    stamp()
    BF = 16
    AF = 48
    ACC = [80, 96]
    TM = 112
    OUT = 128
    def rdA(j):
        mt, s = j >> 3, j & 7
        b = AF + 4 * (j % 8)
        for u in range(2):
            a(f'ds_read_b64_tr_b16 v[{b+2*u}:{b+2*u+1}], v{11+mt} offset:{s*4096+u*1024}')
    for j in range(3):
        rdA(j)
    a(f's_waitcnt vmcnt({XH})')
    if PFH == 2:
        pf()
    stamp()
    for s in range(8):
        if s:
            a(f'v_xor_b32 v{TM+s}, {32*s}, v15')
        a(f'ds_read_b128 v[{BF+4*s}:{BF+4*s+3}], v{TM+s if s else 15}')
    def silu(mt):
        A = ACC[mt & 1]
        o = OUT + 8 * (mt & 1)
        out = []
        for h in range(2):
            r = range(4 * h, 4 * h + 4)
            out += [f'v_pk_mul_f32 v[{TM+2*i}:{TM+2*i+1}], v[{A+2*i}:{A+2*i+1}], s[40:41]' for i in r]
            out += [f'v_exp_f32 v{TM+i}, v{TM+i}' for i in range(8 * h, 8 * h + 8)]
            out += [f'v_pk_add_f32 v[{TM+2*i}:{TM+2*i+1}], v[{TM+2*i}:{TM+2*i+1}], 1.0 op_sel_hi:[1,0]' for i in r]
            out += [f'v_rcp_f32 v{TM+i}, v{TM+i}' for i in range(8 * h, 8 * h + 8)]
            out += [f'v_pk_mul_f32 v[{TM+2*i}:{TM+2*i+1}], v[{TM+2*i}:{TM+2*i+1}], v[{A+2*i}:{A+2*i+1}]' for i in r]
            out += [f'v_cvt_pk_bf16_f32 v{o+i}, v{TM+2*i}, v{TM+2*i+1}' for i in r]
            out += [f'buffer_store_dwordx4 v[{o+4*h}:{o+4*h+3}], v5, s[36:39], 0 offen offset:{64*mt+16*h}']
        return out
    pend = []
    q = ['A0', 'A0', 'A1', 'A1', 'A2', 'A2'] + [f'B{s}' for s in range(8)]
    nextA = 3
    for j in range(32):
        mt, s = j >> 3, j & 7
        while nextA < 32 and nextA <= j + 5 and len(q) <= 13:
            rdA(nextA); q += [f'A{nextA}'] * 2; nextA += 1
        need = [i for i, t in enumerate(q) if t == f'A{j}' or (mt == 0 and t == f'B{s}')]
        if need:
            last = max(need)
            a(f's_waitcnt lgkmcnt({len(q) - 1 - last})')
            q = q[last + 1:]
        b = AF + 4 * (j % 8)
        A = ACC[mt & 1]
        c = '0' if s == 0 else f'v[{A}:{A+15}]'
        a(f'v_mfma_f32_32x32x16_bf16 v[{A}:{A+15}], v[{b}:{b+3}], v[{BF+4*s}:{BF+4*s+3}], {c}')
        if s == 1 and mt > 0:
            pend = silu(mt - 1)
        if pend and s >= 1:
            n = (len(pend) + (7 - s)) // (8 - s)
            for x in pend[:n]:
                a(x)
            pend = pend[n:]
    stamp()
    for x in silu(3):
        a(x)
    stamp_out()
    a('s_endpgm')
    a(f'''
    ka_prep:
    s_sub_u32 s24, s22, 112
    s_lshl_b32 s24, s24, 3
    s_add_u32 s24, s24, s23
    s_waitcnt lgkmcnt(0)
    s_cmp_ge_u32 s24, 120
    s_cbranch_scc1 ka_pfexit
    s_cmp_ge_u32 s24, 96
    s_cbranch_scc1 ka_prep_wr
    s_lshr_b32 s25, s24, 2
    s_and_b32 s26, s24, 3
    s_mul_i32 s27, s25, 0x5556
    s_lshr_b32 s27, s27, 16
    s_mul_i32 s3, s27, 3
    s_sub_u32 s3, s25, s3
    s_lshl_b32 s27, s27, 5
    s_lshl_b32 s3, s3, 8
    s_add_u32 s27, s27, s3
    s_mul_i32 s26, s26, {32*768}
    s_add_u32 s27, s27, s26
    v_mul_u32_u24 v4, {8*768}, v2
    v_lshl_add_u32 v4, v3, 1, v4
    v_add_u32 v4, s27, v4
    s_lshl_b32 s3, s24, 10
    v_lshlrev_b32 v5, 4, v1
    v_add_u32 v5, s3, v5
    v_add_u32 v6, {4*768}, v4
    ''')
    srd(a, 40, 16, 17, 98304)
    srd(a, 44, 20, 21, 98304, WS_W2P)
    for j in range(8):
        a(f'buffer_load_ushort v{12+j}, v{4 if j < 4 else 6}, s[40:43], 0 offen offset:{768*(j&3)}')
    a('s_waitcnt vmcnt(0)')
    for j in range(4):
        a(f'v_lshl_or_b32 v{8+j}, v{13+2*j}, 16, v{12+2*j}')
    a(f'''
    buffer_store_dwordx4 v[8:11], v5, s[44:47], 0 offen
    s_branch ka_pfexit
    ka_prep_wr:
    s_sub_u32 s25, s24, 96
    s_mul_i32 s27, s25, 0x5556
    s_lshr_b32 s27, s27, 16
    s_mul_i32 s3, s27, 3
    s_sub_u32 s3, s25, s3
    s_lshl_b32 s27, s27, 5
    s_lshl_b32 s3, s3, 8
    s_add_u32 s27, s27, s3
    v_mul_u32_u24 v4, {4*768}, v2
    v_lshl_add_u32 v4, v3, 1, v4
    v_add_u32 v4, s27, v4
    s_lshl_b32 s3, s25, 9
    v_lshlrev_b32 v5, 3, v1
    v_add_u32 v5, s3, v5
    ''')
    srd(a, 40, 18, 19, 12288)
    srd(a, 44, 20, 21, 12288, WS_WRP)
    for j in range(4):
        a(f'buffer_load_ushort v{12+j}, v4, s[40:43], 0 offen offset:{768*j}')
    a('s_waitcnt vmcnt(0)')
    for j in range(2):
        a(f'v_lshl_or_b32 v{8+j}, v{13+2*j}, 16, v{12+2*j}')
    a(f'''
    buffer_store_dwordx2 v[8:9], v5, s[44:47], 0 offen
    ka_pfexit:
    ''')
    if PFH:
        pf()
    a(f'''
    ka_exit:
    s_endpgm
    ''')
```

```python
from consts import *
from gen_ka import srd

L_RING = 0
L_TMP = 131072
L_GCNT = L_TMP + 3584
L_RBF = L_GCNT + 64
L_META = L_RBF + 16384
L_END = L_META + 16 * 512
assert L_RBF % 16 == 0 and L_META % 16 == 0 and L_END <= 163840
LISTCAP = 416
PADSRC = 0x100000

class RA:
    def __init__(self, start=1):
        self.n = start
    def __call__(self, k=1, align=1):
        self.n = (self.n + align - 1) // align * align
        r = self.n
        self.n += k
        return r

def vr(b, k):
    return f'v[{b}:{b+k-1}]'

def gen_kb(a, opts):
    R = RA(1)
    vSwzH, vSwzV, vAV, vAR, vAS, vBP, vKey, vOut, vSrc, vSrcB, vOH, vOV, vOne, vOwnA, vStamp = [R() for _ in range(15)]
    vAH = R(4)
    W2 = R(48, 4); WR = R(6, 2); RBF = R(4, 2)
    OWN = R(56, 2); ACC = R(16, 4)
    PHI = [R(12, 4), R(12, 4)]; WRD = R(12, 4)
    HA = R(16, 4); HB = R(16, 4)
    V = R(24, 4)
    assert R.n <= 256, R.n
    RR = [HA, HB]
    DL = HA + 12; SEL = HB + 12
    MSG = [RBF, WRD, WRD + 4, WRD + 8]
    S_SV, S_OUT, S_H, S_POS, S_WS, S_BASE = 28, 32, 36, 40, 44, 48
    sW, sMask, sNode0, sMode, sI, sQ, sC, sLen, sBase = 52, 53, 54, 55, 26, 27, 3, 88, 89
    FR = 64
    GE = 80
    sGP = 90
    sTot, sTe, sGend, sGst, sG, sStA, sStB, sStC, sDma, sX = 92, 93, 94, 95, 96, 97, 98, 99, 100, 101
    s256, s512, s768 = 56, 57, 58
    sT0, sT1, sT2, sT3 = 59, 60, 61, 62
    sW2 = 16
    sOk, sOwnN, sK8, sNeg, sGC, sTM = 8, 9, 10, 11, 14, 15
    WSO = WS_W2P
    sr = lambda b: f's[{b}:{b+3}]'
    M = f's{sMask}'
    STAMP = opts.get('stamp')
    def stamp():
        if STAMP:
            a(f'''{"s_memtime" if STAMP == "2" else "s_memrealtime"} s[22:23]
                 s_waitcnt lgkmcnt(0)
                 s_mov_b32 m0, s63
                 s_nop 1
                 v_writelane_b32 v{vStamp}, s22, m0
                 s_add_u32 s63, s63, 1
                 s_min_u32 s63, s63, 63''')
    def fstamp():
        if opts.get('fine'):
            stamp()
    a(f'''
    .globl kb_kernel
    .p2align 8
    .type kb_kernel,@function
    kb_kernel:
    s_cmp_ge_u32 s2, 256
    s_cbranch_scc1 kb_exit
    s_load_dwordx2 s[24:25], s[0:1], 80
    s_load_dwordx4 s[4:7], s[0:1], 0
    s_load_dwordx2 s[20:21], s[0:1], 64
    s_load_dwordx2 s[12:13], s[0:1], 32
    ''')
    T = PHI[0]
    U = HA
    CE = V
    tL, tN, tG = T, T + 1, T + 2
    def out_base():
        a(f'''
        v_and_b32 v{tN}, 15, v0
        v_bfe_u32 v{tG}, v0, 4, 2
        v_add_u32 v{T+10}, s{sNode0}, v{tN}
        v_lshlrev_b32 v{T+10}, 10, v{T+10}
        v_lshl_add_u32 v{T+10}, v{tG}, 3, v{T+10}
        s_lshl_b32 s{sT3}, s{sW}, 5
        v_add_u32 v{T+10}, s{sT3}, v{T+10}
        v_mov_b32 v{T+11}, 0x40000000
        v_cmp_gt_u32 vcc, 14, v{tN}
        v_cndmask_b32 v{vOut}, v{T+11}, v{T+10}, vcc
        v_mov_b32 v{vOwnA}, {'0x40000000' if opts.get('noown') else 'v%d' % vOut}
        ''')
    def own_load(j, flags=''):
        a(f's_mov_b32 s{sT3}, {14336*j}')
        for b in range(4):
            a(f'buffer_load_dwordx2 {vr(OWN+8*j+2*b,2)}, v{vOwnA}, {sr(S_BASE)}, s{sT3} offen offset:{256*b}{flags}')
    a(f'''
    v_lshrrev_b32 v{T+3}, 6, v0
    v_readfirstlane_b32 s{sW}, v{T+3}
    s_lshl_b32 s{sT0}, s2, 13
    s_add_u32 s{sT0}, s{sT0}, {WS_CELL - WSO}
    v_lshl_add_u32 v{T+4}, v0, 4, s{sT0}
    s_mul_i32 s{sNode0}, s2, 98
    s_mov_b32 s63, 0
    ''')
    out_base()
    a('s_waitcnt lgkmcnt(0)')
    stamp()
    srd(a, S_WS, 24, 25, WS_OVF + OVF_BYTES - WSO, WSO)
    a(f'''
    buffer_load_dwordx4 {vr(CE,4)}, v{T+4}, {sr(S_WS)}, 0 offen
    v_and_b32 v{tL}, 63, v0
    v_lshlrev_b32 v{CE+7}, 4, v{tL}
    v_lshlrev_b32 v{CE+8}, 3, v{tL}
    s_mul_i32 s{sW2}, s{sW}, 12288
    s_mul_i32 s{sT2}, s{sW}, 1536
    s_add_u32 s{sT2}, s{sT2}, {WS_WRP - WSO}
    ''')
    srd(a, S_BASE, 4, 5, 25600000)
    VM = []
    def wbatch(first):
        lab = 'kb_wb%d' % first
        a(f'''s_bitcmp{1 if not first else 0}_b32 s2, {opts.get('rotbit', 3)}
              s_cbranch_scc1 {lab}_1''')
        for h in range(2):
            a(f's_add_u32 s{sT1}, s{sW2}, {6144*h}')
            for i in range(6):
                if i == 4:
                    a(f's_add_u32 s{sT1}, s{sT1}, 4096')
                a(f'buffer_load_dwordx4 {vr(W2+4*(6*h+i),4)}, v{CE+7}, {sr(S_WS)}, s{sT1} offen offset:{1024*(i%4)}')
            if h == 0:
                a(f'''s_branch {lab}_e
                      {lab}_1:''')
        a(f'{lab}_e:')
        VM.extend(['w'] * 6)
    def wr_load():
        for i in range(3):
            a(f'buffer_load_dwordx2 {vr(WR+2*i,2)}, v{CE+8}, {sr(S_WS)}, s{sT2} offen offset:{512*i}')
        VM.extend(['w'] * 3)
    SRC3 = V + 12
    def dma_addr(srcb):
        o = []
        if opts.get('fakesrc'):
            o.append(f'v_and_b32 v{srcb}, {opts["fakesrc"]}, v{srcb}')
        o += [f'v_lshl_add_u32 v{vOH}, v{srcb}, 8, v{vSwzH}', f'v_lshl_add_u32 v{vOV}, v{srcb}, 10, v{vSwzV}']
        return o
    def dma_piece(k):
        if opts.get('nodma'):
            return [f's_mov_b32 m0, s{sDma}']
        if k == 0:
            return [f's_mov_b32 m0, s{sDma}', f'buffer_load_dwordx4 v{vOH}, {sr(S_H)}, 0 offen lds']
        o = [f's_add_u32 m0, s{sDma}, {1024*k}', f'buffer_load_dwordx4 v{vOV}, {sr(S_SV)}, s{[0, s256, s512, s768][k]} offen lds']
        if k == 3:
            o += [f's_add_u32 s{sDma}, s{sDma}, 0x8000', f's_and_b32 s{sDma}, s{sDma}, 0x1ffff']
        return o
    def item_groups(it):
        k, j = it[0], int(it[1])
        if k == 'o':
            g = [[f'buffer_load_dwordx2 {vr(OWN+8*j+2*b,2)}, v{vOwnA}, {sr(S_BASE)}, s{sT3} offen offset:{256*b}'] for b in range(4)]
            g[0].insert(0, f's_mov_b32 s{sT3}, {14336*j}')
        else:
            nd = opts.pop('nodma', None)
            g = [dma_piece(q) for q in range(4)]
            if nd:
                opts['nodma'] = nd
            g[0] = dma_addr(SRC3 + j) + g[0]
        return [(it, x) for x in g]
    def emit_items(items):
        for it in items:
            if it == 'w0':
                wbatch(0)
            elif it == 'w1':
                wbatch(1)
            elif it == 'wr':
                wr_load()
            else:
                for tag, g in item_groups(it):
                    for x in g:
                        a(x)
                    VM.append(tag)
    def vm_after(tags):
        last = max(i for i, t in enumerate(VM) if t in tags)
        return len(VM) - 1 - last
    P1 = opts.get('p1', 'w0,wr,o0').split(',')
    P2 = opts.get('p2', 'd0,w1').split(',')
    P3 = opts.get('p3', 'o1,d1,o2,d2').split(',')
    NPRE = 1 + max(int(x[1]) for x in P1 + P2 + P3 if x[0] == 'o')
    assert NPRE >= 3
    VM.append('cell')
    a(f'''
    v_and_b32 v{T+8}, 7, v0
    v_lshlrev_b32 v{T+8}, 2, v{T+8}
    v_add_u32 v{T+8}, {L_GCNT}, v{T+8}
    v_mov_b32 v{T+9}, 0
    ds_write_b32 v{T+8}, v{T+9}
    s_waitcnt lgkmcnt(0)
    s_barrier
    s_load_dwordx8 s[{FR}:{FR+7}], s[12:13], 0
    ''')
    emit_items(P1)
    srd(a, S_SV, 4, 5, 25600000)
    srd(a, S_OUT, 20, 21, 25600000)
    srd(a, S_H, 24, 25, 6400000, WS_H)
    srd(a, S_POS, 6, 7, 150000)
    a(f'''
    s_mov_b32 s{sMask}, 0xffff0000
    s_mov_b32 s{sMode}, 0
    s_movk_i32 s{s256}, 256
    s_movk_i32 s{s512}, 512
    s_movk_i32 s{s768}, 768
    s_mov_b32 s{sK8}, 0x80008000
    s_mul_i32 s{sNeg}, s2, {-147*98}
    s_mov_b32 s{sGC}, {L_GCNT}
    s_mov_b32 s{sTM}, {L_TMP}
    v_mov_b32 v{vOne}, 0x3f803f80
    s_lshr_b32 s{sT0}, s{sW}, 1
    s_lshl_b32 s{sT1}, s{sT0}, 2
    v_add_u32 v{T+3}, s{sT1}, v{tG}
    v_xor_b32 v{T+3}, v{T+3}, v{tN}
    v_lshlrev_b32 v{vSwzH}, 4, v{T+3}
    v_and_b32 v{T+3}, 1, v{tG}
    v_lshl_or_b32 v{T+3}, v{T+3}, 1, s{sT1}
    v_xor_b32 v{T+3}, v{T+3}, v{tN}
    v_lshlrev_b32 v{vSwzV}, 4, v{T+3}
    v_and_b32 v{T+5}, 3, v0
    v_lshlrev_b32 v{T+5}, 2, v{T+5}
    v_cmp_ne_u32 s[{GE+2}:{GE+3}], 0, v{T+5}
    ''')
    stamp()
    a(f'''
    s_waitcnt vmcnt({vm_after(['cell'])}) lgkmcnt(0)
    v_and_b32 v{CE+4}, 0xffff, v{CE}
    v_mov_b32_dpp v{CE+4}, v{CE+4} quad_perm:[0,0,0,0] row_mask:0xf bank_mask:0xf
    ''')
    for k in range(7, -1, -1):
        a(f'''s_and_b32 s{FR+2*k+1}, s{FR+k}, s{sMask}
              s_lshl_b32 s{FR+2*k}, s{FR+k}, 16''')
    a(f'''
    v_sub_u32 v{CE+5}, v{CE+4}, v{T+5}
    v_cmp_lt_i32 vcc, 0, v{CE+5}
    s_and_b64 s[{GE}:{GE+1}], vcc, s[{GE+2}:{GE+3}]
    v_cmp_lt_i32 s[{GE+2}:{GE+3}], 16, v{CE+5}
    kb_propose:
    v_mov_b32 v{T+9}, 1
    v_mov_b32 v{CE+6}, 147
    v_and_b32 v{tL}, 63, v0
    v_lshlrev_b32 v{CE+7}, 4, v{tL}
    v_lshlrev_b32 v{CE+8}, 3, v{tL}
    ''')
    stamp()
    def wload(n):
        pass
    def prop(lo, nw):
        for q in range(2):
            a(f'''
            v_lshrrev_b32 v{U+q}, 16, v{CE+lo+q}
            v_mad_u32_u24 v{U+q}, v{U+q}, v{CE+6}, s{sNeg}
            v_lshrrev_b32 v{U+q}, 11, v{U+q}
            v_lshl_add_u32 v{U+4+q}, v{U+q}, 2, s{sGC}
            ''')
        for q in range(2):
            a(f'''s_mov_b64 exec, s[{GE+2*q}:{GE+2*q+1}]
                  ds_add_rtn_u32 v{U+8+q}, v{U+4+q}, v{T+9}''')
        a('s_mov_b64 exec, -1')
        for q in range(2):
            a(f'v_lshl_add_u32 v{U+q}, v{U+q}, 9, s{sTM}')
        wload(nw)
        a('s_waitcnt lgkmcnt(0)')
        for q in range(2):
            a(f'''v_min_u32 v{U+8+q}, 0x7f, v{U+8+q}
                  v_lshl_add_u32 v{U+q}, v{U+8+q}, 2, v{U+q}''')
        for q in range(2):
            a(f'''s_mov_b64 exec, s[{GE+2*q}:{GE+2*q+1}]
                  ds_write_b32 v{U+q}, v{CE+lo+q}''')
        a('s_mov_b64 exec, -1')
    W1N = W2N = W3N = 0
    prop(0, W1N)
    a(f'''
    v_cmp_lt_u32 vcc, 32, v{CE+4}
    s_cbranch_vccz kb_prop_done
    v_cmp_lt_i32 s[{GE}:{GE+1}], 32, v{CE+5}
    v_cmp_lt_i32 s[{GE+2}:{GE+3}], 48, v{CE+5}
    ''')
    prop(2, 0)
    a(f'''
    v_cmp_lt_u32 vcc, 64, v{CE+4}
    v_mov_b32 v{U}, {L_GCNT + 28}
    s_mov_b64 exec, vcc
    ds_add_u32 v{U}, v{T+9}
    s_mov_b64 exec, -1
    kb_prop_done:
    v_mov_b32 v{U}, {L_GCNT}
    s_waitcnt lgkmcnt(0)
    s_barrier
    ds_read_b128 {vr(U+4,4)}, v{U}
    ds_read_b128 {vr(U+8,4)}, v{U} offset:16
    ''')
    wload(W2N)
    tP = T + 3
    a(f'''
    v_and_b32 v{tN}, 15, v0
    v_bfe_u32 v{tG}, v0, 4, 2
    v_lshrrev_b32 v{T+4}, 2, v{tL}
    v_and_b32 v{T+5}, 3, v{tL}
    s_lshl_b32 s{sT0}, s{sW}, 2
    v_add_u32 v{T+6}, s{sT0}, v{T+5}
    v_lshl_add_u32 v{tP}, v{T+4}, 5, v{T+6}
    v_lshl_add_u32 v{T+7}, v{tP}, 2, s{sTM}
    s_waitcnt lgkmcnt(0)
    ''')
    stamp()
    for j in range(8):
        a(f'v_readfirstlane_b32 s{GE+j}, v{U+4+j}')
    sA, sB, sD = sStA, sStB, sStC
    a(f'''
    s_max_u32 s{sA}, s{GE}, s{GE+1}
    s_max_u32 s{sB}, s{GE+2}, s{GE+3}
    s_max_u32 s{sD}, s{GE+4}, s{GE+5}
    s_max_u32 s{sA}, s{sA}, s{GE+6}
    s_max_u32 s{sB}, s{sB}, s{sD}
    s_max_u32 s{sA}, s{sA}, s{sB}
    s_mov_b32 s{sTot}, 0
    ''')
    for j in range(7):
        a(f's_add_u32 s{sTot}, s{sTot}, s{GE+j}')
        if j < 6:
            a(f'''s_lshl_b32 s{sB}, s{GE+j}, 2
                  s_sub_u32 s{sB}, 512, s{sB}
                  v_cmpx_le_u32 vcc, s{sTot}, v{tP}
                  v_add_u32 v{T+7}, s{sB}, v{T+7}''')
        a(f's_mov_b32 s{GE+j}, s{sTot}')
    a(f'''
    s_mov_b64 exec, -1
    ds_read_b32 v{T+8}, v{T+7}
    ''')
    wload(W3N)
    a(f'''
    s_cmp_gt_u32 s{sA}, 128
    s_cselect_b32 s{GE+7}, 1, s{GE+7}
    s_cmp_gt_u32 s{sTot}, {LISTCAP}
    s_cselect_b32 s{GE+7}, 1, s{GE+7}
    s_cmp_lg_u32 s{GE+7}, 0
    s_cbranch_scc1 kb_go_slow
    s_cmp_eq_u32 s{sTot}, 0
    s_cbranch_scc1 kb_empty
    ''')
    a(f'''
    s_lshl_b32 s{sT0}, s{GE+1}, 9
    s_or_b32 s{sGP}, s{GE}, s{sT0}
    s_lshl_b32 s{sT0}, s{GE+2}, 18
    s_or_b32 s{sGP}, s{sGP}, s{sT0}
    s_lshl_b32 s{sT0}, s{GE+3}, 27
    s_or_b32 s{sGP}, s{sGP}, s{sT0}
    s_lshr_b32 s{sGP+1}, s{GE+3}, 5
    s_lshl_b32 s{sT0}, s{GE+4}, 4
    s_or_b32 s{sGP+1}, s{sGP+1}, s{sT0}
    s_lshl_b32 s{sT0}, s{GE+5}, 13
    s_or_b32 s{sGP+1}, s{sGP+1}, s{sT0}
    s_lshl_b32 s{sT0}, s{GE+6}, 22
    s_or_b32 s{sGP+1}, s{sGP+1}, s{sT0}
    v_cmp_gt_u32 vcc, s{sTot}, v{tP}
    v_mov_b32 v{T+9}, {PADSRC}
    v_mov_b32 v{T+10}, 0x3fff
    v_lshlrev_b32 v{vBP}, 2, v{tG}
    s_waitcnt lgkmcnt(0)
    v_and_b32 v{T+11}, 0xffff, v{T+8}
    v_lshrrev_b32 v{T+12}, 16, v{T+8}
    v_cndmask_b32 v{vSrc}, v{T+9}, v{T+11}, vcc
    v_cndmask_b32 v{T+13}, v{T+9}, v{T+12}, vcc
    ds_bpermute_b32 v{SRC3}, v{vBP}, v{vSrc}
    ds_bpermute_b32 v{SRC3+1}, v{vBP}, v{vSrc} offset:16
    ds_bpermute_b32 v{SRC3+2}, v{vBP}, v{vSrc} offset:32
    ds_bpermute_b32 v{vSrcB}, v{vBP}, v{vSrc} offset:48
    v_add_u32 v{vBP}, 64, v{vBP}
    v_mul_u32_u24 v{T+14}, 6, v{vSrc}
    v_and_b32 v{T+14}, -4, v{T+14}
    v_mul_u32_u24 v{T+15}, 6, v{T+13}
    v_and_b32 v{T+15}, -4, v{T+15}
    ''')
    wload(15)
    a(f'''
    buffer_load_dwordx2 {vr(T+16,2)}, v{T+14}, {sr(S_POS)}, 0 offen
    buffer_load_dwordx2 {vr(T+18,2)}, v{T+15}, {sr(S_POS)}, 0 offen
    v_subrev_u32 v{T+12}, s{sNode0}, v{T+12}
    v_cndmask_b32 v{T+10}, v{T+10}, v{T+12}, vcc
    v_lshlrev_b32 v{T+10}, 1, v{T+10}
    s_lshl_b32 s{sDma}, s{sW}, 12
    s_waitcnt lgkmcnt(1)
    ''')
    VM.extend(['pos', 'pos'])
    a(f'''s_mul_i32 s{sT2}, s{sW}, 1536
          s_add_u32 s{sT2}, s{sT2}, {WS_WRP - WSO}''')
    emit_items(P2)
    stamp()
    a(f'''
    v_lshrrev_b32 v{U}, 2, v{tN}
    v_lshlrev_b32 v{U}, 13, v{U}
    v_and_b32 v{U+1}, 3, v{tN}
    v_lshl_or_b32 v{U}, v{U+1}, 8, v{U}
    v_xor_b32 v{U+1}, v{tG}, v{tN}
    ''')
    for s in range(4):
        a(f'''v_xor_b32 v{U+2}, {4*s}, v{U+1}
              v_lshl_or_b32 v{vAH+s}, v{U+2}, 4, v{U}''')
    a(f'''
    v_bfe_u32 v{U}, v{tL}, 3, 1
    v_lshl_or_b32 v{U+1}, v{tG}, 1, v{U}
    v_xor_b32 v{U+1}, s{sW}, v{U+1}
    v_lshlrev_b32 v{U+1}, 5, v{U+1}
    v_lshl_or_b32 v{U+1}, v{U}, 8, v{U+1}
    v_lshl_or_b32 v{U+1}, v{tG}, 13, v{U+1}
    v_lshl_or_b32 v{U+1}, v{T+5}, 3, v{U+1}
    v_and_b32 v{U+2}, 4, v{tL}
    v_xor_b32 v{U+2}, 4, v{U+2}
    v_lshl_or_b32 v{vAV}, v{U+2}, 18, v{U+1}
    v_lshlrev_b32 v{vAR}, 3, v{tL}
    v_add_u32 v{vAR}, {L_RBF}, v{vAR}
    v_lshlrev_b32 v{vAS}, 5, v{tG}
    v_add_u32 v{vAS}, {L_META}, v{vAS}
    v_lshlrev_b32 v{vKey}, 1, v{tN}
    v_lshl_or_b32 v{vKey}, v{vKey}, 16, v{vKey}
    ''')
    tWR, tWS, tWD = T + 20, T + 21, T + 22
    a(f'''
    s_and_b32 s{sT0}, s{sW}, 1
    s_lshl_b32 s{sT2}, s{sT0}, 3
    s_lshl_b32 s{sT0}, s{sT0}, 9
    s_lshr_b32 s{sT1}, s{sW}, 1
    s_lshl_b32 s{sT1}, s{sT1}, 5
    s_add_u32 s{sT2}, s{sT2}, s{sT1}
    s_add_u32 s{sT2}, s{sT2}, {L_META + 384}
    s_add_u32 s{sT0}, s{sT0}, s{sT1}
    s_add_u32 s{sT0}, s{sT0}, {L_RBF}
    v_lshlrev_b32 v{tWR}, 10, v{T+4}
    v_lshl_add_u32 v{tWR}, v{T+5}, 3, v{tWR}
    v_add_u32 v{tWR}, s{sT0}, v{tWR}
    v_lshlrev_b32 v{tWS}, 9, v{T+4}
    v_lshl_add_u32 v{tWD}, v{T+5}, 1, v{tWS}
    v_add_u32 v{tWD}, s{sT2}, v{tWD}
    v_lshl_add_u32 v{tWS}, v{T+6}, 2, v{tWS}
    v_add_u32 v{tWS}, {L_META}, v{tWS}
    ds_write_b16 v{tWD}, v{T+10}
    v_lshlrev_b32 v{T+14}, 4, v{vSrc}
    v_lshlrev_b32 v{T+15}, 4, v{T+13}
    s_waitcnt vmcnt({vm_after(['pos'])})
    ''')
    stamp()
    real_a = a
    p3q = []
    for it in P3:
        p3q += item_groups(it)
    cnt = [0]
    GAP = int(opts.get('p3gap', 8))
    def a(txt):
        for ln in txt.split('\n'):
            ln = ln.strip()
            if not ln:
                continue
            real_a(ln)
            cnt[0] += 1
            if cnt[0] % GAP == 0 and p3q:
                tag, g = p3q.pop(0)
                for x in g:
                    real_a(x)
                VM.append(tag)
    x, y, z = U, U + 1, U + 2
    a(f'''
    v_alignbit_b32 v{U+8}, v{T+17}, v{T+16}, v{T+14}
    v_lshrrev_b32 v{U+9}, v{T+14}, v{T+17}
    v_alignbit_b32 v{U+10}, v{T+19}, v{T+18}, v{T+15}
    v_lshrrev_b32 v{U+11}, v{T+15}, v{T+19}
    v_lshlrev_b32 v{x}, 16, v{U+8}
    v_and_b32 v{y}, {M}, v{U+8}
    v_lshlrev_b32 v{z}, 16, v{U+9}
    v_lshlrev_b32 v{U+3}, 16, v{U+10}
    v_and_b32 v{U+4}, {M}, v{U+10}
    v_lshlrev_b32 v{U+5}, 16, v{U+11}
    v_sub_f32 v{x}, v{x}, v{U+3}
    v_sub_f32 v{y}, v{y}, v{U+4}
    v_sub_f32 v{z}, v{z}, v{U+5}
    v_cvt_pk_bf16_f32 v{x}, 0, v{x}
    v_cvt_pk_bf16_f32 v{y}, 0, v{y}
    v_cvt_pk_bf16_f32 v{z}, 0, v{z}
    v_mul_f32 v{U+3}, v{x}, v{x}
    v_mul_f32 v{U+4}, v{y}, v{y}
    v_mul_f32 v{U+5}, v{z}, v{z}
    v_cvt_pk_bf16_f32 v{U+3}, 0, v{U+3}
    v_cvt_pk_bf16_f32 v{U+4}, 0, v{U+4}
    v_cvt_pk_bf16_f32 v{U+5}, 0, v{U+5}
    v_add_f32 v{U+3}, v{U+3}, v{U+4}
    v_add_f32 v{U+3}, v{U+3}, v{U+5}
    v_cvt_pk_bf16_f32 v{U+3}, 0, v{U+3}
    v_add_f32 v{U+3}, 0x322bcc77, v{U+3}
    v_cvt_pk_bf16_f32 v{U+3}, 0, v{U+3}
    v_sqrt_f32 v{U+3}, v{U+3}
    v_cvt_pk_bf16_f32 v{U+3}, 0, v{U+3}
    v_rcp_f32 v{U+4}, v{U+3}
    ''')
    d, rd = U + 3, U + 4
    X = U + 12
    P = T + 24
    for k in range(16):
        a(f'v_mul_f32 v{X+k}, s{FR+k}, v{d}')
    a(f'''
    v_mul_f32 v{U+5}, 0x40490fdb, v{d}
    v_mul_f32 v{x}, v{x}, v{rd}
    v_cvt_pk_bf16_f32 v{U+5}, 0, v{U+5}
    v_mul_f32 v{y}, v{y}, v{rd}
    v_mul_f32 v{U+5}, 0x3e4ccccd, v{U+5}
    v_mul_f32 v{z}, v{z}, v{rd}
    v_cvt_pk_bf16_f32 v{U+5}, 0, v{U+5}
    v_cvt_pk_bf16_f32 v{x}, 0, v{x}
    v_mul_f32 v{U+5}, 0.15915494, v{U+5}
    v_cvt_pk_bf16_f32 v{y}, 0, v{y}
    v_cos_f32 v{U+5}, v{U+5}
    v_cvt_pk_bf16_f32 v{z}, 0, v{z}
    v_cvt_pk_bf16_f32 v{U+5}, 0, v{U+5}
    ds_write_b32 v{tWS}, v{x}
    v_add_f32 v{U+5}, 1.0, v{U+5}
    ds_write_b32 v{tWS}, v{y} offset:128
    v_cvt_pk_bf16_f32 v{U+5}, 0, v{U+5}
    ds_write_b32 v{tWS}, v{z} offset:256
    v_mul_f32 v{U+5}, 0.5, v{U+5}
    v_cmp_gt_f32 vcc, 0x40a00000, v{d}
    v_cndmask_b32 v{U+5}, 0, v{U+5}, vcc
    v_mul_f32 v{rd}, v{rd}, v{U+5}
    ''')
    for k in range(16):
        a(f'v_cvt_pk_bf16_f32 v{X+k}, 0, v{X+k}')
    for k in range(16):
        a(f'v_mul_f32 v{X+k}, 0.15915494, v{X+k}')
    for k in range(16):
        a(f'v_sin_f32 v{X+k}, v{X+k}')
    for k in range(16):
        a(f'v_mul_f32 v{X+k}, v{X+k}, v{rd}')
    for k in range(8):
        a(f'v_cvt_pk_bf16_f32 v{P+k}, v{X+2*k}, v{X+2*k+1}')
    for g in range(4):
        a(f'ds_write_b64 v{tWR}, {vr(P+2*g,2)} offset:{128*g}')
    a = real_a
    for tag, g in p3q:
        for x in g:
            a(x)
        VM.append(tag)
    def acc_init_static():
        for i in range(8):
            a(f'''v_lshlrev_b32 v{ACC+2*i}, 16, v{OWN+i}
                  v_and_b32 v{ACC+2*i+1}, {M}, v{OWN+i}''')
    nA = vm_after(['d2']); nB = vm_after(['d1']) - nA - 4
    assert nA % 4 == 0 and nB % 4 == 0
    for j in (1, 2):
        assert vm_after(['o%d' % j]) > vm_after(['d%d' % j])
    tail_blocks = []
    a(f'''
    s_mov_b32 s{sG}, 0
    s_and_b32 s{sGend}, s{sGP}, 0x1ff
    s_mov_b32 s{sTe}, 32
    s_mov_b32 s{sStA}, {nA//4}
    s_mov_b32 s{sStB}, {nB//4}
    s_mov_b32 s{sStC}, 0
    s_mov_b32 s{sX}, 0x8000
    s_mov_b32 s{sOk}, 0
    s_mov_b32 s{sOwnN}, {NPRE}
    s_cmp_lg_u32 s{sMode}, 0
    s_cbranch_scc1 kb_slow_own
    kb_slow_ownr:
    ''')
    def blk_so():
        a('''kb_slow_own:
             s_waitcnt vmcnt(0)''')
        for j in range(7):
            own_load(j, ' sc0 sc1')
        a(f'''s_mov_b32 s{sOwnN}, 7
              s_mov_b32 s{sOk}, 0x7fffffff
              s_waitcnt vmcnt(0)
              s_branch kb_slow_ownr''')
    tail_blocks.append(blk_so)
    stamp()
    a(f's_waitcnt vmcnt({vm_after(["o0"])})')
    acc_init_static()
    a(f'''
    s_cmp_ge_u32 s{sW}, {opts.get('bfrom', 4)}
    s_waitcnt vmcnt({vm_after(['d0', 'w', 'o0'])}) lgkmcnt(0)
    s_cbranch_scc1 kb_B_entry
    ''')
    PG, PM = int(opts.get('pg', 3)), int(opts.get('pm', 0))

    class LQ:
        def __init__(self):
            self.q = []
        def issue(self, tag, txt):
            if len(self.q) >= 15:
                a('s_waitcnt lgkmcnt(8)'); self.q = self.q[-8:]
            a(txt); self.q.append(tag)
        def need(self, *tags):
            idx = [i for i, t in enumerate(self.q) if t in tags]
            if not idx:
                return
            last = max(idx)
            a(f's_waitcnt lgkmcnt({len(self.q)-1-last})')
            self.q = self.q[last + 1:]
    def gemm(t, s):
        H = HA if t == 0 else HB
        out = []
        for b in range(3):
            c = '0' if s == 0 else vr(PHI[t] + 4 * b, 4)
            out.append(f'v_mfma_f32_16x16x32_bf16 {vr(PHI[t]+4*b,4)}, {vr(H+4*s,4)}, {vr(W2+16*b+4*s,4)}, {c}')
        return out
    def wf(t):
        return [f'v_mfma_f32_16x16x16_bf16 {vr(WRD+4*b,4)}, {vr(RBF+2*t,2)}, {vr(WR+2*b,2)}, 0' for b in range(3)]
    def sm(k):
        a(f'v_mfma_f32_16x16x32_bf16 {vr(ACC+4*k,4)}, {vr(MSG[k],4)}, {vr(SEL,4)}, {vr(ACC+4*k,4)}')
    def selb():
        for i in range(4):
            a(f'v_xor_b32 v{SEL+i}, v{DL+i}, v{vKey}')
        for i in range(4):
            a(f'v_pk_mad_i16 v{SEL+i}, v{SEL+i}, s{sK8}, v{vOne} clamp')
    def vreads(t):
        return [('V%d' % t, f'ds_read_b64_tr_b16 {vr(V+12*t+4*c+2*p,2)}, v{vAV} offset:{4096*t+1024*(c+1)+512*p}') for c in range(3) for p in range(2)]
    def issue_head(X_, lq):
        a(f'''
        s_cmp_lt_u32 s{sOwnN}, 7
        s_cbranch_scc1 kb_own{X_}
        kb_ownr{X_}:
        ''')
        def blk():
            a(f'''kb_own{X_}:
                  s_add_u32 s{sStA}, s{sStA}, 1
                  s_add_u32 s{sOwnN}, s{sOwnN}, 1''')
            for j in range(NPRE, 7):
                if j < 6:
                    a(f'''s_cmp_lg_u32 s{sOwnN}, {j+1}
                          s_cbranch_scc1 kb_own{X_}_{j+1}''')
                own_load(j)
                a(f's_branch kb_ownr{X_}')
                if j < 6:
                    a(f'kb_own{X_}_{j+1}:')
        tail_blocks.append(blk)
        for x in dma_addr(vSrcB):
            a(x)
        p0 = dma_piece(0)
        a(p0[0])
        lq.issue('bp', f'ds_bpermute_b32 v{vSrcB}, v{vBP}, v{vSrc}')
        for x in p0[1:]:
            a(x)
        a(f'''
        s_mov_b32 s{sStC}, s{sStB}
        s_mov_b32 s{sStB}, s{sStA}
        s_mov_b32 s{sStA}, 0
        v_add_u32 v{vBP}, 16, v{vBP}
        ''')
    def wait_tree(X_, dest):
        a(f'''
        s_add_u32 s{sT1}, s{sStA}, s{sStB}
        s_add_u32 s{sT1}, s{sT1}, s{sStC}
        ''')
        def rec(lo, hi):
            if hi - lo == 1:
                a(f'''s_waitcnt vmcnt({8+4*lo})
                      s_branch {dest}''')
                return
            mid = (lo + hi) // 2
            a(f'''s_cmp_ge_u32 s{sT1}, {mid}
                  s_cbranch_scc1 kb_w{X_}_{mid}_{hi}''')
            rec(lo, mid)
            a(f'kb_w{X_}_{mid}_{hi}:')
            rec(mid, hi)
        rec(0, 8)
    p0_, p1_ = PHI
    DSL = [int(x) for x in opts.get('dsl', '6,13,20').split(',')]
    def G(X_, with_issue, lq):
        for s in range(4):
            lq.issue('HA%d' % s, f'ds_read_b128 {vr(HA+4*s,4)}, v{vAH+s}')
        lq.issue('B0', f'ds_read_b64 {vr(RBF,2)}, v{vAR}')
        if with_issue:
            issue_head(X_, lq)
        mf = []
        for s in range(4):
            mf += [(m, 'HA%d' % s) for m in gemm(0, s)]
        mf += [(m, 'B0') for m in wf(0)]
        for s in range(4):
            mf += [(m, 'B1') for m in gemm(1, s)]
        mf += [(m, 'B1') for m in wf(1)]
        ls = {i: [] for i in range(30)}
        for s in range(4):
            ls[s].append(('HB%d' % s, f'ds_read_b128 {vr(HB+4*s,4)}, v{vAH+s} offset:4096'))
        ls[4].append(('B1', f'ds_read_b64 {vr(RBF+2,2)}, v{vAR} offset:512'))
        for i, x in enumerate(vreads(0)):
            ls[5 + i].append(x)
        for c in range(3):
            ls[12 + c].append(('R0', f'ds_read_b128 {vr(RR[0]+4*c,4)}, v{vAS} offset:{128*c}'))
        for i, x in enumerate(vreads(1)):
            ls[15 + i].append(x)
        ls[21].append(('DL', f'ds_read_b128 {vr(DL,4)}, v{vAS} offset:384'))
        for c in range(3):
            ls[24 + c].append(('R1', f'ds_read_b128 {vr(RR[1]+4*c,4)}, v{vAS} offset:{128*c+16}'))
        vs = {i: [] for i in range(30)}
        for s in range(4):
            vs[4 + s].append(f'v_xor_b32 v{vAH+s}, s{sX}, v{vAH+s}')
        vs[8].append(f'v_add_u32 v{vAR}, 1024, v{vAR}')
        late = [f'v_mul_f32 v{p0_+i}, v{p0_+i}, v{WRD+i}' for i in (8, 9, 10, 11, 0, 1, 2, 3, 4, 5, 6, 7)]
        late += [f'v_cvt_pk_bf16_f32 v{MSG[0]}, v{p0_}, v{p0_+1}', f'v_cvt_pk_bf16_f32 v{MSG[0]+1}, v{p0_+2}, v{p0_+3}']
        late += [('R0', f'v_mul_f32 v{RR[0]+4*c+i}, v{RR[0]+4*c+i}, v{p0_+8+i}') for c in range(3) for i in range(4)]
        sl = 17
        while late:
            vs[sl] += late[:2]; late = late[2:]; sl += 1
        assert sl <= 30
        vs[21].append(f'v_xor_b32 v{vAV}, s{sX}, v{vAV}')
        vs[27].append(f'v_add_u32 v{vAS}, 512, v{vAS}')
        for i, (m, tag) in enumerate(mf):
            lq.need(tag)
            pc = None
            if with_issue and i in DSL:
                pc = dma_piece(1 + DSL.index(i)); a(pc[0])
            a(m)
            if pc:
                for x in pc[1:]:
                    a(x)
            for tag2, x in ls[i]:
                lq.issue(tag2, x)
            for x in vs[i]:
                if isinstance(x, tuple):
                    lq.need(x[0]); x = x[1]
                a(x)
        a(f's_xor_b32 s{sX}, s{sX}, 0x10000')
    MSL = [int(x) for x in opts.get('msl', '12,28,44').split(',')]
    def Mphase(lq, with_dma):
        p0, p1 = PHI
        cnt = [0]
        def v(x):
            if with_dma and cnt[0] in MSL:
                pc = dma_piece(1 + MSL.index(cnt[0]))
                a(pc[0]); a(x)
                for y in pc[1:]:
                    a(y)
            else:
                a(x)
            cnt[0] += 1
        lq.need('V0', 'DL')
        for i in range(4):
            v(f'v_xor_b32 v{SEL+i}, v{DL+i}, v{vKey}')
        for i in range(12):
            v(f'v_fmac_f32 v{RR[0]+i}, v{V+i}, v{p0+4+i%4}')
        for i in range(4):
            v(f'v_pk_mad_i16 v{SEL+i}, v{SEL+i}, s{sK8}, v{vOne} clamp')
        for i in range(12):
            v(f'v_mul_f32 v{p1+i}, v{p1+i}, v{WRD+i}')
        v(f'v_cvt_pk_bf16_f32 v{MSG[0]+2}, v{p1}, v{p1+1}')
        v(f'v_cvt_pk_bf16_f32 v{MSG[0]+3}, v{p1+2}, v{p1+3}')
        lq.need('V1', 'R1')
        for c in range(3):
            for i in range(4):
                v(f'v_mul_f32 v{RR[1]+4*c+i}, v{RR[1]+4*c+i}, v{p1+8+i}')
            sm(c)
            for i in range(4):
                v(f'v_fmac_f32 v{RR[1]+4*c+i}, v{V+12+4*c+i}, v{p1+4+i}')
            for t in range(2):
                for h in range(2):
                    v(f'v_cvt_pk_bf16_f32 v{MSG[1+c]+2*t+h}, v{RR[t]+4*c+2*h}, v{RR[t]+4*c+2*h+1}')
        sm(3)
        assert cnt[0] > max(MSL)
    ST = PHI[0]
    def Sflush(X_):
        a(f'''
        kb_segend{X_}:
        s_cmp_gt_u32 s{sGend}, s{sTe}
        s_cbranch_scc1 kb_next{X_}
        kb_flush{X_}:
        s_add_u32 s{sG}, s{sG}, 8
        s_lshl_b32 s{sT0}, s{sG}, 2
        s_add_u32 s{sStA}, s{sStA}, 1
        s_nop 3
        ''')
        for i in range(8):
            a(f'v_cvt_pk_bf16_f32 v{ST+i}, v{ACC+2*i}, v{ACC+2*i+1}')
        for b in range(4):
            if opts.get('nostore'):
                a(f'v_mov_b32 v{vOut}, 0x40000000')
            a(f'buffer_store_dwordx2 {vr(ST+2*b,2)}, v{vOut}, {sr(S_OUT)}, 0 offen offset:{256*b}')
        a(f'''
        s_cmp_eq_u32 s{sG}, 56
        s_cbranch_scc1 kb_done
        s_cmp_gt_u32 s{sT0}, s{sOk}
        s_cbranch_scc1 kb_fb{X_}
        kb_fbr{X_}:
        s_set_gpr_idx_on s{sG}, 0x2
        s_nop 1
        ''')
        def blk():
            a(f'''kb_fb{X_}:
                  s_cmp_lg_u32 s{sT0}, s{sTe}
                  s_cbranch_scc1 kb_fb1{X_}
                  s_lshl_b32 s{sT1}, s{sOwnN}, 5
                  s_cmp_ge_u32 s{sT0}, s{sT1}
                  s_cbranch_scc1 kb_fb1{X_}''')
            wait_tree('F' + X_, f'kb_fbr{X_}')
            a(f'''kb_fb1{X_}:
                  s_cmp_ge_u32 s{sOwnN}, 7
                  s_cbranch_scc1 kb_fb2{X_}''')
            for j in range(NPRE, 7):
                own_load(j)
            a(f'''kb_fb2{X_}:
                  s_mov_b32 s{sOwnN}, 7
                  s_mov_b32 s{sOk}, 0x7fffffff
                  s_waitcnt vmcnt(0)
                  s_branch kb_fbr{X_}''')
        tail_blocks.append(blk)
        acc_init_static()
        a(f'''
        s_set_gpr_idx_off
        v_add_u32 v{vKey}, 0x001c001c, v{vKey}
        v_add_u32 v{vOut}, 14336, v{vOut}
        s_lshr_b64 s[{sGP}:{sGP+1}], s[{sGP}:{sGP+1}], 9
        s_mov_b32 s{sGst}, s{sGend}
        s_and_b32 s{sGend}, s{sGP}, 0x1ff
        s_cmp_ge_u32 s{sGst}, s{sTe}
        s_cbranch_scc1 kb_next{X_}
        s_cmp_eq_u32 s{sGst}, s{sGend}
        s_cbranch_scc1 kb_flush{X_}
        ''')
        selb()
        for k in range(4):
            sm(k)
        a(f'''
        s_branch kb_segend{X_}
        kb_tail{X_}:
        s_mov_b32 s{sTe}, 0x7fffffff
        s_branch kb_flush{X_}
        kb_next{X_}:
        s_cmp_ge_u32 s{sTe}, s{sTot}
        s_cbranch_scc1 kb_tail{X_}
        s_max_u32 s{sOk}, s{sOk}, s{sTe}
        s_add_u32 s{sTe}, s{sTe}, 32
        ''')
    a('kb_loopA:')
    stamp()
    a(f'''s_setprio {PG}
          s_barrier''')
    stamp()
    lq = LQ()
    G('A', True, lq)
    a(f's_setprio {PM}')
    fstamp()
    Mphase(lq, False)
    assert not lq.q
    fstamp()
    Sflush('A')
    fstamp()
    wait_tree('A', 'kb_loopA')
    a('''kb_B_entry:
         s_barrier''')
    lq = LQ()
    issue_head('B0', lq)
    for k in range(1, 4):
        for x in dma_piece(k):
            a(x)
    a('kb_loopB:')
    a(f's_setprio {PG}')
    fstamp()
    assert lq.q == ['bp']
    G('B', False, lq)
    a(f's_setprio {PM}')
    fstamp()
    a(f'''
    s_cmp_ge_u32 s{sTe}, s{sTot}
    s_cbranch_scc1 kb_B_m0
    ''')
    sv = list(lq.q)
    lq.need('V1')
    lq.q = sv
    a(f's_max_u32 s{sOk}, s{sOk}, s{sTe}')
    wait_tree('B', 'kb_B_bar')
    a(f'''kb_B_m0:
         s_xor_b32 s{sDma}, s{sDma}, 0x8000
         s_branch kb_B_m
         kb_B_bar:''')
    stamp()
    a('s_barrier')
    stamp()
    a('kb_B_m:')
    issue_head('B', lq)
    fstamp()
    Mphase(lq, True)
    assert lq.q == ['bp']
    fstamp()
    Sflush('B')
    a('s_branch kb_loopB')
    for b in tail_blocks:
        b()
    a(f'''
    kb_go_slow:
    s_mov_b32 s{sMode}, 1
    s_mov_b32 s{sI}, 0
    s_mov_b32 s{sQ}, 0
    s_mov_b32 s{sC}, -1
    s_mov_b32 s{sLen}, 0
    s_mov_b32 s{sBase}, 0
    s_branch kb_copy
    kb_empty:
    s_cmp_lg_u32 s{sMode}, 0
    s_cbranch_scc1 kb_done
    kb_copy:
    s_mov_b64 s[{sGP}:{sGP+1}], 0
    s_mov_b32 s{sG}, 0
    s_mov_b32 s{sGend}, 0
    s_mov_b32 s{sTot}, 0
    s_mov_b32 s{sStA}, 0
    s_mov_b32 s{sOwnN}, 7
    s_mov_b32 s{sOk}, 0x7fffffff
    ''')
    for j in range(7):
        own_load(j)
    a('s_waitcnt vmcnt(0)')
    acc_init_static()
    a(f'''
    s_branch kb_tailA
    kb_done:
    ''')
    if STAMP:
        stamp()
        a('s_waitcnt vmcnt(0)')
        stamp()
        srd(a, S_POS, 24, 25, 0x100000, 0x1000000)
        a(f'''v_lshlrev_b32 v{T}, 2, v0
              s_lshl_b32 s{sT0}, s2, 11
              v_add_u32 v{T}, s{sT0}, v{T}
              buffer_store_dword v{vStamp}, v{T}, {sr(S_POS)}, 0 offen''')
    a(f'''
    s_waitcnt vmcnt(4)
    s_cmp_eq_u32 s{sMode}, 0
    s_cbranch_scc1 kb_exit
    s_waitcnt vmcnt(0) lgkmcnt(0)
    s_barrier
    v_and_b32 v{T+8}, 7, v0
    v_lshlrev_b32 v{T+8}, 2, v{T+8}
    v_add_u32 v{T+8}, {L_GCNT}, v{T+8}
    v_mov_b32 v{T+9}, 0
    ds_write_b32 v{T+8}, v{T+9}
    s_mov_b32 s{S_BASE}, s20
    s_mov_b32 s{S_BASE+1}, s21
    s_cmp_ge_u32 s{sI}, 4
    s_cbranch_scc1 kb_mode2
    s_lshl_b32 s{sT0}, s2, 13
    s_add_u32 s{sT0}, s{sT0}, {WS_CELL - WSO}
    v_lshl_add_u32 v{T+4}, v0, 4, s{sT0}
    v_and_b32 v{T+6}, -64, v{T+4}
    s_lshl_b32 s{sT1}, s{sI}, 2
    buffer_load_dword v{CE+4}, v{T+6}, {sr(S_WS)}, 0 offen
    buffer_load_dword v{CE}, v{T+4}, {sr(S_WS)}, s{sT1} offen
    v_lshrrev_b32 v{T+3}, 7, v0
    v_cmp_eq_u32 s[{GE}:{GE+1}], s{sQ}, v{T+3}
    v_and_b32 v{T+5}, 3, v0
    v_add_u32 v{T+5}, s{sT1}, v{T+5}
    v_lshlrev_b32 v{T+5}, 2, v{T+5}
    v_cmp_ne_u32 vcc, 0, v{T+5}
    s_and_b64 s[{GE}:{GE+1}], vcc, s[{GE}:{GE+1}]
    s_waitcnt vmcnt(0)
    v_and_b32 v{CE+4}, 0xffff, v{CE+4}
    v_cmp_lt_u32 vcc, v{T+5}, v{CE+4}
    s_and_b64 s[{GE}:{GE+1}], vcc, s[{GE}:{GE+1}]
    s_add_u32 s{sQ}, s{sQ}, 1
    s_lshr_b32 s{sT0}, s{sQ}, 2
    s_add_u32 s{sI}, s{sI}, s{sT0}
    s_and_b32 s{sQ}, s{sQ}, 3
    s_branch kb_round
    kb_mode2:
    s_cmp_lt_u32 s{sBase}, s{sLen}
    s_cbranch_scc1 kb_m2_go
    s_add_u32 s{sC}, s{sC}, 1
    s_cmp_ge_u32 s{sC}, {NCHUNK}
    s_cbranch_scc1 kb_exit
    s_lshl_b32 s{sT0}, s2, 13
    s_lshl_b32 s{sT1}, s{sC}, 6
    s_add_u32 s{sT0}, s{sT0}, s{sT1}
    s_add_u32 s{sT0}, s{sT0}, {WS_CELL}
    s_load_dword s{sT1}, s[24:25], s{sT0}
    s_waitcnt lgkmcnt(0)
    s_and_b32 s{sT2}, s{sT1}, 0xffff
    s_lshr_b32 s{sLen}, s{sT1}, 16
    s_cmp_gt_u32 s{sT2}, 64
    s_cselect_b32 s{sLen}, s{sLen}, 0
    s_mov_b32 s{sBase}, 0
    s_branch kb_mode2
    kb_m2_go:
    v_add_u32 v{T+3}, s{sBase}, v0
    v_cmp_gt_u32 s[{GE}:{GE+1}], s{sLen}, v{T+3}
    v_cmp_gt_u32 vcc, 128, v0
    s_and_b64 s[{GE}:{GE+1}], vcc, s[{GE}:{GE+1}]
    s_mov_b64 vcc, s[{GE}:{GE+1}]
    s_mul_i32 s{sT0}, s{sC}, {OVF_STRIDE}
    s_add_u32 s{sT0}, s{sT0}, {WS_OVF - WSO}
    v_lshl_add_u32 v{T+4}, v{T+3}, 2, s{sT0}
    v_mov_b32 v{T+5}, 0x40000000
    v_cndmask_b32 v{T+4}, v{T+5}, v{T+4}, vcc
    buffer_load_dword v{CE}, v{T+4}, {sr(S_WS)}, 0 offen
    s_waitcnt vmcnt(0)
    v_lshrrev_b32 v{T+3}, 16, v{CE}
    v_subrev_u32 v{T+3}, s{sNode0}, v{T+3}
    v_cmp_gt_u32 vcc, 98, v{T+3}
    s_and_b64 s[{GE}:{GE+1}], vcc, s[{GE}:{GE+1}]
    s_add_u32 s{sBase}, s{sBase}, 128
    kb_round:
    s_mov_b64 s[{GE+2}:{GE+3}], 0
    v_mov_b32 v{CE+4}, 0
    ''')
    out_base()
    a(f'''
    s_waitcnt lgkmcnt(0)
    s_barrier
    s_branch kb_propose
    kb_exit:
    s_endpgm
    ''')
    return L_END
```

```python
from consts import *

def srd(a, r, lo, hi, nbytes, off=0):
    if off:
        a(f'''s_add_u32 s{r}, s{lo}, {off}
              s_addc_u32 s{r+1}, s{hi}, 0''')
    else:
        a(f'''s_mov_b32 s{r}, s{lo}
              s_mov_b32 s{r+1}, s{hi}''')
    a(f'''s_mov_b32 s{r+2}, {nbytes}
          s_mov_b32 s{r+3}, 0x00020000''')

NP = 19
L_OVC = 1024
L_TAB = 2048
assert L_TAB + 8 * NP * 1024 <= KA_LDS

def gen_ka(a, opts={}):
    STAMP = opts.get('stampa')
    cnt = [0]
    def stamp(reset=False):
        if reset:
            cnt[0] = 1
        if STAMP:
            a(f'''s_memrealtime s[80:81]
                 s_waitcnt lgkmcnt(0)
                 v_writelane_b32 v160, s80, {cnt[0]}''')
            cnt[0] += 1
    def stamp_out():
        if STAMP:
            stamp()
            a('s_waitcnt vmcnt(0)')
            stamp()
            srd(a, 76, 20, 21, 0x100000, 0x1100000)
            a('''v_lshlrev_b32 v161, 2, v0
                 s_lshl_b32 s82, s2, 12
                 v_add_u32 v161, s82, v161
                 buffer_store_dword v160, v161, s[76:79], 0 offen''')
    PFE, PFH, PFN = int(opts.get('pfe', 0)), int(opts.get('pfh', 0)), int(opts.get('pfn', 2))
    def pf():
        srd(a, 68, 4, 5, 25600000)
        a('''s_mul_i32 s72, s2, 100352
             v_lshlrev_b32 v144, 7, v0
             buffer_load_dword v145, v144, s[68:71], s72 offen''')
        if PFN > 1:
            a('''s_add_u32 s72, s72, 65536
                 v_mov_b32 v146, 0x40000000
                 v_cmp_gt_u32 vcc, 272, v0
                 v_cndmask_b32 v144, v146, v144, vcc
                 buffer_load_dword v146, v144, s[68:71], s72 offen''')
    a(f'''
    .globl ka_kernel
    .p2align 8
    .type ka_kernel,@function
    ka_kernel:
    s_load_dwordx16 s[4:19], s[0:1], 0
    s_load_dwordx2 s[20:21], s[0:1], 80
    ''')
    stamp()
    a(f'''
    s_cmp_ge_u32 s2, {KA_GRID}
    s_cbranch_scc1 ka_exit
    v_lshrrev_b32 v1, 6, v0
    v_readfirstlane_b32 s23, v1
    v_and_b32 v1, 63, v0
    s_lshr_b32 s62, s2, 4
    s_lshl_b32 s22, s62, 3
    s_and_b32 s3, s2, 7
    s_or_b32 s22, s22, s3
    s_bitcmp1_b32 s2, 3
    s_cbranch_scc1 ka_h
    ''')
    SV = [4, 5, 6, 7, 8, 9, 10]
    DV = [12, 13, 14, 15, 16, 17, 18]
    a(f"""
    s_mul_i32 s44, s22, {CHUNK*4}
    v_lshl_add_u32 v20, v0, 4, s44
    s_add_u32 s45, s44, {2048*4}
    v_lshl_add_u32 v21, v0, 3, s45
    s_add_u32 s45, s44, {3072*4}
    v_lshl_add_u32 v22, v0, 2, s45
    v_mov_b32 v2, 0x40000000
    v_cmp_gt_u32 vcc, {CHUNK-3072}, v0
    v_cndmask_b32 v22, v2, v22, vcc
    v_lshlrev_b32 v2, 4, v1
    s_mul_i32 s45, s23, {NP*1024}
    s_add_u32 s46, s45, {NP*1024}
    s_mul_i32 s47, s62, {NP}
    s_lshr_b32 s47, s47, 4
    s_lshl_b32 s47, s47, 10
    s_add_u32 s47, s47, s45
    s_waitcnt lgkmcnt(0)
    """)
    srd(a, 32, 6, 7, 150000)
    srd(a, 24, 8, 9, 1600000)
    srd(a, 28, 10, 11, 1600000)
    PRE = int(opts.get('pre', 2))
    for i in range(NP):
        if i == PRE:
            nte = ' nt' if opts.get('nte', '1') == '1' else ''
            a(f"""
            buffer_load_dwordx4 v[4:7], v20, s[24:27], 0 offen{nte}
            buffer_load_dwordx4 v[12:15], v20, s[28:31], 0 offen{nte}
            buffer_load_dwordx2 v[8:9], v21, s[24:27], 0 offen{nte}
            buffer_load_dwordx2 v[16:17], v21, s[28:31], 0 offen{nte}
            buffer_load_dword v10, v22, s[24:27], 0 offen{nte}
            buffer_load_dword v18, v22, s[28:31], 0 offen{nte}
            s_barrier
            """)
        a(f"""s_add_u32 m0, s47, {L_TAB}
              buffer_load_dwordx4 v2, s[32:35], s47 offen lds""")
        if i < NP - 1:
            a(f"""s_add_u32 s47, s47, 1024
                  s_cmp_eq_u32 s47, s46
                  s_cselect_b32 s47, s45, s47""")
    if PFE == 1:
        pf()
    XE = PFN if PFE == 1 else 0
    stamp(True)
    a(f"""
    v_lshlrev_b32 v3, 2, v0
    v_mov_b32 v2, 4
    v_cmp_gt_u32 vcc, 256, v0
    v_cndmask_b32 v23, 0, v2, vcc
    ds_write_b32 v3, v23
    v_cmp_gt_u32 s[46:47], s26, v20
    v_cmp_gt_u32 s[54:55], s26, v21
    v_cmp_gt_u32 s[58:59], s26, v22
    s_mov_b64 s[48:49], s[46:47]
    s_mov_b64 s[50:51], s[46:47]
    s_mov_b64 s[52:53], s[46:47]
    s_mov_b64 s[56:57], s[54:55]
    """)
    srd(a, 36, 20, 21, CELL_BYTES, WS_CELL)
    srd(a, 40, 20, 21, OVF_BYTES, WS_OVF)
    a(f"""
    s_mov_b32 s44, 0xffff0000
    s_mov_b32 s45, 0x41c28000
    s_mov_b32 s64, 0x0000bf80
    s_mov_b32 s65, 0xbf800000
    s_movk_i32 s66, {L_TAB}
    s_waitcnt vmcnt({NP-PRE+XE})
    """)
    stamp()
    REC = [64 + k for k in range(7)]
    CA = [80 + k for k in range(7)]
    AS = [88 + k for k in range(7)]
    AD = [96 + k for k in range(7)]
    RK = [104 + k for k in range(7)]
    PS = [24 + 2 * k for k in range(7)]
    PD = [40 + 2 * k for k in range(7)]
    MK = lambda k: f's[{46+2*k}:{47+2*k}]'
    UNAL = opts.get('unal', '0') == '1'
    for k in range(7):
        S, D = SV[k], DV[k]
        a(f"""
        v_mad_u32_u24 v{AS[k]}, v{S}, 6, s66
        v_mad_u32_u24 v{AD[k]}, v{D}, 6, s66
        v_and_b32 v{AS[k]}, -4, v{AS[k]}
        v_and_b32 v{AD[k]}, -4, v{AD[k]}""")
        a(f"""
        v_mul_u32_u24 v56, 10700, v{D}
        v_lshrrev_b32 v56, 20, v56
        v_lshlrev_b32 v{CA[k]}, 2, v56
        v_lshl_or_b32 v{REC[k]}, v{D}, 16, v{S}
        """)
    a(f"""
    s_waitcnt vmcnt({XE}) lgkmcnt(0)
    s_barrier
    """)
    if PFE == 2:
        pf()
    stamp()
    a(f's_mov_b64 exec, {MK(6)}')
    for k in [6, 0, 1, 2, 3, 4, 5]:
        if UNAL:
            a(f"""ds_read_b64 v[{PS[k]}:{PS[k]+1}], v{AS[k]} offset:{L_TAB}
                  ds_read_b64 v[{PD[k]}:{PD[k]+1}], v{AD[k]} offset:{L_TAB}""")
        elif opts.get('b64'):
            a(f"""ds_read_b64 v[{PS[k]}:{PS[k]+1}], v{AS[k]}
                  ds_read_b64 v[{PD[k]}:{PD[k]+1}], v{AD[k]}""")
        else:
            a(f"""ds_read2_b32 v[{PS[k]}:{PS[k]+1}], v{AS[k]} offset1:1
                  ds_read2_b32 v[{PD[k]}:{PD[k]+1}], v{AD[k]} offset1:1""")
        if k == 6:
            a('s_mov_b64 exec, -1')
    if not UNAL:
        for k in range(7):
            a(f"""v_lshlrev_b32 v{SV[k]}, 4, v{SV[k]}
                  v_lshlrev_b32 v{DV[k]}, 4, v{DV[k]}""")
    order = [6, 0, 1, 2, 3, 4, 5]
    def fin(i):
        k = order[i]; t = 56 + 3 * (i & 1)
        a(f"""
        v_mul_f32 v{t}, v{t}, v{t}
        v_fmac_f32 v{t}, v{t+1}, v{t+1}
        v_fmac_f32 v{t}, v{t+2}, v{t+2}
        v_cmp_gt_f32 vcc, s45, v{t}
        s_and_b64 {MK(k)}, {MK(k)}, vcc
        """)
    for i, k in enumerate(order):
        ps, pd = PS[k], PD[k]
        t = 56 + 3 * (i & 1)
        a(f's_waitcnt lgkmcnt({12-2*i})')
        if not UNAL:
            a(f"""
            v_alignbit_b32 v{ps}, v{ps+1}, v{ps}, v{SV[k]}
            v_lshrrev_b32 v{ps+1}, v{SV[k]}, v{ps+1}
            v_alignbit_b32 v{pd}, v{pd+1}, v{pd}, v{DV[k]}
            v_lshrrev_b32 v{pd+1}, v{DV[k]}, v{pd+1}
            """)
        if i:
            fin(i - 1)
        a(f"""
        v_lshlrev_b32 v{t}, 16, v{ps}
        v_and_b32 v{t+1}, s44, v{ps}
        v_lshlrev_b32 v{t+2}, 16, v{ps+1}
        v_dot2_f32_bf16 v{t}, v{pd}, s64, v{t}
        v_dot2_f32_bf16 v{t+1}, v{pd}, s65, v{t+1}
        v_dot2_f32_bf16 v{t+2}, v{pd+1}, s64, v{t+2}
        """)
    fin(6)
    if STAMP == '4': stamp()
    for k in range(7):
        a(f"""s_mov_b64 exec, {MK(k)}
              ds_add_rtn_u32 v{RK[k]}, v{CA[k]}, v2""")
    a(f"""s_mov_b64 exec, -1
         v_and_b32 v3, -4, v0
         v_mov_b32 v12, {L_OVC}
         v_lshrrev_b32 v13, 2, v0
         v_and_b32 v14, 3, v0
         v_lshlrev_b32 v1, 2, v14
         v_lshl_or_b32 v1, v13, 6, v1
         v_add_u32 v1, {L_TAB}, v1
         v_add_u32 v19, 8192, v1
         v_lshlrev_b32 v13, 13, v13
         v_lshl_or_b32 v13, v14, 4, v13
         s_lshl_b32 s3, s22, 6
         v_add_u32 v13, s3, v13
         s_mov_b64 s[60:61], 0
         s_waitcnt lgkmcnt(0)
         s_barrier""")
    stamp()
    for k in range(7):
        a(f"""
        v_cmp_gt_u32 vcc, 64, v{RK[k]}
        v_lshl_add_u32 v{CA[k]}, v{CA[k]}, 4, v{RK[k]}
        s_and_b64 exec, vcc, {MK(k)}
        ds_write_b32 v{CA[k]}, v{REC[k]} offset:{L_TAB}
        s_andn2_b64 {MK(k)}, {MK(k)}, vcc
        s_or_b64 s[60:61], s[60:61], {MK(k)}
        s_mov_b64 exec, -1
        """)
    a(f"""
    s_cmp_eq_u64 s[60:61], 0
    s_cbranch_scc1 ka_e_noovf
    s_mul_i32 s3, s22, {OVF_STRIDE}
    """)
    for k in range(7):
        a(f"""
        s_mov_b64 exec, {MK(k)}
        ds_add_rtn_u32 v57, v12, v2
        s_waitcnt lgkmcnt(0)
        v_add_u32 v57, s3, v57
        buffer_store_dword v{REC[k]}, v57, s[40:43], 0 offen
        """)
    a(f"""
    s_mov_b64 exec, -1
    ka_e_noovf:
    v_cmp_eq_u32 vcc, 0, v14
    s_mov_b32 s3, {128*CELL_WG_STRIDE}
    s_waitcnt lgkmcnt(0)
    s_barrier
    """)
    stamp()
    a(f"""
    ds_read_b32 v16, v12
    ds_read2_b32 v[4:5], v1 offset1:4
    ds_read2_b32 v[6:7], v1 offset0:8 offset1:12
    ds_read_b32 v14, v3
    ds_read2_b32 v[8:9], v19 offset1:4
    ds_read2_b32 v[10:11], v19 offset0:8 offset1:12
    ds_read_b32 v15, v3 offset:512
    s_waitcnt lgkmcnt(3)
    v_lshl_or_b32 v14, v16, 14, v14
    v_cndmask_b32 v4, v4, v14, vcc
    buffer_store_dwordx4 v[4:7], v13, s[36:39], 0 offen
    s_waitcnt lgkmcnt(0)
    v_lshl_or_b32 v15, v16, 14, v15
    v_cndmask_b32 v8, v8, v15, vcc
    buffer_store_dwordx4 v[8:11], v13, s[36:39], s3 offen
    """)
    stamp_out()
    a('s_endpgm')
    a(f'''
    ka_h:
    v_lshrrev_b32 v2, 4, v1
    v_and_b32 v3, 15, v1
    s_cmp_ge_u32 s22, 112
    s_cbranch_scc1 ka_prep
    v_lshlrev_b32 v4, 2, v2
    v_xor_b32 v4, v4, v3
    v_lshlrev_b32 v4, 4, v4
    v_lshl_or_b32 v4, v2, 8, v4
    s_and_b32 s24, s23, 3
    s_lshl_b32 s24, s24, 13
    s_and_b32 s42, s62, 7
    s_lshl_b32 s42, s42, 10
    s_lshl_b32 s26, s23, 5
    s_mul_i32 s27, s22, 224
    s_add_u32 s26, s26, s27
    s_lshl_b32 s25, s23, 13
    s_add_u32 s25, s25, 32768
    v_xor_b32 v7, v2, v3
    v_lshlrev_b32 v7, 4, v7
    v_add_u32 v8, s26, v2
    v_lshl_or_b32 v7, v8, 10, v7
    s_waitcnt lgkmcnt(0)
    ''')
    srd(a, 28, 14, 15, 32768)
    srd(a, 32, 4, 5, 25600000)
    a('''s_or_b32 s3, s24, s42
         s_cmp_lt_u32 s23, 4
         s_cbranch_scc1 ka_hs0''')
    for i in range(7):
        a(f'''s_add_u32 s42, s42, 1024
              s_and_b32 s42, s42, 0x1fff
              s_or_b32 s3, s24, s42
              s_mov_b32 m0, s3
              buffer_load_dwordx4 v4, s[28:31], s3 offen lds''')
    a('''s_waitcnt vmcnt(0)
         s_barrier
         s_cmp_eq_u32 s23, 7
         s_cbranch_scc1 ka_pfexit
         s_branch ka_hs
         ka_hs0:
         s_mov_b32 m0, s3
         buffer_load_dwordx4 v4, s[28:31], s3 offen lds
         ka_hs:''')
    for i in range(8):
        a(f'''v_xor_b32 v{16+i}, {((4*i) & 15) << 4}, v7
              s_add_u32 m0, s25, {1024*i}
              s_movk_i32 s3, {4096*i}
              buffer_load_dwordx4 v{16+i}, s[32:35], s3 offen{' nt' if opts.get('nts', '1') == '1' else ''} lds''')
    if PFH == 1:
        pf()
    XH = PFN if PFH == 1 else 0
    srd(a, 36, 20, 21, 6400000, WS_H)
    a(f'''
    v_lshrrev_b32 v6, 5, v1
    v_bfe_u32 v8, v1, 2, 2
    v_and_b32 v9, 1, v1
    v_lshlrev_b32 v9, 5, v9
    v_and_b32 v10, 1, v2
    v_lshl_or_b32 v9, v10, 4, v9
    v_bfe_u32 v10, v1, 1, 1
    v_lshl_or_b32 v9, v10, 3, v9
    v_lshlrev_b32 v10, 6, v8
    v_xor_b32 v9, v9, v10
    v_lshl_add_u32 v10, v6, 3, v8
    v_lshl_or_b32 v11, v10, 8, v9
    v_xor_b32 v12, 64, v11
    v_xor_b32 v13, 0x80, v11
    v_xor_b32 v14, 0xc0, v11
    v_and_b32 v5, 31, v1
    v_xor_b32 v15, v6, v3
    v_lshlrev_b32 v15, 4, v15
    v_lshl_or_b32 v15, v5, 8, v15
    v_add_u32 v15, s25, v15
    v_add_u32 v5, s26, v5
    v_lshlrev_b32 v5, 8, v5
    v_lshl_or_b32 v5, v6, 5, v5
    s_mov_b32 s40, 0xbfb8aa3b
    s_mov_b32 s41, 0xbfb8aa3b
    ''')
    stamp(True)
    a(f'''
    s_cmp_ge_u32 s23, 4
    s_cbranch_scc1 ka_hnb
    s_waitcnt vmcnt({8+XH})
    s_barrier
    ka_hnb:
    ''')
    stamp()
    BF = 16
    AF = 48
    ACC = [80, 96]
    TM = 112
    OUT = 128
    def rdA(j):
        mt, s = j >> 3, j & 7
        b = AF + 4 * (j % 8)
        for u in range(2):
            a(f'ds_read_b64_tr_b16 v[{b+2*u}:{b+2*u+1}], v{11+mt} offset:{s*4096+u*1024}')
    for j in range(3):
        rdA(j)
    a(f's_waitcnt vmcnt({XH})')
    if PFH == 2:
        pf()
    stamp()
    for s in range(8):
        if s:
            a(f'v_xor_b32 v{TM+s}, {32*s}, v15')
        a(f'ds_read_b128 v[{BF+4*s}:{BF+4*s+3}], v{TM+s if s else 15}')
    def silu(mt):
        A = ACC[mt & 1]
        o = OUT + 8 * (mt & 1)
        out = []
        for h in range(2):
            r = range(4 * h, 4 * h + 4)
            r8 = range(8 * h, 8 * h + 8)
            if opts.get('pk', '0') == '0':
                out += [f'v_mul_f32 v{TM+i}, s40, v{A+i}' for i in r8]
                out += [f'v_exp_f32 v{TM+i}, v{TM+i}' for i in r8]
                out += [f'v_add_f32 v{TM+i}, 1.0, v{TM+i}' for i in r8]
                out += [f'v_rcp_f32 v{TM+i}, v{TM+i}' for i in r8]
                out += [f'v_mul_f32 v{TM+i}, v{TM+i}, v{A+i}' for i in r8]
                out += [f'v_cvt_pk_bf16_f32 v{o+i}, v{TM+2*i}, v{TM+2*i+1}' for i in r]
                out += [f'buffer_store_dwordx4 v[{o+4*h}:{o+4*h+3}], v5, s[36:39], 0 offen offset:{64*mt+16*h}']
                continue
            out += [f'v_pk_mul_f32 v[{TM+2*i}:{TM+2*i+1}], v[{A+2*i}:{A+2*i+1}], s[40:41]' for i in r]
            out += [f'v_exp_f32 v{TM+i}, v{TM+i}' for i in range(8 * h, 8 * h + 8)]
            out += [f'v_pk_add_f32 v[{TM+2*i}:{TM+2*i+1}], v[{TM+2*i}:{TM+2*i+1}], 1.0 op_sel_hi:[1,0]' for i in r]
            out += [f'v_rcp_f32 v{TM+i}, v{TM+i}' for i in range(8 * h, 8 * h + 8)]
            out += [f'v_pk_mul_f32 v[{TM+2*i}:{TM+2*i+1}], v[{TM+2*i}:{TM+2*i+1}], v[{A+2*i}:{A+2*i+1}]' for i in r]
            out += [f'v_cvt_pk_bf16_f32 v{o+i}, v{TM+2*i}, v{TM+2*i+1}' for i in r]
            out += [f'buffer_store_dwordx4 v[{o+4*h}:{o+4*h+3}], v5, s[36:39], 0 offen offset:{64*mt+16*h}']
        return out
    pend = []
    q = ['A0', 'A0', 'A1', 'A1', 'A2', 'A2'] + [f'B{s}' for s in range(8)]
    nextA = 3
    for j in range(32):
        mt, s = j >> 3, j & 7
        while nextA < 32 and nextA <= j + 5 and len(q) <= 13:
            rdA(nextA); q += [f'A{nextA}'] * 2; nextA += 1
        need = [i for i, t in enumerate(q) if t == f'A{j}' or (mt == 0 and t == f'B{s}')]
        if need:
            last = max(need)
            a(f's_waitcnt lgkmcnt({len(q) - 1 - last})')
            q = q[last + 1:]
        b = AF + 4 * (j % 8)
        A = ACC[mt & 1]
        c = '0' if s == 0 else f'v[{A}:{A+15}]'
        a(f'v_mfma_f32_32x32x16_bf16 v[{A}:{A+15}], v[{b}:{b+3}], v[{BF+4*s}:{BF+4*s+3}], {c}')
        if s == 1 and mt > 0:
            pend = silu(mt - 1)
        if pend and s >= 1:
            n = (len(pend) + (7 - s)) // (8 - s)
            for x in pend[:n]:
                a(x)
            pend = pend[n:]
    stamp()
    for x in silu(3):
        a(x)
    stamp_out()
    a('s_endpgm')
    a(f'''
    ka_prep:
    s_sub_u32 s24, s22, 112
    s_lshl_b32 s24, s24, 3
    s_add_u32 s24, s24, s23
    s_waitcnt lgkmcnt(0)
    s_cmp_ge_u32 s24, 120
    s_cbranch_scc1 ka_pfexit
    s_cmp_ge_u32 s24, 96
    s_cbranch_scc1 ka_prep_wr
    s_lshr_b32 s25, s24, 2
    s_and_b32 s26, s24, 3
    s_mul_i32 s27, s25, 0x5556
    s_lshr_b32 s27, s27, 16
    s_mul_i32 s3, s27, 3
    s_sub_u32 s3, s25, s3
    s_lshl_b32 s27, s27, 5
    s_lshl_b32 s3, s3, 8
    s_add_u32 s27, s27, s3
    s_mul_i32 s26, s26, {32*768}
    s_add_u32 s27, s27, s26
    v_mul_u32_u24 v4, {8*768}, v2
    v_lshl_add_u32 v4, v3, 1, v4
    v_add_u32 v4, s27, v4
    s_lshl_b32 s3, s24, 10
    v_lshlrev_b32 v5, 4, v1
    v_add_u32 v5, s3, v5
    v_add_u32 v6, {4*768}, v4
    ''')
    srd(a, 40, 16, 17, 98304)
    srd(a, 44, 20, 21, 98304, WS_W2P)
    for j in range(8):
        a(f'buffer_load_ushort v{12+j}, v{4 if j < 4 else 6}, s[40:43], 0 offen offset:{768*(j&3)}')
    a('s_waitcnt vmcnt(0)')
    for j in range(4):
        a(f'v_lshl_or_b32 v{8+j}, v{13+2*j}, 16, v{12+2*j}')
    a(f'''
    buffer_store_dwordx4 v[8:11], v5, s[44:47], 0 offen
    s_branch ka_pfexit
    ka_prep_wr:
    s_sub_u32 s25, s24, 96
    s_mul_i32 s27, s25, 0x5556
    s_lshr_b32 s27, s27, 16
    s_mul_i32 s3, s27, 3
    s_sub_u32 s3, s25, s3
    s_lshl_b32 s27, s27, 5
    s_lshl_b32 s3, s3, 8
    s_add_u32 s27, s27, s3
    v_mul_u32_u24 v4, {4*768}, v2
    v_lshl_add_u32 v4, v3, 1, v4
    v_add_u32 v4, s27, v4
    s_lshl_b32 s3, s25, 9
    v_lshlrev_b32 v5, 3, v1
    v_add_u32 v5, s3, v5
    ''')
    srd(a, 40, 18, 19, 12288)
    srd(a, 44, 20, 21, 12288, WS_WRP)
    for j in range(4):
        a(f'buffer_load_ushort v{12+j}, v4, s[40:43], 0 offen offset:{768*j}')
    a('s_waitcnt vmcnt(0)')
    for j in range(2):
        a(f'v_lshl_or_b32 v{8+j}, v{13+2*j}, 16, v{12+2*j}')
    a(f'''
    buffer_store_dwordx2 v[8:9], v5, s[44:47], 0 offen
    ka_pfexit:
    ''')
    if PFH:
        pf()
    a(f'''
    ka_exit:
    s_endpgm
    ''')
```

```python
from consts import *
from gen_ka import srd

L_RING = 0
L_TMP = 131072
L_GCNT = L_TMP + 3584
L_RBF = L_GCNT + 64
L_META = L_RBF + 16384
L_END = L_META + 16 * 512
assert L_RBF % 16 == 0 and L_META % 16 == 0 and L_END <= 163840
LISTCAP = 416
PADSRC = 0x100000

class RA:
    def __init__(self, start=1):
        self.n = start
    def __call__(self, k=1, align=1):
        self.n = (self.n + align - 1) // align * align
        r = self.n
        self.n += k
        return r

def vr(b, k):
    return f'v[{b}:{b+k-1}]'

def gen_kb(a, opts):
    R = RA(1)
    vSwzH, vSwzV, vAV, vAR, vAS, vBP, vKey, vOut, vSrc, vSrcB, vOH, vOV, vOne, vOwnA, vStamp = [R() for _ in range(15)]
    vAH = R(4)
    W2 = R(48, 4); WR = R(6, 2); RBF = R(4, 2)
    OWN = R(56, 2); ACC = R(16, 4)
    PHI = [R(12, 4), R(12, 4)]; WRD = R(12, 4)
    HA = R(16, 4); HB = R(16, 4)
    V = R(24, 4)
    assert R.n <= 256, R.n
    RR = [HA, HB]
    DL = HA + 12; SEL = HB + 12
    MSG = [RBF, WRD, WRD + 4, WRD + 8]
    S_SV, S_OUT, S_H, S_POS, S_WS, S_BASE = 28, 32, 36, 40, 44, 48
    sW, sMask, sNode0, sMode, sI, sQ, sC, sLen, sBase = 52, 53, 54, 55, 26, 27, 3, 88, 89
    FR = 64
    GE = 80
    sGP = 90
    sTot, sTe, sGend, sGst, sG, sStA, sStB, sStC, sDma, sX = 92, 93, 94, 95, 96, 97, 98, 99, 100, 101
    s256, s512, s768 = 56, 57, 58
    sT0, sT1, sT2, sT3 = 59, 60, 61, 62
    sW2 = 16
    sOk, sOwnN, sK8, sNeg, sGC, sTM = 8, 9, 10, 11, 14, 15
    WSO = WS_W2P
    sr = lambda b: f's[{b}:{b+3}]'
    M = f's{sMask}'
    STAMP = opts.get('stamp')
    def stamp():
        if STAMP:
            a(f'''{"s_memtime" if STAMP == "2" else "s_memrealtime"} s[22:23]
                 s_waitcnt lgkmcnt(0)
                 s_mov_b32 m0, s63
                 s_nop 1
                 v_writelane_b32 v{vStamp}, s22, m0
                 s_add_u32 s63, s63, 1
                 s_min_u32 s63, s63, 63''')
    def fstamp():
        if opts.get('fine'):
            stamp()
    a(f'''
    .globl kb_kernel
    .p2align 8
    .type kb_kernel,@function
    kb_kernel:
    s_cmp_ge_u32 s2, 256
    s_cbranch_scc1 kb_exit
    s_load_dwordx2 s[24:25], s[0:1], 80
    s_load_dwordx4 s[4:7], s[0:1], 0
    s_load_dwordx2 s[20:21], s[0:1], 64
    s_load_dwordx2 s[12:13], s[0:1], 32
    ''')
    T = PHI[0]
    U = HA
    CE = V
    tL, tN, tG = T, T + 1, T + 2
    def out_base():
        a(f'''
        v_and_b32 v{tN}, 15, v0
        v_bfe_u32 v{tG}, v0, 4, 2
        v_add_u32 v{T+10}, s{sNode0}, v{tN}
        v_lshlrev_b32 v{T+10}, 10, v{T+10}
        v_and_b32 v{T+11}, 1, v{tG}
        v_lshl_add_u32 v{T+10}, v{T+11}, 8, v{T+10}
        v_lshrrev_b32 v{T+11}, 1, v{tG}
        v_lshl_add_u32 v{T+10}, v{T+11}, 4, v{T+10}
        s_lshl_b32 s{sT3}, s{sW}, 5
        v_add_u32 v{T+10}, s{sT3}, v{T+10}
        v_mov_b32 v{T+11}, 0x40000000
        v_cmp_gt_u32 vcc, 14, v{tN}
        v_cndmask_b32 v{vOut}, v{T+11}, v{T+10}, vcc
        v_mov_b32 v{vOwnA}, {'0x40000000' if opts.get('noown') else 'v%d' % vOut}
        ''')
    def own_load(j, flags=''):
        a(f's_mov_b32 s{sT3}, {14336*j}')
        for b in range(2):
            a(f'buffer_load_dwordx4 {vr(OWN+8*j+4*b,4)}, v{vOwnA}, {sr(S_BASE)}, s{sT3} offen offset:{512*b}{flags}')
    a(f'''
    v_lshrrev_b32 v{T+3}, 6, v0
    v_readfirstlane_b32 s{sW}, v{T+3}
    s_lshl_b32 s{sT0}, s2, 13
    s_add_u32 s{sT0}, s{sT0}, {WS_CELL - WSO}
    v_lshl_add_u32 v{T+4}, v0, 4, s{sT0}
    s_mul_i32 s{sNode0}, s2, 98
    s_mov_b32 s63, 0
    ''')
    out_base()
    a('s_waitcnt lgkmcnt(0)')
    stamp()
    srd(a, S_WS, 24, 25, WS_OVF + OVF_BYTES - WSO, WSO)
    a(f'''
    buffer_load_dwordx4 {vr(CE,4)}, v{T+4}, {sr(S_WS)}, 0 offen
    v_and_b32 v{tL}, 63, v0
    v_lshlrev_b32 v{CE+7}, 4, v{tL}
    v_lshlrev_b32 v{CE+8}, 3, v{tL}
    s_mul_i32 s{sW2}, s{sW}, 12288
    s_mul_i32 s{sT2}, s{sW}, 1536
    s_add_u32 s{sT2}, s{sT2}, {WS_WRP - WSO}
    ''')
    srd(a, S_BASE, 4, 5, 25600000)
    VM = []
    def wbatch(first):
        lab = 'kb_wb%d' % first
        a(f'''s_bitcmp{1 if not first else 0}_b32 s2, {opts.get('rotbit', 3)}
              s_cbranch_scc1 {lab}_1''')
        for h in range(2):
            a(f's_add_u32 s{sT1}, s{sW2}, {6144*h}')
            for i in range(6):
                if i == 4:
                    a(f's_add_u32 s{sT1}, s{sT1}, 4096')
                a(f'buffer_load_dwordx4 {vr(W2+4*(6*h+i),4)}, v{CE+7}, {sr(S_WS)}, s{sT1} offen offset:{1024*(i%4)}')
            if h == 0:
                a(f'''s_branch {lab}_e
                      {lab}_1:''')
        a(f'{lab}_e:')
        VM.extend(['w'] * 6)
    def wr_load():
        for i in range(3):
            a(f'buffer_load_dwordx2 {vr(WR+2*i,2)}, v{CE+8}, {sr(S_WS)}, s{sT2} offen offset:{512*i}')
        VM.extend(['w'] * 3)
    SRC3 = V + 12
    def dma_addr(srcb):
        o = []
        if opts.get('fakesrc'):
            o.append(f'v_and_b32 v{srcb}, {opts["fakesrc"]}, v{srcb}')
        o += [f'v_lshl_add_u32 v{vOH}, v{srcb}, 8, v{vSwzH}', f'v_lshl_add_u32 v{vOV}, v{srcb}, 10, v{vSwzV}']
        return o
    def dma_piece(k):
        if opts.get('nodma'):
            return [f's_mov_b32 m0, s{sDma}']
        if k == 0:
            return [f's_mov_b32 m0, s{sDma}', f'buffer_load_dwordx4 v{vOH}, {sr(S_H)}, 0 offen lds']
        o = [f's_add_u32 m0, s{sDma}, {1024*k}', f'buffer_load_dwordx4 v{vOV}, {sr(S_SV)}, s{[0, s256, s512, s768][k]} offen lds']
        if k == 3:
            o += [f's_add_u32 s{sDma}, s{sDma}, 0x8000', f's_and_b32 s{sDma}, s{sDma}, 0x1ffff']
        return o
    def item_groups(it):
        k, j = it[0], int(it[1])
        if k == 'o':
            g = [[f'buffer_load_dwordx4 {vr(OWN+8*j+4*b,4)}, v{vOwnA}, {sr(S_BASE)}, s{sT3} offen offset:{512*b}'] for b in range(2)]
            g[0].insert(0, f's_mov_b32 s{sT3}, {14336*j}')
        else:
            nd = opts.pop('nodma', None)
            g = [dma_piece(q) for q in range(4)]
            if nd:
                opts['nodma'] = nd
            g[0] = dma_addr(SRC3 + j) + g[0]
        return [(it, x) for x in g]
    def emit_items(items):
        for it in items:
            if it == 'w0':
                wbatch(0)
            elif it == 'w1':
                wbatch(1)
            elif it == 'wr':
                wr_load()
            else:
                for tag, g in item_groups(it):
                    for x in g:
                        a(x)
                    VM.append(tag)
    def vm_after(tags):
        last = max(i for i, t in enumerate(VM) if t in tags)
        return len(VM) - 1 - last
    P1 = opts.get('p1', 'w0,wr,o0').split(',')
    P2 = opts.get('p2', 'd0,w1').split(',')
    P3 = opts.get('p3', 'o1,d1,o2,d2').split(',')
    NPRE = 1 + max(int(x[1]) for x in P1 + P2 + P3 if x[0] == 'o')
    assert NPRE >= 3
    VM.append('cell')
    a(f'''
    v_and_b32 v{T+8}, 7, v0
    v_lshlrev_b32 v{T+8}, 2, v{T+8}
    v_add_u32 v{T+8}, {L_GCNT}, v{T+8}
    v_mov_b32 v{T+9}, 0
    ds_write_b32 v{T+8}, v{T+9}
    s_waitcnt lgkmcnt(0)
    s_barrier
    s_load_dwordx8 s[{FR}:{FR+7}], s[12:13], 0
    ''')
    emit_items(P1)
    srd(a, S_SV, 4, 5, 25600000)
    srd(a, S_OUT, 20, 21, 25600000)
    srd(a, S_H, 24, 25, 6400000, WS_H)
    srd(a, S_POS, 6, 7, 150000)
    a(f'''
    s_mov_b32 s{sMask}, 0xffff0000
    s_mov_b32 s{sMode}, 0
    s_movk_i32 s{s256}, 256
    s_movk_i32 s{s512}, 512
    s_movk_i32 s{s768}, 768
    s_mov_b32 s{sK8}, 0x80008000
    s_mul_i32 s{sNeg}, s2, {-147*98}
    s_mov_b32 s{sGC}, {L_GCNT}
    s_mov_b32 s{sTM}, {L_TMP}
    v_mov_b32 v{vOne}, 0x3f803f80
    s_lshr_b32 s{sT0}, s{sW}, 1
    s_lshl_b32 s{sT1}, s{sT0}, 2
    v_add_u32 v{T+3}, s{sT1}, v{tG}
    v_xor_b32 v{T+3}, v{T+3}, v{tN}
    v_lshlrev_b32 v{vSwzH}, 4, v{T+3}
    v_and_b32 v{T+3}, 1, v{tG}
    v_lshl_or_b32 v{T+3}, v{T+3}, 1, s{sT1}
    v_xor_b32 v{T+3}, v{T+3}, v{tN}
    v_lshlrev_b32 v{vSwzV}, 4, v{T+3}
    v_and_b32 v{T+5}, 3, v0
    v_lshlrev_b32 v{T+5}, 2, v{T+5}
    v_cmp_ne_u32 s[{GE+2}:{GE+3}], 0, v{T+5}
    ''')
    stamp()
    a(f'''
    s_waitcnt vmcnt({vm_after(['cell'])}) lgkmcnt(0)
    v_and_b32 v{CE+4}, 0xffff, v{CE}
    v_mov_b32_dpp v{CE+4}, v{CE+4} quad_perm:[0,0,0,0] row_mask:0xf bank_mask:0xf
    ''')
    for k in range(7, -1, -1):
        a(f'''s_and_b32 s{FR+2*k+1}, s{FR+k}, s{sMask}
              s_lshl_b32 s{FR+2*k}, s{FR+k}, 16''')
    a(f'''
    v_sub_u32 v{CE+5}, v{CE+4}, v{T+5}
    v_cmp_lt_i32 vcc, 0, v{CE+5}
    s_and_b64 s[{GE}:{GE+1}], vcc, s[{GE+2}:{GE+3}]
    v_cmp_lt_i32 s[{GE+2}:{GE+3}], 16, v{CE+5}
    kb_propose:
    v_mov_b32 v{T+9}, 1
    v_mov_b32 v{CE+6}, 147
    v_and_b32 v{tL}, 63, v0
    v_lshlrev_b32 v{CE+7}, 4, v{tL}
    v_lshlrev_b32 v{CE+8}, 3, v{tL}
    ''')
    stamp()
    def wload(n):
        pass
    def prop(lo, nw):
        for q in range(2):
            a(f'''
            v_lshrrev_b32 v{U+q}, 16, v{CE+lo+q}
            v_mad_u32_u24 v{U+q}, v{U+q}, v{CE+6}, s{sNeg}
            v_lshrrev_b32 v{U+q}, 11, v{U+q}
            v_lshl_add_u32 v{U+4+q}, v{U+q}, 2, s{sGC}
            ''')
        for q in range(2):
            a(f'''s_mov_b64 exec, s[{GE+2*q}:{GE+2*q+1}]
                  ds_add_rtn_u32 v{U+8+q}, v{U+4+q}, v{T+9}''')
        a('s_mov_b64 exec, -1')
        for q in range(2):
            a(f'v_lshl_add_u32 v{U+q}, v{U+q}, 9, s{sTM}')
        wload(nw)
        a('s_waitcnt lgkmcnt(0)')
        for q in range(2):
            a(f'''v_min_u32 v{U+8+q}, 0x7f, v{U+8+q}
                  v_lshl_add_u32 v{U+q}, v{U+8+q}, 2, v{U+q}''')
        for q in range(2):
            a(f'''s_mov_b64 exec, s[{GE+2*q}:{GE+2*q+1}]
                  ds_write_b32 v{U+q}, v{CE+lo+q}''')
        a('s_mov_b64 exec, -1')
    W1N = W2N = W3N = 0
    prop(0, W1N)
    a(f'''
    v_cmp_lt_u32 vcc, 32, v{CE+4}
    s_cbranch_vccz kb_prop_done
    v_cmp_lt_i32 s[{GE}:{GE+1}], 32, v{CE+5}
    v_cmp_lt_i32 s[{GE+2}:{GE+3}], 48, v{CE+5}
    ''')
    prop(2, 0)
    a(f'''
    v_cmp_lt_u32 vcc, 64, v{CE+4}
    v_mov_b32 v{U}, {L_GCNT + 28}
    s_mov_b64 exec, vcc
    ds_add_u32 v{U}, v{T+9}
    s_mov_b64 exec, -1
    kb_prop_done:
    v_mov_b32 v{U}, {L_GCNT}
    s_waitcnt lgkmcnt(0)
    s_barrier
    ds_read_b128 {vr(U+4,4)}, v{U}
    ds_read_b128 {vr(U+8,4)}, v{U} offset:16
    ''')
    wload(W2N)
    tP = T + 3
    a(f'''
    v_and_b32 v{tN}, 15, v0
    v_bfe_u32 v{tG}, v0, 4, 2
    v_lshrrev_b32 v{T+4}, 2, v{tL}
    v_and_b32 v{T+5}, 3, v{tL}
    s_lshl_b32 s{sT0}, s{sW}, 2
    v_add_u32 v{T+6}, s{sT0}, v{T+5}
    v_lshl_add_u32 v{tP}, v{T+4}, 5, v{T+6}
    v_lshl_add_u32 v{T+7}, v{tP}, 2, s{sTM}
    s_waitcnt lgkmcnt(0)
    ''')
    stamp()
    for j in range(8):
        a(f'v_readfirstlane_b32 s{GE+j}, v{U+4+j}')
    sA, sB, sD = sStA, sStB, sStC
    a(f'''
    s_max_u32 s{sA}, s{GE}, s{GE+1}
    s_max_u32 s{sB}, s{GE+2}, s{GE+3}
    s_max_u32 s{sD}, s{GE+4}, s{GE+5}
    s_max_u32 s{sA}, s{sA}, s{GE+6}
    s_max_u32 s{sB}, s{sB}, s{sD}
    s_max_u32 s{sA}, s{sA}, s{sB}
    s_mov_b32 s{sTot}, 0
    ''')
    for j in range(7):
        a(f's_add_u32 s{sTot}, s{sTot}, s{GE+j}')
        if j < 6:
            a(f'''s_lshl_b32 s{sB}, s{GE+j}, 2
                  s_sub_u32 s{sB}, 512, s{sB}
                  v_cmpx_le_u32 vcc, s{sTot}, v{tP}
                  v_add_u32 v{T+7}, s{sB}, v{T+7}''')
        a(f's_mov_b32 s{GE+j}, s{sTot}')
    a(f'''
    s_mov_b64 exec, -1
    ds_read_b32 v{T+8}, v{T+7}
    ''')
    wload(W3N)
    a(f'''
    s_cmp_gt_u32 s{sA}, 128
    s_cselect_b32 s{GE+7}, 1, s{GE+7}
    s_cmp_gt_u32 s{sTot}, {LISTCAP}
    s_cselect_b32 s{GE+7}, 1, s{GE+7}
    s_cmp_lg_u32 s{GE+7}, 0
    s_cbranch_scc1 kb_go_slow
    s_cmp_eq_u32 s{sTot}, 0
    s_cbranch_scc1 kb_empty
    ''')
    a(f'''
    s_lshl_b32 s{sT0}, s{GE+1}, 9
    s_or_b32 s{sGP}, s{GE}, s{sT0}
    s_lshl_b32 s{sT0}, s{GE+2}, 18
    s_or_b32 s{sGP}, s{sGP}, s{sT0}
    s_lshl_b32 s{sT0}, s{GE+3}, 27
    s_or_b32 s{sGP}, s{sGP}, s{sT0}
    s_lshr_b32 s{sGP+1}, s{GE+3}, 5
    s_lshl_b32 s{sT0}, s{GE+4}, 4
    s_or_b32 s{sGP+1}, s{sGP+1}, s{sT0}
    s_lshl_b32 s{sT0}, s{GE+5}, 13
    s_or_b32 s{sGP+1}, s{sGP+1}, s{sT0}
    s_lshl_b32 s{sT0}, s{GE+6}, 22
    s_or_b32 s{sGP+1}, s{sGP+1}, s{sT0}
    v_cmp_gt_u32 vcc, s{sTot}, v{tP}
    v_mov_b32 v{T+9}, {PADSRC}
    v_mov_b32 v{T+10}, 0x3fff
    v_lshlrev_b32 v{vBP}, 2, v{tG}
    s_waitcnt lgkmcnt(0)
    v_and_b32 v{T+11}, 0xffff, v{T+8}
    v_lshrrev_b32 v{T+12}, 16, v{T+8}
    v_cndmask_b32 v{vSrc}, v{T+9}, v{T+11}, vcc
    v_cndmask_b32 v{T+13}, v{T+9}, v{T+12}, vcc
    ds_bpermute_b32 v{SRC3}, v{vBP}, v{vSrc}
    ds_bpermute_b32 v{SRC3+1}, v{vBP}, v{vSrc} offset:16
    ds_bpermute_b32 v{SRC3+2}, v{vBP}, v{vSrc} offset:32
    ds_bpermute_b32 v{vSrcB}, v{vBP}, v{vSrc} offset:48
    v_add_u32 v{vBP}, 64, v{vBP}
    v_mul_u32_u24 v{T+14}, 6, v{vSrc}
    v_and_b32 v{T+14}, -4, v{T+14}
    v_mul_u32_u24 v{T+15}, 6, v{T+13}
    v_and_b32 v{T+15}, -4, v{T+15}
    ''')
    wload(15)
    a(f'''
    buffer_load_dwordx2 {vr(T+16,2)}, v{T+14}, {sr(S_POS)}, 0 offen
    buffer_load_dwordx2 {vr(T+18,2)}, v{T+15}, {sr(S_POS)}, 0 offen
    v_subrev_u32 v{T+12}, s{sNode0}, v{T+12}
    v_cndmask_b32 v{T+10}, v{T+10}, v{T+12}, vcc
    v_lshlrev_b32 v{T+10}, 1, v{T+10}
    s_lshl_b32 s{sDma}, s{sW}, 12
    s_waitcnt lgkmcnt(1)
    ''')
    VM.extend(['pos', 'pos'])
    a(f'''s_mul_i32 s{sT2}, s{sW}, 1536
          s_add_u32 s{sT2}, s{sT2}, {WS_WRP - WSO}''')
    emit_items(P2)
    if opts.get('p2bar', '1') == '1':
        a('s_barrier')
    stamp()
    a(f'''
    v_lshrrev_b32 v{U}, 2, v{tN}
    v_lshlrev_b32 v{U}, 13, v{U}
    v_and_b32 v{U+1}, 3, v{tN}
    v_lshl_or_b32 v{U}, v{U+1}, 8, v{U}
    v_xor_b32 v{U+1}, v{tG}, v{tN}
    ''')
    for s in range(4):
        a(f'''v_xor_b32 v{U+2}, {4*s}, v{U+1}
              v_lshl_or_b32 v{vAH+s}, v{U+2}, 4, v{U}''')
    a(f'''
    v_bfe_u32 v{U}, v{tL}, 3, 1
    v_lshl_or_b32 v{U+1}, v{tG}, 1, v{U}
    v_xor_b32 v{U+1}, s{sW}, v{U+1}
    v_lshlrev_b32 v{U+1}, 5, v{U+1}
    v_lshl_or_b32 v{U+1}, v{U}, 8, v{U+1}
    v_lshl_or_b32 v{U+1}, v{tG}, 13, v{U+1}
    v_lshl_or_b32 v{U+1}, v{T+5}, 3, v{U+1}
    v_and_b32 v{U+2}, 4, v{tL}
    v_xor_b32 v{U+2}, 4, v{U+2}
    v_lshl_or_b32 v{vAV}, v{U+2}, 18, v{U+1}
    v_lshlrev_b32 v{vAR}, 3, v{tL}
    v_add_u32 v{vAR}, {L_RBF}, v{vAR}
    v_lshlrev_b32 v{vAS}, 5, v{tG}
    v_add_u32 v{vAS}, {L_META}, v{vAS}
    v_lshlrev_b32 v{vKey}, 1, v{tN}
    v_lshl_or_b32 v{vKey}, v{vKey}, 16, v{vKey}
    ''')
    tWR, tWS, tWD = T + 20, T + 21, T + 22
    a(f'''
    s_and_b32 s{sT0}, s{sW}, 1
    s_lshl_b32 s{sT2}, s{sT0}, 3
    s_lshl_b32 s{sT0}, s{sT0}, 9
    s_lshr_b32 s{sT1}, s{sW}, 1
    s_lshl_b32 s{sT1}, s{sT1}, 5
    s_add_u32 s{sT2}, s{sT2}, s{sT1}
    s_add_u32 s{sT2}, s{sT2}, {L_META + 384}
    s_add_u32 s{sT0}, s{sT0}, s{sT1}
    s_add_u32 s{sT0}, s{sT0}, {L_RBF}
    v_lshlrev_b32 v{tWR}, 10, v{T+4}
    v_lshl_add_u32 v{tWR}, v{T+5}, 3, v{tWR}
    v_add_u32 v{tWR}, s{sT0}, v{tWR}
    v_lshlrev_b32 v{tWS}, 9, v{T+4}
    v_lshl_add_u32 v{tWD}, v{T+5}, 1, v{tWS}
    v_add_u32 v{tWD}, s{sT2}, v{tWD}
    v_lshl_add_u32 v{tWS}, v{T+6}, 2, v{tWS}
    v_add_u32 v{tWS}, {L_META}, v{tWS}
    ds_write_b16 v{tWD}, v{T+10}
    v_lshlrev_b32 v{T+14}, 4, v{vSrc}
    v_lshlrev_b32 v{T+15}, 4, v{T+13}
    s_waitcnt vmcnt({vm_after(['pos'])})
    ''')
    stamp()
    real_a = a
    p3q = []
    for it in P3:
        p3q += item_groups(it)
    cnt = [0]
    GAP = int(opts.get('p3gap', 8))
    def a(txt):
        for ln in txt.split('\n'):
            ln = ln.strip()
            if not ln:
                continue
            real_a(ln)
            cnt[0] += 1
            if cnt[0] % GAP == 0 and p3q:
                tag, g = p3q.pop(0)
                for x in g:
                    real_a(x)
                VM.append(tag)
    x, y, z = U, U + 1, U + 2
    a(f'''
    v_alignbit_b32 v{U+8}, v{T+17}, v{T+16}, v{T+14}
    v_lshrrev_b32 v{U+9}, v{T+14}, v{T+17}
    v_alignbit_b32 v{U+10}, v{T+19}, v{T+18}, v{T+15}
    v_lshrrev_b32 v{U+11}, v{T+15}, v{T+19}
    v_lshlrev_b32 v{x}, 16, v{U+8}
    v_and_b32 v{y}, {M}, v{U+8}
    v_lshlrev_b32 v{z}, 16, v{U+9}
    v_lshlrev_b32 v{U+3}, 16, v{U+10}
    v_and_b32 v{U+4}, {M}, v{U+10}
    v_lshlrev_b32 v{U+5}, 16, v{U+11}
    v_sub_f32 v{x}, v{x}, v{U+3}
    v_sub_f32 v{y}, v{y}, v{U+4}
    v_sub_f32 v{z}, v{z}, v{U+5}
    v_cvt_pk_bf16_f32 v{x}, 0, v{x}
    v_cvt_pk_bf16_f32 v{y}, 0, v{y}
    v_cvt_pk_bf16_f32 v{z}, 0, v{z}
    v_mul_f32 v{U+3}, v{x}, v{x}
    v_mul_f32 v{U+4}, v{y}, v{y}
    v_mul_f32 v{U+5}, v{z}, v{z}
    v_cvt_pk_bf16_f32 v{U+3}, 0, v{U+3}
    v_cvt_pk_bf16_f32 v{U+4}, 0, v{U+4}
    v_cvt_pk_bf16_f32 v{U+5}, 0, v{U+5}
    v_add_f32 v{U+3}, v{U+3}, v{U+4}
    v_add_f32 v{U+3}, v{U+3}, v{U+5}
    v_cvt_pk_bf16_f32 v{U+3}, 0, v{U+3}
    v_add_f32 v{U+3}, 0x322bcc77, v{U+3}
    v_cvt_pk_bf16_f32 v{U+3}, 0, v{U+3}
    v_sqrt_f32 v{U+3}, v{U+3}
    v_cvt_pk_bf16_f32 v{U+3}, 0, v{U+3}
    v_rcp_f32 v{U+4}, v{U+3}
    ''')
    d, rd = U + 3, U + 4
    X = U + 12
    P = T + 24
    for k in range(16):
        a(f'v_mul_f32 v{X+k}, s{FR+k}, v{d}')
    a(f'''
    v_mul_f32 v{U+5}, 0x40490fdb, v{d}
    v_mul_f32 v{x}, v{x}, v{rd}
    v_cvt_pk_bf16_f32 v{U+5}, 0, v{U+5}
    v_mul_f32 v{y}, v{y}, v{rd}
    v_mul_f32 v{U+5}, 0x3e4ccccd, v{U+5}
    v_mul_f32 v{z}, v{z}, v{rd}
    v_cvt_pk_bf16_f32 v{U+5}, 0, v{U+5}
    v_cvt_pk_bf16_f32 v{x}, 0, v{x}
    v_mul_f32 v{U+5}, 0.15915494, v{U+5}
    v_cvt_pk_bf16_f32 v{y}, 0, v{y}
    v_cos_f32 v{U+5}, v{U+5}
    v_cvt_pk_bf16_f32 v{z}, 0, v{z}
    v_cvt_pk_bf16_f32 v{U+5}, 0, v{U+5}
    ds_write_b32 v{tWS}, v{x}
    v_add_f32 v{U+5}, 1.0, v{U+5}
    ds_write_b32 v{tWS}, v{y} offset:128
    v_cvt_pk_bf16_f32 v{U+5}, 0, v{U+5}
    ds_write_b32 v{tWS}, v{z} offset:256
    v_mul_f32 v{U+5}, 0.5, v{U+5}
    v_cmp_gt_f32 vcc, 0x40a00000, v{d}
    v_cndmask_b32 v{U+5}, 0, v{U+5}, vcc
    v_mul_f32 v{rd}, v{rd}, v{U+5}
    ''')
    for k in range(16):
        a(f'v_cvt_pk_bf16_f32 v{X+k}, 0, v{X+k}')
    for k in range(16):
        a(f'v_mul_f32 v{X+k}, 0.15915494, v{X+k}')
    for k in range(16):
        a(f'v_sin_f32 v{X+k}, v{X+k}')
    for k in range(16):
        a(f'v_mul_f32 v{X+k}, v{X+k}, v{rd}')
    for k in range(8):
        a(f'v_cvt_pk_bf16_f32 v{P+k}, v{X+2*k}, v{X+2*k+1}')
    for g in range(4):
        a(f'ds_write_b64 v{tWR}, {vr(P+2*g,2)} offset:{128*g}')
    a = real_a
    for tag, g in p3q:
        for x in g:
            a(x)
        VM.append(tag)
    def acc_init_static(swap=True):
        for i in range(8):
            a(f'''v_lshlrev_b32 v{ACC+2*i}, 16, v{OWN+i}
                  v_and_b32 v{ACC+2*i+1}, {M}, v{OWN+i}''')
        if swap:
            acc_swap()
    def acc_swap():
        for p in range(2):
            for i in range(4):
                a(f'v_permlane16_swap_b32 v{ACC+8*p+i}, v{ACC+8*p+4+i}')
    nA = vm_after(['d2']); nB = vm_after(['d1']) - nA - 4
    assert nA % 2 == 0 and nB % 2 == 0
    for j in (1, 2):
        assert vm_after(['o%d' % j]) > vm_after(['d%d' % j])
    tail_blocks = []
    a(f'''
    s_mov_b32 s{sG}, 0
    s_and_b32 s{sGend}, s{sGP}, 0x1ff
    s_mov_b32 s{sTe}, 32
    s_mov_b32 s{sStA}, {nA//2}
    s_mov_b32 s{sStB}, {nB//2}
    s_mov_b32 s{sStC}, 0
    s_mov_b32 s{sX}, 0x8000
    s_mov_b32 s{sOk}, 0
    s_mov_b32 s{sOwnN}, {NPRE}
    s_cmp_lg_u32 s{sMode}, 0
    s_cbranch_scc1 kb_slow_own
    kb_slow_ownr:
    ''')
    def blk_so():
        a('''kb_slow_own:
             s_waitcnt vmcnt(0)''')
        for j in range(7):
            own_load(j, ' sc0 sc1')
        a(f'''s_mov_b32 s{sOwnN}, 7
              s_mov_b32 s{sOk}, 0x7fffffff
              s_waitcnt vmcnt(0)
              s_branch kb_slow_ownr''')
    tail_blocks.append(blk_so)
    stamp()
    a(f's_waitcnt vmcnt({vm_after(["o0"])})')
    acc_init_static()
    a(f'''
    s_cmp_ge_u32 s{sW}, {opts.get('bfrom', 4)}
    s_waitcnt vmcnt({vm_after(['d0', 'w', 'o0'])}) lgkmcnt(0)
    s_cbranch_scc1 kb_B_entry
    ''')
    PG = int(opts.get('pg', 2)); PS = int(opts.get('ps', 3))
    PMD = {'A': int(opts.get('pma', 0)), 'B': int(opts.get('pmb', 1))}
    SMEND = opts.get('smend', '1') == '1'

    class LQ:
        def __init__(self):
            self.q = []
        def issue(self, tag, txt):
            if len(self.q) >= 15:
                a('s_waitcnt lgkmcnt(8)'); self.q = self.q[-8:]
            a(txt); self.q.append(tag)
        def need(self, *tags):
            idx = [i for i, t in enumerate(self.q) if t in tags]
            if not idx:
                return
            last = max(idx)
            a(f's_waitcnt lgkmcnt({len(self.q)-1-last})')
            self.q = self.q[last + 1:]
    def gemm(t, s):
        H = HA if t == 0 else HB
        out = []
        for b in range(3):
            c = '0' if s == 0 else vr(PHI[t] + 4 * b, 4)
            out.append(f'v_mfma_f32_16x16x32_bf16 {vr(PHI[t]+4*b,4)}, {vr(H+4*s,4)}, {vr(W2+16*b+4*s,4)}, {c}')
        return out
    def wf(t):
        return [f'v_mfma_f32_16x16x16_bf16 {vr(WRD+4*b,4)}, {vr(RBF+2*t,2)}, {vr(WR+2*b,2)}, 0' for b in range(3)]
    def sm(k):
        a(f'v_mfma_f32_16x16x32_bf16 {vr(ACC+4*k,4)}, {vr(MSG[k],4)}, {vr(SEL,4)}, {vr(ACC+4*k,4)}')
    def selb():
        for i in range(4):
            a(f'v_xor_b32 v{SEL+i}, v{DL+i}, v{vKey}')
        for i in range(4):
            a(f'v_pk_mad_i16 v{SEL+i}, v{SEL+i}, s{sK8}, v{vOne} clamp')
    def vreads(t):
        return [('V%d' % t, f'ds_read_b64_tr_b16 {vr(V+12*t+4*c+2*p,2)}, v{vAV} offset:{4096*t+1024*(c+1)+512*p}') for c in range(3) for p in range(2)]
    def issue_head(X_, lq):
        a(f'''
        s_cmp_lt_u32 s{sOwnN}, 7
        s_cbranch_scc1 kb_own{X_}
        kb_ownr{X_}:
        ''')
        def blk():
            a(f'''kb_own{X_}:
                  s_add_u32 s{sStA}, s{sStA}, 1
                  s_add_u32 s{sOwnN}, s{sOwnN}, 1''')
            for j in range(NPRE, 7):
                if j < 6:
                    a(f'''s_cmp_lg_u32 s{sOwnN}, {j+1}
                          s_cbranch_scc1 kb_own{X_}_{j+1}''')
                own_load(j)
                a(f's_branch kb_ownr{X_}')
                if j < 6:
                    a(f'kb_own{X_}_{j+1}:')
        tail_blocks.append(blk)
        for x in dma_addr(vSrcB):
            a(x)
        p0 = dma_piece(0)
        a(p0[0])
        lq.issue('bp', f'ds_bpermute_b32 v{vSrcB}, v{vBP}, v{vSrc}')
        for x in p0[1:]:
            a(x)
        a(f'''
        s_mov_b32 s{sStC}, s{sStB}
        s_mov_b32 s{sStB}, s{sStA}
        s_mov_b32 s{sStA}, 0
        v_add_u32 v{vBP}, 16, v{vBP}
        ''')
    def wait_tree(X_, dest):
        a(f'''
        s_add_u32 s{sT1}, s{sStA}, s{sStB}
        s_add_u32 s{sT1}, s{sT1}, s{sStC}
        ''')
        def rec(lo, hi):
            if hi - lo == 1:
                a(f'''s_waitcnt vmcnt({8+2*lo})
                      s_branch {dest}''')
                return
            mid = (lo + hi) // 2
            a(f'''s_cmp_ge_u32 s{sT1}, {mid}
                  s_cbranch_scc1 kb_w{X_}_{mid}_{hi}''')
            rec(lo, mid)
            a(f'kb_w{X_}_{mid}_{hi}:')
            rec(mid, hi)
        rec(0, 8)
    p0_, p1_ = PHI
    DSL = [int(x) for x in opts.get('dsl', '6,13,20').split(',')]
    def G(X_, with_issue, lq):
        for s in range(4):
            lq.issue('HA%d' % s, f'ds_read_b128 {vr(HA+4*s,4)}, v{vAH+s}')
        lq.issue('B0', f'ds_read_b64 {vr(RBF,2)}, v{vAR}')
        if with_issue:
            issue_head(X_, lq)
        mf = []
        for s in range(4):
            mf += [(m, 'HA%d' % s) for m in gemm(0, s)]
        mf += [(m, 'B0') for m in wf(0)]
        for s in range(4):
            mf += [(m, 'B1') for m in gemm(1, s)]
        mf += [(m, 'B1') for m in wf(1)]
        ls = {i: [] for i in range(30)}
        for s in range(4):
            ls[s].append(('HB%d' % s, f'ds_read_b128 {vr(HB+4*s,4)}, v{vAH+s} offset:4096'))
        ls[4].append(('B1', f'ds_read_b64 {vr(RBF+2,2)}, v{vAR} offset:512'))
        for i, x in enumerate(vreads(0)):
            ls[5 + i].append(x)
        for c in range(3):
            ls[12 + c].append(('R0', f'ds_read_b128 {vr(RR[0]+4*c,4)}, v{vAS} offset:{128*c}'))
        for i, x in enumerate(vreads(1)):
            ls[15 + i].append(x)
        ls[21].append(('DL', f'ds_read_b128 {vr(DL,4)}, v{vAS} offset:384'))
        for c in range(3):
            ls[24 + c].append(('R1', f'ds_read_b128 {vr(RR[1]+4*c,4)}, v{vAS} offset:{128*c+16}'))
        vs = {i: [] for i in range(30)}
        for s in range(4):
            vs[4 + s].append(f'v_xor_b32 v{vAH+s}, s{sX}, v{vAH+s}')
        vs[8].append(f'v_add_u32 v{vAR}, 1024, v{vAR}')
        late = [f'v_mul_f32 v{p0_+i}, v{p0_+i}, v{WRD+i}' for i in (8, 9, 10, 11, 0, 1, 2, 3, 4, 5, 6, 7)]
        late += [f'v_cvt_pk_bf16_f32 v{MSG[0]}, v{p0_}, v{p0_+1}', f'v_cvt_pk_bf16_f32 v{MSG[0]+1}, v{p0_+2}, v{p0_+3}']
        late += [('R0', f'v_mul_f32 v{RR[0]+4*c+i}, v{RR[0]+4*c+i}, v{p0_+8+i}') for c in range(3) for i in range(4)]
        sl = 17
        while late:
            vs[sl] += late[:2]; late = late[2:]; sl += 1
        assert sl <= 30
        vs[21].append(f'v_xor_b32 v{vAV}, s{sX}, v{vAV}')
        vs[27].append(f'v_add_u32 v{vAS}, 512, v{vAS}')
        for i, (m, tag) in enumerate(mf):
            lq.need(tag)
            pc = None
            if with_issue and i in DSL:
                pc = dma_piece(1 + DSL.index(i)); a(pc[0])
            a(m)
            if pc:
                for x in pc[1:]:
                    a(x)
            for tag2, x in ls[i]:
                lq.issue(tag2, x)
            for x in vs[i]:
                if isinstance(x, tuple):
                    lq.need(x[0]); x = x[1]
                a(x)
        a(f's_xor_b32 s{sX}, s{sX}, 0x10000')
    MSL = [int(x) for x in opts.get('msl', '12,28,44').split(',')]
    def Mphase(X_, lq, with_dma):
        p0, p1 = PHI
        cnt = [0]
        def v(x):
            if with_dma and cnt[0] in MSL:
                pc = dma_piece(1 + MSL.index(cnt[0]))
                a(pc[0]); a(x)
                for y in pc[1:]:
                    a(y)
            else:
                a(x)
            cnt[0] += 1
        lq.need('V0', 'DL')
        for i in range(4):
            v(f'v_xor_b32 v{SEL+i}, v{DL+i}, v{vKey}')
        for i in range(12):
            v(f'v_fmac_f32 v{RR[0]+i}, v{V+i}, v{p0+4+i%4}')
        for i in range(4):
            v(f'v_pk_mad_i16 v{SEL+i}, v{SEL+i}, s{sK8}, v{vOne} clamp')
        for i in range(12):
            v(f'v_mul_f32 v{p1+i}, v{p1+i}, v{WRD+i}')
        v(f'v_cvt_pk_bf16_f32 v{MSG[0]+2}, v{p1}, v{p1+1}')
        v(f'v_cvt_pk_bf16_f32 v{MSG[0]+3}, v{p1+2}, v{p1+3}')
        lq.need('V1', 'R1')
        for c in range(3):
            for i in range(4):
                v(f'v_mul_f32 v{RR[1]+4*c+i}, v{RR[1]+4*c+i}, v{p1+8+i}')
            if not SMEND:
                sm(c)
            for i in range(4):
                v(f'v_fmac_f32 v{RR[1]+4*c+i}, v{V+12+4*c+i}, v{p1+4+i}')
            for t in range(2):
                for h in range(2):
                    v(f'v_cvt_pk_bf16_f32 v{MSG[1+c]+2*t+h}, v{RR[t]+4*c+2*h}, v{RR[t]+4*c+2*h+1}')
        if SMEND:
            a(f's_setprio {PS}')
            for c in range(3):
                sm(c)
        sm(3)
        a(f's_setprio {PMD[X_]}')
        assert cnt[0] > max(MSL)
    ST = PHI[0]
    def Sflush(X_):
        a(f'''
        kb_segend{X_}:
        s_cmp_gt_u32 s{sGend}, s{sTe}
        s_cbranch_scc1 kb_next{X_}
        kb_flush{X_}:
        s_add_u32 s{sG}, s{sG}, 8
        s_lshl_b32 s{sT0}, s{sG}, 2
        s_add_u32 s{sStA}, s{sStA}, 1
        s_nop 3
        ''')
        for i in range(8):
            a(f'v_cvt_pk_bf16_f32 v{ST+i}, v{ACC+2*i}, v{ACC+2*i+1}')
        for b in range(2):
            if opts.get('nostore'):
                a(f'v_mov_b32 v{vOut}, 0x40000000')
            for i in range(2):
                a(f'v_permlane16_swap_b32 v{ST+4*b+i}, v{ST+4*b+2+i}')
        for b in range(2):
            a(f'buffer_store_dwordx4 {vr(ST+4*b,4)}, v{vOut}, {sr(S_OUT)}, 0 offen offset:{512*b}')
        a(f'''
        s_cmp_eq_u32 s{sG}, 56
        s_cbranch_scc1 kb_done
        s_cmp_gt_u32 s{sT0}, s{sOk}
        s_cbranch_scc1 kb_fb{X_}
        kb_fbr{X_}:
        s_set_gpr_idx_on s{sG}, 0x2
        s_nop 1
        ''')
        def blk():
            a(f'''kb_fb{X_}:
                  s_cmp_lg_u32 s{sT0}, s{sTe}
                  s_cbranch_scc1 kb_fb1{X_}
                  s_lshl_b32 s{sT1}, s{sOwnN}, 5
                  s_cmp_ge_u32 s{sT0}, s{sT1}
                  s_cbranch_scc1 kb_fb1{X_}''')
            wait_tree('F' + X_, f'kb_fbr{X_}')
            a(f'''kb_fb1{X_}:
                  s_cmp_ge_u32 s{sOwnN}, 7
                  s_cbranch_scc1 kb_fb2{X_}''')
            for j in range(NPRE, 7):
                own_load(j)
            a(f'''kb_fb2{X_}:
                  s_mov_b32 s{sOwnN}, 7
                  s_mov_b32 s{sOk}, 0x7fffffff
                  s_waitcnt vmcnt(0)
                  s_branch kb_fbr{X_}''')
        tail_blocks.append(blk)
        acc_init_static(False)
        a('s_set_gpr_idx_off')
        acc_swap()
        a(f'''
        v_add_u32 v{vKey}, 0x001c001c, v{vKey}
        v_add_u32 v{vOut}, 14336, v{vOut}
        s_lshr_b64 s[{sGP}:{sGP+1}], s[{sGP}:{sGP+1}], 9
        s_mov_b32 s{sGst}, s{sGend}
        s_and_b32 s{sGend}, s{sGP}, 0x1ff
        s_cmp_ge_u32 s{sGst}, s{sTe}
        s_cbranch_scc1 kb_next{X_}
        s_cmp_eq_u32 s{sGst}, s{sGend}
        s_cbranch_scc1 kb_flush{X_}
        ''')
        selb()
        a(f's_setprio {PS}')
        for k in range(4):
            sm(k)
        a(f's_setprio {PMD[X_]}')
        a(f'''
        s_branch kb_segend{X_}
        kb_tail{X_}:
        s_mov_b32 s{sTe}, 0x7fffffff
        s_branch kb_flush{X_}
        kb_next{X_}:
        s_cmp_ge_u32 s{sTe}, s{sTot}
        s_cbranch_scc1 kb_tail{X_}
        s_max_u32 s{sOk}, s{sOk}, s{sTe}
        s_add_u32 s{sTe}, s{sTe}, 32
        ''')
    a('kb_loopA:')
    stamp()
    a(f'''s_setprio {PG}
          s_barrier''')
    stamp()
    lq = LQ()
    G('A', True, lq)
    a(f's_setprio {PMD["A"]}')
    fstamp()
    Mphase('A', lq, False)
    assert not lq.q
    fstamp()
    Sflush('A')
    fstamp()
    wait_tree('A', 'kb_loopA')
    a('''kb_B_entry:
         s_barrier''')
    lq = LQ()
    issue_head('B0', lq)
    for k in range(1, 4):
        for x in dma_piece(k):
            a(x)
    a('kb_loopB:')
    a(f's_setprio {PG}')
    fstamp()
    assert lq.q == ['bp']
    G('B', False, lq)
    a(f's_setprio {PMD["B"]}')
    fstamp()
    a(f'''
    s_cmp_ge_u32 s{sTe}, s{sTot}
    s_cbranch_scc1 kb_B_m0
    ''')
    sv = list(lq.q)
    lq.need('V1')
    lq.q = sv
    a(f's_max_u32 s{sOk}, s{sOk}, s{sTe}')
    wait_tree('B', 'kb_B_bar')
    a(f'''kb_B_m0:
         s_xor_b32 s{sDma}, s{sDma}, 0x8000
         s_branch kb_B_m
         kb_B_bar:''')
    stamp()
    a('s_barrier')
    stamp()
    a('kb_B_m:')
    issue_head('B', lq)
    fstamp()
    Mphase('B', lq, True)
    assert lq.q == ['bp']
    fstamp()
    Sflush('B')
    a('s_branch kb_loopB')
    for b in tail_blocks:
        b()
    a(f'''
    kb_go_slow:
    s_mov_b32 s{sMode}, 1
    s_mov_b32 s{sI}, 0
    s_mov_b32 s{sQ}, 0
    s_mov_b32 s{sC}, -1
    s_mov_b32 s{sLen}, 0
    s_mov_b32 s{sBase}, 0
    s_branch kb_copy
    kb_empty:
    s_cmp_lg_u32 s{sMode}, 0
    s_cbranch_scc1 kb_done
    kb_copy:
    s_mov_b64 s[{sGP}:{sGP+1}], 0
    s_mov_b32 s{sG}, 0
    s_mov_b32 s{sGend}, 0
    s_mov_b32 s{sTot}, 0
    s_mov_b32 s{sStA}, 0
    s_mov_b32 s{sOwnN}, 7
    s_mov_b32 s{sOk}, 0x7fffffff
    ''')
    for j in range(7):
        own_load(j)
    a('s_waitcnt vmcnt(0)')
    acc_init_static()
    a(f'''
    s_branch kb_tailA
    kb_done:
    ''')
    if STAMP:
        stamp()
        a('s_waitcnt vmcnt(0)')
        stamp()
        srd(a, S_POS, 24, 25, 0x100000, 0x1000000)
        a(f'''v_lshlrev_b32 v{T}, 2, v0
              s_lshl_b32 s{sT0}, s2, 11
              v_add_u32 v{T}, s{sT0}, v{T}
              buffer_store_dword v{vStamp}, v{T}, {sr(S_POS)}, 0 offen''')
    a(f'''
    s_waitcnt vmcnt(2)
    s_cmp_eq_u32 s{sMode}, 0
    s_cbranch_scc1 kb_exit
    s_waitcnt vmcnt(0) lgkmcnt(0)
    s_barrier
    v_and_b32 v{T+8}, 7, v0
    v_lshlrev_b32 v{T+8}, 2, v{T+8}
    v_add_u32 v{T+8}, {L_GCNT}, v{T+8}
    v_mov_b32 v{T+9}, 0
    ds_write_b32 v{T+8}, v{T+9}
    s_mov_b32 s{S_BASE}, s20
    s_mov_b32 s{S_BASE+1}, s21
    s_cmp_ge_u32 s{sI}, 4
    s_cbranch_scc1 kb_mode2
    s_lshl_b32 s{sT0}, s2, 13
    s_add_u32 s{sT0}, s{sT0}, {WS_CELL - WSO}
    v_lshl_add_u32 v{T+4}, v0, 4, s{sT0}
    v_and_b32 v{T+6}, -64, v{T+4}
    s_lshl_b32 s{sT1}, s{sI}, 2
    buffer_load_dword v{CE+4}, v{T+6}, {sr(S_WS)}, 0 offen
    buffer_load_dword v{CE}, v{T+4}, {sr(S_WS)}, s{sT1} offen
    v_lshrrev_b32 v{T+3}, 7, v0
    v_cmp_eq_u32 s[{GE}:{GE+1}], s{sQ}, v{T+3}
    v_and_b32 v{T+5}, 3, v0
    v_add_u32 v{T+5}, s{sT1}, v{T+5}
    v_lshlrev_b32 v{T+5}, 2, v{T+5}
    v_cmp_ne_u32 vcc, 0, v{T+5}
    s_and_b64 s[{GE}:{GE+1}], vcc, s[{GE}:{GE+1}]
    s_waitcnt vmcnt(0)
    v_and_b32 v{CE+4}, 0xffff, v{CE+4}
    v_cmp_lt_u32 vcc, v{T+5}, v{CE+4}
    s_and_b64 s[{GE}:{GE+1}], vcc, s[{GE}:{GE+1}]
    s_add_u32 s{sQ}, s{sQ}, 1
    s_lshr_b32 s{sT0}, s{sQ}, 2
    s_add_u32 s{sI}, s{sI}, s{sT0}
    s_and_b32 s{sQ}, s{sQ}, 3
    s_branch kb_round
    kb_mode2:
    s_cmp_lt_u32 s{sBase}, s{sLen}
    s_cbranch_scc1 kb_m2_go
    s_add_u32 s{sC}, s{sC}, 1
    s_cmp_ge_u32 s{sC}, {NCHUNK}
    s_cbranch_scc1 kb_exit
    s_lshl_b32 s{sT0}, s2, 13
    s_lshl_b32 s{sT1}, s{sC}, 6
    s_add_u32 s{sT0}, s{sT0}, s{sT1}
    s_add_u32 s{sT0}, s{sT0}, {WS_CELL}
    s_load_dword s{sT1}, s[24:25], s{sT0}
    s_waitcnt lgkmcnt(0)
    s_and_b32 s{sT2}, s{sT1}, 0xffff
    s_lshr_b32 s{sLen}, s{sT1}, 16
    s_cmp_gt_u32 s{sT2}, 64
    s_cselect_b32 s{sLen}, s{sLen}, 0
    s_mov_b32 s{sBase}, 0
    s_branch kb_mode2
    kb_m2_go:
    v_add_u32 v{T+3}, s{sBase}, v0
    v_cmp_gt_u32 s[{GE}:{GE+1}], s{sLen}, v{T+3}
    v_cmp_gt_u32 vcc, 128, v0
    s_and_b64 s[{GE}:{GE+1}], vcc, s[{GE}:{GE+1}]
    s_mov_b64 vcc, s[{GE}:{GE+1}]
    s_mul_i32 s{sT0}, s{sC}, {OVF_STRIDE}
    s_add_u32 s{sT0}, s{sT0}, {WS_OVF - WSO}
    v_lshl_add_u32 v{T+4}, v{T+3}, 2, s{sT0}
    v_mov_b32 v{T+5}, 0x40000000
    v_cndmask_b32 v{T+4}, v{T+5}, v{T+4}, vcc
    buffer_load_dword v{CE}, v{T+4}, {sr(S_WS)}, 0 offen
    s_waitcnt vmcnt(0)
    v_lshrrev_b32 v{T+3}, 16, v{CE}
    v_subrev_u32 v{T+3}, s{sNode0}, v{T+3}
    v_cmp_gt_u32 vcc, 98, v{T+3}
    s_and_b64 s[{GE}:{GE+1}], vcc, s[{GE}:{GE+1}]
    s_add_u32 s{sBase}, s{sBase}, 128
    kb_round:
    s_mov_b64 s[{GE+2}:{GE+3}], 0
    v_mov_b32 v{CE+4}, 0
    ''')
    out_base()
    a(f'''
    s_waitcnt lgkmcnt(0)
    s_barrier
    s_branch kb_propose
    kb_exit:
    s_endpgm
    ''')
    return L_END
```

```python
from consts import *
from gen_ka import srd

L_RING = 0
L_STG = 98304
STG_H = 16 * 528
L_TMP = L_STG + 4 * STG_H
L_GCNT = L_TMP + 3584
L_RBF = L_GCNT + 64
L_META = L_RBF + 16384
L_END = L_META + 16 * 512
assert L_RBF % 16 == 0 and L_META % 16 == 0 and L_END <= 163840
LISTCAP = 416
PADSRC = 0x100000

class RA:
    def __init__(self, start=1):
        self.n = start
    def __call__(self, k=1, align=1):
        self.n = (self.n + align - 1) // align * align
        r = self.n
        self.n += k
        return r

def vr(b, k):
    return f'v[{b}:{b+k-1}]'

def gen_kb(a, opts):
    R = RA(1)
    vSwzH, vSwzV, vAV, vAR, vAS, vBP, vKey, vOut, vSrc, vSrcB, vOH, vOV, vOne, vOwnA, vStamp = [R() for _ in range(15)]
    vAH = R(4)
    W2 = R(48, 4); WR = R(6, 2); RBF = R(4, 2)
    OWN = R(56, 2); ACC = R(16, 4)
    PHI = [R(12, 4), R(12, 4)]; WRD = R(12, 4)
    HA = R(16, 4); HB = R(16, 4)
    V = R(24, 4)
    DLT = R(8, 4); vOut2 = R(); vStgW = R(); vStgR = R()
    assert R.n <= 256, R.n
    RR = [HA, HB]
    DL = HA + 12; SEL = HB + 12
    MSG = [RBF, WRD, WRD + 4, WRD + 8]
    S_SV, S_OUT, S_H, S_POS, S_WS, S_BASE = 28, 32, 36, 40, 44, 48
    sW, sMask, sNode0, sMode, sI, sQ, sC, sLen, sBase = 52, 53, 54, 55, 26, 27, 3, 88, 89
    FR = 64
    GE = 80
    sGP = 90
    sTot, sTe, sGend, sGst, sG, sStA, sStB, sStC, sDma, sX = 92, 93, 94, 95, 96, 97, 98, 99, 100, 101
    s256, s512, s768 = 56, 57, 58
    sT0, sT1, sT2, sT3 = 59, 60, 61, 62
    sW2, sC8, sT4, sSl = 16, 17, 18, 19
    sPend, sPar = 12, 13
    sOk, sOwnN, sK8, sNeg, sGC, sTM = 8, 9, 10, 11, 14, 15
    WSO = WS_W2P
    sr = lambda b: f's[{b}:{b+3}]'
    M = f's{sMask}'
    STAMP = opts.get('stamp')
    def stamp():
        if STAMP:
            a(f'''{"s_memtime" if STAMP == "2" else "s_memrealtime"} s[22:23]
                 s_waitcnt lgkmcnt(0)
                 s_mov_b32 m0, s63
                 s_nop 1
                 v_writelane_b32 v{vStamp}, s22, m0
                 s_add_u32 s63, s63, 1
                 s_min_u32 s63, s63, 63''')
    def fstamp():
        if opts.get('fine'):
            stamp()
    a(f'''
    .globl kb_kernel
    .p2align 8
    .type kb_kernel,@function
    kb_kernel:
    s_cmp_ge_u32 s2, 256
    s_cbranch_scc1 kb_exit
    s_load_dwordx2 s[24:25], s[0:1], 80
    s_load_dwordx4 s[4:7], s[0:1], 0
    s_load_dwordx2 s[20:21], s[0:1], 64
    s_load_dwordx2 s[12:13], s[0:1], 32
    ''')
    T = PHI[0]
    U = HA
    CE = V
    tL, tN, tG = T, T + 1, T + 2
    def out_base():
        a(f'''
        v_and_b32 v{tN}, 15, v0
        v_bfe_u32 v{tG}, v0, 4, 2
        v_bfe_u32 v{T+10}, v0, 3, 3
        v_lshlrev_b32 v{T+10}, 8, v{T+10}
        v_and_b32 v{T+11}, 7, v0
        v_lshl_or_b32 v{T+10}, v{T+11}, 4, v{T+10}
        s_and_b32 s{sT2}, s{sW}, 3
        s_lshl_b32 s{sT3}, s{sT2}, 2
        s_add_u32 s{sT3}, s{sT3}, s{sNode0}
        s_lshl_b32 s{sT3}, s{sT3}, 10
        s_lshr_b32 s{sT1}, s{sW}, 2
        s_lshl_b32 s{sT4}, s{sT1}, 7
        s_add_u32 s{sT3}, s{sT3}, s{sT4}
        v_add_u32 v{vOut}, s{sT3}, v{T+10}
        s_cmp_eq_u32 s{sT2}, 3
        s_cselect_b32 s{sT3}, 0x40000000, 0
        v_add_u32 v{vOut2}, s{sT3}, v{vOut}
        s_mul_i32 s{sT1}, s{sT1}, {STG_H}
        s_add_u32 s{sT1}, s{sT1}, {L_STG}
        s_lshl_b32 s{sT3}, s{sT2}, 5
        s_add_u32 s{sT3}, s{sT3}, s{sT1}
        v_mul_u32_u24 v{T+10}, 528, v{tN}
        v_lshl_add_u32 v{T+10}, v{tG}, 3, v{T+10}
        v_add_u32 v{vStgW}, s{sT3}, v{T+10}
        s_mul_i32 s{sT3}, s{sT2}, {4*528}
        s_add_u32 s{sT3}, s{sT3}, s{sT1}
        v_bfe_u32 v{T+10}, v0, 5, 1
        v_mul_u32_u24 v{T+10}, 528, v{T+10}
        v_and_b32 v{T+11}, 31, v0
        v_lshl_add_u32 v{T+10}, v{T+11}, 4, v{T+10}
        v_add_u32 v{vStgR}, s{sT3}, v{T+10}
        ''')
    NTO = ' nt' if opts.get('ntown', '1') == '1' else ''
    NTS = ' nt' if opts.get('ntst', '0') == '1' else ''
    def own_ins(j, flags):
        return [f'buffer_load_dwordx4 {vr(OWN+8*j+4*b,4)}, v{[vOut, vOut2][b]}, {sr(S_BASE)}, s{sT3} offen offset:{2048*b}{flags}' for b in range(2)]
    def own_load(j, flags=None):
        a(f's_mov_b32 s{sT3}, {14336*j}')
        for x in own_ins(j, NTO if flags is None else flags):
            a(x)
    a(f'''
    v_lshrrev_b32 v{T+3}, 6, v0
    v_readfirstlane_b32 s{sW}, v{T+3}
    s_lshl_b32 s{sT0}, s2, 13
    s_add_u32 s{sT0}, s{sT0}, {WS_CELL - WSO}
    v_lshl_add_u32 v{T+4}, v0, 4, s{sT0}
    s_mul_i32 s{sNode0}, s2, 98
    s_mov_b32 s63, 0
    ''')
    out_base()
    a('s_waitcnt lgkmcnt(0)')
    stamp()
    srd(a, S_WS, 24, 25, WS_OVF + OVF_BYTES - WSO, WSO)
    a(f'''
    buffer_load_dwordx4 {vr(CE,4)}, v{T+4}, {sr(S_WS)}, 0 offen
    v_and_b32 v{tL}, 63, v0
    v_lshlrev_b32 v{CE+7}, 4, v{tL}
    v_lshlrev_b32 v{CE+8}, 3, v{tL}
    s_mul_i32 s{sW2}, s{sW}, 12288
    s_mul_i32 s{sT2}, s{sW}, 1536
    s_add_u32 s{sT2}, s{sT2}, {WS_WRP - WSO}
    ''')
    srd(a, S_BASE, 4, 5, 25600000)
    VM = []
    def wbatch(first):
        lab = 'kb_wb%d' % first
        a(f'''s_bitcmp{1 if not first else 0}_b32 s2, {opts.get('rotbit', 3)}
              s_cbranch_scc1 {lab}_1''')
        for h in range(2):
            a(f's_add_u32 s{sT1}, s{sW2}, {6144*h}')
            for i in range(6):
                if i == 4:
                    a(f's_add_u32 s{sT1}, s{sT1}, 4096')
                a(f'buffer_load_dwordx4 {vr(W2+4*(6*h+i),4)}, v{CE+7}, {sr(S_WS)}, s{sT1} offen offset:{1024*(i%4)}')
            if h == 0:
                a(f'''s_branch {lab}_e
                      {lab}_1:''')
        a(f'{lab}_e:')
        VM.extend(['w'] * 6)
    def wr_load():
        for i in range(3):
            a(f'buffer_load_dwordx2 {vr(WR+2*i,2)}, v{CE+8}, {sr(S_WS)}, s{sT2} offen offset:{512*i}')
        VM.extend(['w'] * 3)
    SRC3 = V + 12
    def dma_addr(srcb):
        o = []
        if opts.get('fakesrc'):
            o.append(f'v_and_b32 v{srcb}, {opts["fakesrc"]}, v{srcb}')
        o += [f'v_lshl_add_u32 v{vOH}, v{srcb}, 8, v{vSwzH}', f'v_lshl_add_u32 v{vOV}, v{srcb}, 10, v{vSwzV}']
        return o
    def dma_piece(k):
        if opts.get('nodma'):
            return [f's_mov_b32 m0, s{sDma}']
        if k == 0:
            return [f's_mov_b32 m0, s{sDma}', f'buffer_load_dwordx4 v{vOH}, {sr(S_H)}, 0 offen lds']
        o = [f's_add_u32 m0, s{sDma}, {1024*k}', f'buffer_load_dwordx4 v{vOV}, {sr(S_SV)}, s{[0, s256, s512, s768][k]} offen lds']
        if k == 3:
            o += [f's_add_u32 s{sDma}, s{sDma}, 0x8000', f's_cmp_ge_u32 s{sDma}, 0x18000',
                  f's_cselect_b32 s{sT4}, 0x18000, 0', f's_sub_u32 s{sDma}, s{sDma}, s{sT4}']
        return o
    def item_groups(it):
        k, j = it[0], int(it[1])
        if k == 'o':
            g = [[x] for x in own_ins(j, NTO)]
            g[0].insert(0, f's_mov_b32 s{sT3}, {14336*j}')
        else:
            nd = opts.pop('nodma', None)
            g = [dma_piece(q) for q in range(4)]
            if nd:
                opts['nodma'] = nd
            g[0] = dma_addr(SRC3 + j) + g[0]
        return [(it, x) for x in g]
    def emit_items(items):
        for it in items:
            if it == 'w0':
                wbatch(0)
            elif it == 'w1':
                wbatch(1)
            elif it == 'wr':
                wr_load()
            else:
                for tag, g in item_groups(it):
                    for x in g:
                        a(x)
                    VM.append(tag)
    def vm_after(tags):
        last = max(i for i, t in enumerate(VM) if t in tags)
        return len(VM) - 1 - last
    P1 = opts.get('p1', 'w0,wr').split(',')
    P2 = opts.get('p2', 'd0,w1').split(',')
    P3 = opts.get('p3', 'o0,d1').split(',')
    NPRE = 1 + max(int(x[1]) for x in P1 + P2 + P3 if x[0] == 'o')
    VM.append('cell')
    a(f'''
    v_and_b32 v{T+8}, 7, v0
    v_lshlrev_b32 v{T+8}, 2, v{T+8}
    v_add_u32 v{T+8}, {L_GCNT}, v{T+8}
    v_mov_b32 v{T+9}, 0
    ds_write_b32 v{T+8}, v{T+9}
    s_waitcnt lgkmcnt(0)
    s_barrier
    s_load_dwordx8 s[{FR}:{FR+7}], s[12:13], 0
    ''')
    emit_items(P1)
    srd(a, S_SV, 4, 5, 25600000)
    srd(a, S_OUT, 20, 21, 25600000)
    srd(a, S_H, 24, 25, 6400000, WS_H)
    srd(a, S_POS, 6, 7, 150000)
    a(f'''
    s_mov_b32 s{sMask}, 0xffff0000
    s_mov_b32 s{sMode}, 0
    s_movk_i32 s{s256}, 256
    s_movk_i32 s{s512}, 512
    s_movk_i32 s{s768}, 768
    s_mov_b32 s{sK8}, 0x80008000
    s_mov_b32 s{sC8}, 0x8000
    s_mul_i32 s{sNeg}, s2, {-147*98}
    s_mov_b32 s{sGC}, {L_GCNT}
    s_mov_b32 s{sTM}, {L_TMP}
    v_mov_b32 v{vOne}, 0x3f803f80
    s_lshr_b32 s{sT0}, s{sW}, 1
    s_lshl_b32 s{sT1}, s{sT0}, 2
    v_add_u32 v{T+3}, s{sT1}, v{tG}
    v_xor_b32 v{T+3}, v{T+3}, v{tN}
    v_lshlrev_b32 v{vSwzH}, 4, v{T+3}
    v_and_b32 v{T+3}, 1, v{tG}
    v_lshl_or_b32 v{T+3}, v{T+3}, 1, s{sT1}
    v_xor_b32 v{T+3}, v{T+3}, v{tN}
    v_lshlrev_b32 v{vSwzV}, 4, v{T+3}
    v_and_b32 v{T+5}, 3, v0
    v_lshlrev_b32 v{T+5}, 2, v{T+5}
    v_cmp_ne_u32 s[{GE+2}:{GE+3}], 0, v{T+5}
    ''')
    stamp()
    a(f'''
    s_waitcnt vmcnt({vm_after(['cell'])}) lgkmcnt(0)
    v_and_b32 v{CE+4}, 0xffff, v{CE}
    v_mov_b32_dpp v{CE+4}, v{CE+4} quad_perm:[0,0,0,0] row_mask:0xf bank_mask:0xf
    ''')
    for k in range(7, -1, -1):
        a(f'''s_and_b32 s{FR+2*k+1}, s{FR+k}, s{sMask}
              s_lshl_b32 s{FR+2*k}, s{FR+k}, 16''')
    a(f'''
    v_sub_u32 v{CE+5}, v{CE+4}, v{T+5}
    v_cmp_lt_i32 vcc, 0, v{CE+5}
    s_and_b64 s[{GE}:{GE+1}], vcc, s[{GE+2}:{GE+3}]
    v_cmp_lt_i32 s[{GE+2}:{GE+3}], 16, v{CE+5}
    kb_propose:
    v_mov_b32 v{T+9}, 1
    v_mov_b32 v{CE+6}, 147
    v_and_b32 v{tL}, 63, v0
    v_lshlrev_b32 v{CE+7}, 4, v{tL}
    v_lshlrev_b32 v{CE+8}, 3, v{tL}
    ''')
    stamp()
    def wload(n):
        pass
    def prop(lo, nw):
        for q in range(2):
            a(f'''
            v_lshrrev_b32 v{U+q}, 16, v{CE+lo+q}
            v_mad_u32_u24 v{U+q}, v{U+q}, v{CE+6}, s{sNeg}
            v_lshrrev_b32 v{U+q}, 11, v{U+q}
            v_lshl_add_u32 v{U+4+q}, v{U+q}, 2, s{sGC}
            ''')
        for q in range(2):
            a(f'''s_mov_b64 exec, s[{GE+2*q}:{GE+2*q+1}]
                  ds_add_rtn_u32 v{U+8+q}, v{U+4+q}, v{T+9}''')
        a('s_mov_b64 exec, -1')
        for q in range(2):
            a(f'v_lshl_add_u32 v{U+q}, v{U+q}, 9, s{sTM}')
        wload(nw)
        a('s_waitcnt lgkmcnt(0)')
        for q in range(2):
            a(f'''v_min_u32 v{U+8+q}, 0x7f, v{U+8+q}
                  v_lshl_add_u32 v{U+q}, v{U+8+q}, 2, v{U+q}''')
        for q in range(2):
            a(f'''s_mov_b64 exec, s[{GE+2*q}:{GE+2*q+1}]
                  ds_write_b32 v{U+q}, v{CE+lo+q}''')
        a('s_mov_b64 exec, -1')
    W1N = W2N = W3N = 0
    prop(0, W1N)
    a(f'''
    v_cmp_lt_u32 vcc, 32, v{CE+4}
    s_cbranch_vccz kb_prop_done
    v_cmp_lt_i32 s[{GE}:{GE+1}], 32, v{CE+5}
    v_cmp_lt_i32 s[{GE+2}:{GE+3}], 48, v{CE+5}
    ''')
    prop(2, 0)
    a(f'''
    v_cmp_lt_u32 vcc, 64, v{CE+4}
    v_mov_b32 v{U}, {L_GCNT + 28}
    s_mov_b64 exec, vcc
    ds_add_u32 v{U}, v{T+9}
    s_mov_b64 exec, -1
    kb_prop_done:
    v_mov_b32 v{U}, {L_GCNT}
    s_waitcnt lgkmcnt(0)
    s_barrier
    ds_read_b128 {vr(U+4,4)}, v{U}
    ds_read_b128 {vr(U+8,4)}, v{U} offset:16
    ''')
    wload(W2N)
    tP = T + 3
    a(f'''
    v_and_b32 v{tN}, 15, v0
    v_bfe_u32 v{tG}, v0, 4, 2
    v_lshrrev_b32 v{T+4}, 2, v{tL}
    v_and_b32 v{T+5}, 3, v{tL}
    s_lshl_b32 s{sT0}, s{sW}, 2
    v_add_u32 v{T+6}, s{sT0}, v{T+5}
    v_lshl_add_u32 v{tP}, v{T+4}, 5, v{T+6}
    v_lshl_add_u32 v{T+7}, v{tP}, 2, s{sTM}
    s_waitcnt lgkmcnt(0)
    ''')
    stamp()
    for j in range(8):
        a(f'v_readfirstlane_b32 s{GE+j}, v{U+4+j}')
    sA, sB, sD = sStA, sStB, sStC
    a(f'''
    s_max_u32 s{sA}, s{GE}, s{GE+1}
    s_max_u32 s{sB}, s{GE+2}, s{GE+3}
    s_max_u32 s{sD}, s{GE+4}, s{GE+5}
    s_max_u32 s{sA}, s{sA}, s{GE+6}
    s_max_u32 s{sB}, s{sB}, s{sD}
    s_max_u32 s{sA}, s{sA}, s{sB}
    s_mov_b32 s{sTot}, 0
    ''')
    for j in range(7):
        a(f's_add_u32 s{sTot}, s{sTot}, s{GE+j}')
        if j < 6:
            a(f'''s_lshl_b32 s{sB}, s{GE+j}, 2
                  s_sub_u32 s{sB}, 512, s{sB}
                  v_cmpx_le_u32 vcc, s{sTot}, v{tP}
                  v_add_u32 v{T+7}, s{sB}, v{T+7}''')
        a(f's_mov_b32 s{GE+j}, s{sTot}')
    a(f'''
    s_mov_b64 exec, -1
    ds_read_b32 v{T+8}, v{T+7}
    ''')
    wload(W3N)
    a(f'''
    s_cmp_gt_u32 s{sA}, 128
    s_cselect_b32 s{GE+7}, 1, s{GE+7}
    s_cmp_gt_u32 s{sTot}, {LISTCAP}
    s_cselect_b32 s{GE+7}, 1, s{GE+7}
    s_cmp_lg_u32 s{GE+7}, 0
    s_cbranch_scc1 kb_go_slow
    s_cmp_eq_u32 s{sTot}, 0
    s_cbranch_scc1 kb_empty
    ''')
    a(f'''
    s_lshl_b32 s{sT0}, s{GE+1}, 9
    s_or_b32 s{sGP}, s{GE}, s{sT0}
    s_lshl_b32 s{sT0}, s{GE+2}, 18
    s_or_b32 s{sGP}, s{sGP}, s{sT0}
    s_lshl_b32 s{sT0}, s{GE+3}, 27
    s_or_b32 s{sGP}, s{sGP}, s{sT0}
    s_lshr_b32 s{sGP+1}, s{GE+3}, 5
    s_lshl_b32 s{sT0}, s{GE+4}, 4
    s_or_b32 s{sGP+1}, s{sGP+1}, s{sT0}
    s_lshl_b32 s{sT0}, s{GE+5}, 13
    s_or_b32 s{sGP+1}, s{sGP+1}, s{sT0}
    s_lshl_b32 s{sT0}, s{GE+6}, 22
    s_or_b32 s{sGP+1}, s{sGP+1}, s{sT0}
    v_cmp_gt_u32 vcc, s{sTot}, v{tP}
    v_mov_b32 v{T+9}, {PADSRC}
    v_mov_b32 v{T+10}, 0x3fff
    v_lshlrev_b32 v{vBP}, 2, v{tG}
    s_waitcnt lgkmcnt(0)
    v_and_b32 v{T+11}, 0xffff, v{T+8}
    v_lshrrev_b32 v{T+12}, 16, v{T+8}
    v_cndmask_b32 v{vSrc}, v{T+9}, v{T+11}, vcc
    v_cndmask_b32 v{T+13}, v{T+9}, v{T+12}, vcc
    ds_bpermute_b32 v{SRC3}, v{vBP}, v{vSrc}
    ds_bpermute_b32 v{SRC3+1}, v{vBP}, v{vSrc} offset:16
    ds_bpermute_b32 v{vSrcB}, v{vBP}, v{vSrc} offset:32
    v_add_u32 v{vBP}, 48, v{vBP}
    v_mul_u32_u24 v{T+14}, 6, v{vSrc}
    v_and_b32 v{T+14}, -4, v{T+14}
    v_mul_u32_u24 v{T+15}, 6, v{T+13}
    v_and_b32 v{T+15}, -4, v{T+15}
    ''')
    wload(15)
    a(f'''
    buffer_load_dwordx2 {vr(T+16,2)}, v{T+14}, {sr(S_POS)}, 0 offen
    buffer_load_dwordx2 {vr(T+18,2)}, v{T+15}, {sr(S_POS)}, 0 offen
    v_subrev_u32 v{T+12}, s{sNode0}, v{T+12}
    v_cndmask_b32 v{T+10}, v{T+10}, v{T+12}, vcc
    v_lshlrev_b32 v{T+10}, 1, v{T+10}
    s_lshl_b32 s{sDma}, s{sW}, 12
    s_waitcnt lgkmcnt(1)
    ''')
    VM.extend(['pos', 'pos'])
    a(f'''s_mul_i32 s{sT2}, s{sW}, 1536
          s_add_u32 s{sT2}, s{sT2}, {WS_WRP - WSO}''')
    emit_items(P2)
    if opts.get('p2bar', '1') == '1':
        a('s_barrier')
    stamp()
    a(f'''
    v_lshrrev_b32 v{U}, 2, v{tN}
    v_lshlrev_b32 v{U}, 13, v{U}
    v_and_b32 v{U+1}, 3, v{tN}
    v_lshl_or_b32 v{U}, v{U+1}, 8, v{U}
    v_xor_b32 v{U+1}, v{tG}, v{tN}
    ''')
    for s in range(4):
        a(f'''v_xor_b32 v{U+2}, {4*s}, v{U+1}
              v_lshl_or_b32 v{vAH+s}, v{U+2}, 4, v{U}''')
    a(f'''
    v_bfe_u32 v{U}, v{tL}, 3, 1
    v_lshl_or_b32 v{U+1}, v{tG}, 1, v{U}
    v_xor_b32 v{U+1}, s{sW}, v{U+1}
    v_lshlrev_b32 v{U+1}, 5, v{U+1}
    v_lshl_or_b32 v{U+1}, v{U}, 8, v{U+1}
    v_lshl_or_b32 v{U+1}, v{tG}, 13, v{U+1}
    v_lshl_or_b32 v{U+1}, v{T+5}, 3, v{U+1}
    v_and_b32 v{U+2}, 4, v{tL}
    v_xor_b32 v{U+2}, 4, v{U+2}
    v_lshl_or_b32 v{vAV}, v{U+2}, 18, v{U+1}
    v_lshlrev_b32 v{vAR}, 3, v{tL}
    v_add_u32 v{vAR}, {L_RBF}, v{vAR}
    v_lshlrev_b32 v{vAS}, 5, v{tG}
    v_add_u32 v{vAS}, {L_META}, v{vAS}
    v_lshlrev_b32 v{vKey}, 1, v{tN}
    v_lshl_or_b32 v{vKey}, v{vKey}, 16, v{vKey}
    ''')
    tWR, tWS, tWD = T + 20, T + 21, T + 22
    a(f'''
    s_and_b32 s{sT0}, s{sW}, 1
    s_lshl_b32 s{sT2}, s{sT0}, 3
    s_lshl_b32 s{sT0}, s{sT0}, 9
    s_lshr_b32 s{sT1}, s{sW}, 1
    s_lshl_b32 s{sT1}, s{sT1}, 5
    s_add_u32 s{sT2}, s{sT2}, s{sT1}
    s_add_u32 s{sT2}, s{sT2}, {L_META + 384}
    s_add_u32 s{sT0}, s{sT0}, s{sT1}
    s_add_u32 s{sT0}, s{sT0}, {L_RBF}
    v_lshlrev_b32 v{tWR}, 10, v{T+4}
    v_lshl_add_u32 v{tWR}, v{T+5}, 3, v{tWR}
    v_add_u32 v{tWR}, s{sT0}, v{tWR}
    v_lshlrev_b32 v{tWS}, 9, v{T+4}
    v_lshl_add_u32 v{tWD}, v{T+5}, 1, v{tWS}
    v_add_u32 v{tWD}, s{sT2}, v{tWD}
    v_lshl_add_u32 v{tWS}, v{T+6}, 2, v{tWS}
    v_add_u32 v{tWS}, {L_META}, v{tWS}
    ds_write_b16 v{tWD}, v{T+10}
    v_lshlrev_b32 v{T+14}, 4, v{vSrc}
    v_lshlrev_b32 v{T+15}, 4, v{T+13}
    s_waitcnt vmcnt({vm_after(['pos'])})
    ''')
    stamp()
    real_a = a
    p3q = []
    for it in P3:
        p3q += item_groups(it)
    cnt = [0]
    GAP = int(opts.get('p3gap', 8))
    def a(txt):
        for ln in txt.split('\n'):
            ln = ln.strip()
            if not ln:
                continue
            real_a(ln)
            cnt[0] += 1
            if cnt[0] % GAP == 0 and p3q:
                tag, g = p3q.pop(0)
                for x in g:
                    real_a(x)
                VM.append(tag)
    x, y, z = U, U + 1, U + 2
    a(f'''
    v_alignbit_b32 v{U+8}, v{T+17}, v{T+16}, v{T+14}
    v_lshrrev_b32 v{U+9}, v{T+14}, v{T+17}
    v_alignbit_b32 v{U+10}, v{T+19}, v{T+18}, v{T+15}
    v_lshrrev_b32 v{U+11}, v{T+15}, v{T+19}
    v_lshlrev_b32 v{x}, 16, v{U+8}
    v_and_b32 v{y}, {M}, v{U+8}
    v_lshlrev_b32 v{z}, 16, v{U+9}
    v_lshlrev_b32 v{U+3}, 16, v{U+10}
    v_and_b32 v{U+4}, {M}, v{U+10}
    v_lshlrev_b32 v{U+5}, 16, v{U+11}
    v_sub_f32 v{x}, v{x}, v{U+3}
    v_sub_f32 v{y}, v{y}, v{U+4}
    v_sub_f32 v{z}, v{z}, v{U+5}
    v_cvt_pk_bf16_f32 v{x}, 0, v{x}
    v_cvt_pk_bf16_f32 v{y}, 0, v{y}
    v_cvt_pk_bf16_f32 v{z}, 0, v{z}
    v_mul_f32 v{U+3}, v{x}, v{x}
    v_mul_f32 v{U+4}, v{y}, v{y}
    v_mul_f32 v{U+5}, v{z}, v{z}
    v_cvt_pk_bf16_f32 v{U+3}, 0, v{U+3}
    v_cvt_pk_bf16_f32 v{U+4}, 0, v{U+4}
    v_cvt_pk_bf16_f32 v{U+5}, 0, v{U+5}
    v_add_f32 v{U+3}, v{U+3}, v{U+4}
    v_add_f32 v{U+3}, v{U+3}, v{U+5}
    v_cvt_pk_bf16_f32 v{U+3}, 0, v{U+3}
    v_add_f32 v{U+3}, 0x322bcc77, v{U+3}
    v_cvt_pk_bf16_f32 v{U+3}, 0, v{U+3}
    v_sqrt_f32 v{U+3}, v{U+3}
    v_cvt_pk_bf16_f32 v{U+3}, 0, v{U+3}
    v_rcp_f32 v{U+4}, v{U+3}
    ''')
    d, rd = U + 3, U + 4
    X = U + 12
    P = T + 24
    for k in range(16):
        a(f'v_mul_f32 v{X+k}, s{FR+k}, v{d}')
    a(f'''
    v_mul_f32 v{U+5}, 0x40490fdb, v{d}
    v_mul_f32 v{x}, v{x}, v{rd}
    v_cvt_pk_bf16_f32 v{U+5}, 0, v{U+5}
    v_mul_f32 v{y}, v{y}, v{rd}
    v_mul_f32 v{U+5}, 0x3e4ccccd, v{U+5}
    v_mul_f32 v{z}, v{z}, v{rd}
    v_cvt_pk_bf16_f32 v{U+5}, 0, v{U+5}
    v_cvt_pk_bf16_f32 v{x}, 0, v{x}
    v_mul_f32 v{U+5}, 0.15915494, v{U+5}
    v_cvt_pk_bf16_f32 v{y}, 0, v{y}
    v_cos_f32 v{U+5}, v{U+5}
    v_cvt_pk_bf16_f32 v{z}, 0, v{z}
    v_cvt_pk_bf16_f32 v{U+5}, 0, v{U+5}
    ds_write_b32 v{tWS}, v{x}
    v_add_f32 v{U+5}, 1.0, v{U+5}
    ds_write_b32 v{tWS}, v{y} offset:128
    v_cvt_pk_bf16_f32 v{U+5}, 0, v{U+5}
    ds_write_b32 v{tWS}, v{z} offset:256
    v_mul_f32 v{U+5}, 0.5, v{U+5}
    v_cmp_gt_f32 vcc, 0x40a00000, v{d}
    v_cndmask_b32 v{U+5}, 0, v{U+5}, vcc
    v_mul_f32 v{rd}, v{rd}, v{U+5}
    ''')
    for k in range(16):
        a(f'v_cvt_pk_bf16_f32 v{X+k}, 0, v{X+k}')
    for k in range(16):
        a(f'v_mul_f32 v{X+k}, 0.15915494, v{X+k}')
    for k in range(16):
        a(f'v_sin_f32 v{X+k}, v{X+k}')
    for k in range(16):
        a(f'v_mul_f32 v{X+k}, v{X+k}, v{rd}')
    for k in range(8):
        a(f'v_cvt_pk_bf16_f32 v{P+k}, v{X+2*k}, v{X+2*k+1}')
    for g in range(4):
        a(f'ds_write_b64 v{tWR}, {vr(P+2*g,2)} offset:{128*g}')
    a = real_a
    for tag, g in p3q:
        for x in g:
            a(x)
        VM.append(tag)
    def acc_zero():
        for i in range(16):
            a(f'v_mov_b32 v{ACC+i}, 0')
    nA = vm_after(['d1'])
    assert nA % 2 == 0 and vm_after(['o0']) > vm_after(['d1'])
    tail_blocks = []
    a(f'''
    s_mov_b32 s{sG}, 0
    s_and_b32 s{sGend}, s{sGP}, 0x1ff
    s_mov_b32 s{sTe}, 32
    s_mov_b32 s{sStA}, {nA//2}
    s_mov_b32 s{sStB}, 0
    s_mov_b32 s{sX}, 0x8000
    s_mov_b32 s{sSl}, 0
    s_mov_b32 s{sPend}, 0
    s_mov_b32 s{sPar}, 0
    s_mov_b32 s{sOk}, 0
    s_mov_b32 s{sOwnN}, {NPRE}
    s_cmp_lg_u32 s{sMode}, 0
    s_cbranch_scc1 kb_slow_own
    kb_slow_ownr:
    ''')
    def blk_so():
        a('''kb_slow_own:
             s_waitcnt vmcnt(0)''')
        for j in range(7):
            own_load(j, ' sc0 sc1')
        a(f'''s_mov_b32 s{sOwnN}, 7
              s_mov_b32 s{sOk}, 0x7fffffff
              s_waitcnt vmcnt(0)
              s_branch kb_slow_ownr''')
    tail_blocks.append(blk_so)
    stamp()
    acc_zero()
    a(f'''
    s_cmp_ge_u32 s{sW}, {opts.get('bfrom', 4)}
    s_waitcnt vmcnt({vm_after(['d0', 'w'])}) lgkmcnt(0)
    s_cbranch_scc1 kb_B_entry
    ''')
    PG = int(opts.get('pg', 2)); PS = int(opts.get('ps', 3))
    PMD = {'A': int(opts.get('pma', 0)), 'B': int(opts.get('pmb', 1))}
    SMEND = opts.get('smend', '1') == '1'

    class LQ:
        def __init__(self):
            self.q = []
        def issue(self, tag, txt):
            if len(self.q) >= 15:
                a('s_waitcnt lgkmcnt(8)'); self.q = self.q[-8:]
            a(txt); self.q.append(tag)
        def need(self, *tags):
            idx = [i for i, t in enumerate(self.q) if t in tags]
            if not idx:
                return
            last = max(idx)
            a(f's_waitcnt lgkmcnt({len(self.q)-1-last})')
            self.q = self.q[last + 1:]
    def gemm(t, s):
        H = HA if t == 0 else HB
        out = []
        for b in range(3):
            c = '0' if s == 0 else vr(PHI[t] + 4 * b, 4)
            out.append(f'v_mfma_f32_16x16x32_bf16 {vr(PHI[t]+4*b,4)}, {vr(H+4*s,4)}, {vr(W2+16*b+4*s,4)}, {c}')
        return out
    def wf(t):
        return [f'v_mfma_f32_16x16x16_bf16 {vr(WRD+4*b,4)}, {vr(RBF+2*t,2)}, {vr(WR+2*b,2)}, 0' for b in range(3)]
    def sm(k, z=False):
        a(f'v_mfma_f32_16x16x32_bf16 {vr(ACC+4*k,4)}, {vr(MSG[k],4)}, {vr(SEL,4)}, {"0" if z else vr(ACC+4*k,4)}')
    def selb():
        for i in range(4):
            a(f'v_xor_b32 v{SEL+i}, v{DL+i}, v{vKey}')
        for i in range(4):
            a(f'v_pk_mad_i16 v{SEL+i}, v{SEL+i}, s{sK8}, v{vOne} clamp')
    def vreads(t):
        return [('V%d' % t, f'ds_read_b64_tr_b16 {vr(V+12*t+4*c+2*p,2)}, v{vAV} offset:{4096*t+1024*(c+1)+512*p}') for c in range(3) for p in range(2)]
    def issue_head(X_, lq):
        a(f'''
        s_cmp_lt_u32 s{sOwnN}, 7
        s_cbranch_scc1 kb_own{X_}
        kb_ownr{X_}:
        ''')
        def blk():
            a(f'''kb_own{X_}:
                  s_add_u32 s{sStA}, s{sStA}, 1
                  s_add_u32 s{sOwnN}, s{sOwnN}, 1''')
            for j in range(NPRE, 7):
                if j < 6:
                    a(f'''s_cmp_lg_u32 s{sOwnN}, {j+1}
                          s_cbranch_scc1 kb_own{X_}_{j+1}''')
                own_load(j)
                a(f's_branch kb_ownr{X_}')
                if j < 6:
                    a(f'kb_own{X_}_{j+1}:')
        tail_blocks.append(blk)
        for x in dma_addr(vSrcB):
            a(x)
        p0 = dma_piece(0)
        a(p0[0])
        lq.issue('bp', f'ds_bpermute_b32 v{vSrcB}, v{vBP}, v{vSrc}')
        for x in p0[1:]:
            a(x)
        a(f'''
        s_mov_b32 s{sStB}, s{sStA}
        s_mov_b32 s{sStA}, 0
        v_add_u32 v{vBP}, 16, v{vBP}
        ''')
    def wait_tree(X_, dest):
        a(f'''
        s_add_u32 s{sT1}, s{sStA}, s{sStB}
        ''')
        def rec(lo, hi):
            if hi - lo == 1:
                a(f'''s_waitcnt vmcnt({4+2*lo}){' lgkmcnt(0)' if X_ == 'A' else ''}
                      s_branch {dest}''')
                return
            mid = (lo + hi) // 2
            a(f'''s_cmp_ge_u32 s{sT1}, {mid}
                  s_cbranch_scc1 kb_w{X_}_{mid}_{hi}''')
            rec(lo, mid)
            a(f'kb_w{X_}_{mid}_{hi}:')
            rec(mid, hi)
        rec(0, 6)
    p0_, p1_ = PHI
    DSL = [int(x) for x in opts.get('dsl', '6,13,20').split(',')]
    def G(X_, with_issue, lq):
        for s in range(4):
            lq.issue('HA%d' % s, f'ds_read_b128 {vr(HA+4*s,4)}, v{vAH+s}')
        lq.issue('B0', f'ds_read_b64 {vr(RBF,2)}, v{vAR}')
        if with_issue:
            issue_head(X_, lq)
        mf = []
        for s in range(4):
            mf += [(m, 'HA%d' % s) for m in gemm(0, s)]
        mf += [(m, 'B0') for m in wf(0)]
        for s in range(4):
            mf += [(m, 'B1') for m in gemm(1, s)]
        mf += [(m, 'B1') for m in wf(1)]
        ls = {i: [] for i in range(30)}
        for s in range(4):
            ls[s].append(('HB%d' % s, f'ds_read_b128 {vr(HB+4*s,4)}, v{vAH+s} offset:4096'))
        ls[4].append(('B1', f'ds_read_b64 {vr(RBF+2,2)}, v{vAR} offset:512'))
        for i, x in enumerate(vreads(0)):
            ls[5 + i].append(x)
        for c in range(3):
            ls[12 + c].append(('R0', f'ds_read_b128 {vr(RR[0]+4*c,4)}, v{vAS} offset:{128*c}'))
        for i, x in enumerate(vreads(1)):
            ls[15 + i].append(x)
        ls[21].append(('DL', f'ds_read_b128 {vr(DL,4)}, v{vAS} offset:384'))
        for c in range(3):
            ls[24 + c].append(('R1', f'ds_read_b128 {vr(RR[1]+4*c,4)}, v{vAS} offset:{128*c+16}'))
        vs = {i: [] for i in range(30)}
        for s in range(4):
            vs[4 + s].append(f'v_add_u32 v{vAH+s}, s{sX}, v{vAH+s}')
        vs[8].append(f'v_add_u32 v{vAR}, 1024, v{vAR}')
        late = [f'v_mul_f32 v{p0_+i}, v{p0_+i}, v{WRD+i}' for i in (8, 9, 10, 11, 0, 1, 2, 3, 4, 5, 6, 7)]
        late += [f'v_cvt_pk_bf16_f32 v{MSG[0]}, v{p0_}, v{p0_+1}', f'v_cvt_pk_bf16_f32 v{MSG[0]+1}, v{p0_+2}, v{p0_+3}']
        late += [('R0', f'v_mul_f32 v{RR[0]+4*c+i}, v{RR[0]+4*c+i}, v{p0_+8+i}') for c in range(3) for i in range(4)]
        sl = 17
        while late:
            vs[sl] += late[:2]; late = late[2:]; sl += 1
        assert sl <= 30
        vs[21].append(f'v_add_u32 v{vAV}, s{sX}, v{vAV}')
        vs[27].append(f'v_add_u32 v{vAS}, 512, v{vAS}')
        vs[9].append(f'v_add_u32 v{DLT}, s{sPar}, v{vStgR}')
        vs[22].append(f's_add_u32 s{sSl}, s{sSl}, s{sX}')
        vs[23].append(f's_cmp_eq_u32 s{sSl}, 0x10000')
        vs[23].append(f's_cselect_b32 s{sX}, 0xffff0000, s{sC8}')
        for i, (m, tag) in enumerate(mf):
            lq.need(tag)
            pc = None
            if with_issue and i in DSL:
                pc = dma_piece(1 + DSL.index(i)); a(pc[0])
            a(m)
            if pc:
                for x in pc[1:]:
                    a(x)
            for tag2, x in ls[i]:
                lq.issue(tag2, x)
            for x in vs[i]:
                if isinstance(x, tuple):
                    lq.need(x[0]); x = x[1]
                a(x)
    MSL = [int(x) for x in opts.get('msl', '12,28,44').split(',')]
    def Mphase(X_, lq, with_dma):
        p0, p1 = PHI
        cnt = [0]
        def v(x):
            if with_dma and cnt[0] in MSL:
                pc = dma_piece(1 + MSL.index(cnt[0]))
                a(pc[0]); a(x)
                for y in pc[1:]:
                    a(y)
            else:
                a(x)
            cnt[0] += 1
        lq.issue('DLT', f'ds_read_b128 {vr(DLT+4,4)}, v{DLT} offset:1056')
        lq.issue('DLT', f'ds_read_b128 {vr(DLT,4)}, v{DLT}')
        lq.need('V0', 'DL')
        for i in range(4):
            v(f'v_xor_b32 v{SEL+i}, v{DL+i}, v{vKey}')
        for i in range(12):
            v(f'v_fmac_f32 v{RR[0]+i}, v{V+i}, v{p0+4+i%4}')
        for i in range(4):
            v(f'v_pk_mad_i16 v{SEL+i}, v{SEL+i}, s{sK8}, v{vOne} clamp')
        for i in range(12):
            v(f'v_mul_f32 v{p1+i}, v{p1+i}, v{WRD+i}')
        v(f'v_cvt_pk_bf16_f32 v{MSG[0]+2}, v{p1}, v{p1+1}')
        v(f'v_cvt_pk_bf16_f32 v{MSG[0]+3}, v{p1+2}, v{p1+3}')
        lq.need('V1', 'R1')
        for c in range(3):
            for i in range(4):
                v(f'v_mul_f32 v{RR[1]+4*c+i}, v{RR[1]+4*c+i}, v{p1+8+i}')
            if not SMEND:
                sm(c)
            for i in range(4):
                v(f'v_fmac_f32 v{RR[1]+4*c+i}, v{V+12+4*c+i}, v{p1+4+i}')
            for t in range(2):
                for h in range(2):
                    v(f'v_cvt_pk_bf16_f32 v{MSG[1+c]+2*t+h}, v{RR[t]+4*c+2*h}, v{RR[t]+4*c+2*h+1}')
        if SMEND:
            a(f's_setprio {PS}')
            for c in range(3):
                sm(c)
        sm(3)
        a(f's_setprio {PMD[X_]}')
        lq.need('DLT')
        assert cnt[0] > max(MSL)
    ST = PHI[0]
    def service(L, reads):
        if reads:
            a(f'''v_add_u32 v{DLT}, s{sPar}, v{vStgR}
                  ds_read_b128 {vr(DLT+4,4)}, v{DLT} offset:1056
                  ds_read_b128 {vr(DLT,4)}, v{DLT}''')
        a(f'''
        s_lshl_b32 s{sT0}, s{sG}, 2
        s_sub_u32 s{sT1}, s{sG}, 8
        s_cmp_gt_u32 s{sT0}, s{sOk}
        s_cbranch_scc1 kb_fb{L}
        kb_fbr{L}:
        s_set_gpr_idx_on s{sT1}, 0x2
        s_mul_i32 s{sT2}, s{sT1}, 1792
        s_add_u32 s{sStA}, s{sStA}, 1
        ''')
        def blk():
            a(f'''kb_fb{L}:
                  s_cmp_ge_u32 s{sOwnN}, 7
                  s_cbranch_scc1 kb_fb2{L}''')
            for j in range(NPRE, 7):
                own_load(j)
            a(f'''kb_fb2{L}:
                  s_mov_b32 s{sOwnN}, 7
                  s_mov_b32 s{sOk}, 0x7fffffff
                  s_waitcnt vmcnt(0)
                  s_branch kb_fbr{L}''')
        tail_blocks.append(blk)
        for i in range(8):
            a(f'''v_lshlrev_b32 v{V+2*i}, 16, v{OWN+i}
                  v_and_b32 v{V+2*i+1}, {M}, v{OWN+i}''')
        a(f'''s_set_gpr_idx_off
              s_mov_b32 s{sPend}, 0''')
        if reads:
            a('s_waitcnt lgkmcnt(0)')
        for h in range(2):
            r = range(4 * h, 4 * h + 4)
            for i in r:
                a(f'v_lshlrev_b32 v{V+16+i}, 16, v{DLT+i}')
            for i in r:
                a(f'v_and_b32 v{DLT+i}, {M}, v{DLT+i}')
            for i in r:
                a(f'v_add_f32 v{V+16+i}, v{V+16+i}, v{V+2*i}')
            for i in r:
                a(f'v_add_f32 v{DLT+i}, v{DLT+i}, v{V+2*i+1}')
            for i in r:
                a(f'v_cvt_pk_bf16_f32 v{DLT+i}, v{V+16+i}, v{DLT+i}')
            if not opts.get('nostore'):
                a(f'buffer_store_dwordx4 {vr(DLT+4*h,4)}, v{[vOut, vOut2][h]}, {sr(S_OUT)}, s{sT2} offen offset:{2048*h}{NTS}')
    def Sflush(X_):
        a(f'''
        s_cmp_eq_u32 s{sPend}, 0
        s_cbranch_scc1 kb_segend{X_}
        ''')
        service('r' + X_, False)
        a(f'''
        kb_segend{X_}:
        s_cmp_gt_u32 s{sGend}, s{sTe}
        s_cbranch_scc1 kb_next{X_}
        kb_flush{X_}:
        s_cmp_lg_u32 s{sPend}, 0
        s_cbranch_scc1 kb_extra{X_}
        kb_extrar{X_}:
        s_add_u32 s{sG}, s{sG}, 8
        s_xor_b32 s{sPar}, s{sPar}, {2*STG_H}
        s_mov_b32 s{sPend}, 1
        v_add_u32 v{ST+8}, s{sPar}, v{vStgW}
        ''')
        def blk():
            a(f'''kb_extra{X_}:
                  s_waitcnt lgkmcnt(0)
                  s_barrier''')
            service('x' + X_, True)
            a(f's_branch kb_extrar{X_}')
            a(f'''kb_fin{X_}:
                  s_waitcnt lgkmcnt(0)
                  s_barrier''')
            service('f' + X_, True)
            if X_ == 'A':
                a('s_barrier')
            a('s_branch kb_done')
            a(f'kb_flushz{X_}:')
            acc_zero()
            a(f's_branch kb_flush{X_}')
        tail_blocks.append(blk)
        for i in range(8):
            a(f'v_cvt_pk_bf16_f32 v{ST+i}, v{ACC+2*i}, v{ACC+2*i+1}')
            if i & 1:
                a(f'ds_write_b64 v{ST+8}, {vr(ST+i-1,2)} offset:{64*(i-1)}')
        a(f'''
        s_cmp_eq_u32 s{sG}, 56
        s_cbranch_scc1 kb_fin{X_}
        v_add_u32 v{vKey}, 0x001c001c, v{vKey}
        s_lshr_b64 s[{sGP}:{sGP+1}], s[{sGP}:{sGP+1}], 9
        s_mov_b32 s{sGst}, s{sGend}
        s_and_b32 s{sGend}, s{sGP}, 0x1ff
        s_cmp_ge_u32 s{sGst}, s{sTe}
        s_cbranch_scc1 kb_nextz{X_}
        s_cmp_eq_u32 s{sGst}, s{sGend}
        s_cbranch_scc1 kb_flushz{X_}
        ''')
        selb()
        a(f's_setprio {PS}')
        for k in range(4):
            sm(k, True)
        a(f's_setprio {PMD[X_]}')
        a(f'''
        s_branch kb_segend{X_}
        kb_tail{X_}:
        s_mov_b32 s{sTe}, 0x7fffffff
        s_branch kb_flush{X_}
        kb_nextz{X_}:
        ''')
        acc_zero()
        a(f'''
        kb_next{X_}:
        s_cmp_ge_u32 s{sTe}, s{sTot}
        s_cbranch_scc1 kb_tail{X_}
        s_max_u32 s{sOk}, s{sOk}, s{sTe}
        s_add_u32 s{sTe}, s{sTe}, 32
        ''')
    a('kb_loopA:')
    stamp()
    a(f'''s_setprio {PG}
          s_barrier''')
    stamp()
    lq = LQ()
    G('A', True, lq)
    a(f's_setprio {PMD["A"]}')
    fstamp()
    Mphase('A', lq, False)
    assert not lq.q
    fstamp()
    Sflush('A')
    fstamp()
    wait_tree('A', 'kb_loopA')
    a('''kb_B_entry:
         s_barrier''')
    lq = LQ()
    issue_head('B0', lq)
    for k in range(1, 4):
        for x in dma_piece(k):
            a(x)
    a('kb_loopB:')
    a(f's_setprio {PG}')
    fstamp()
    assert lq.q == ['bp']
    G('B', False, lq)
    a(f's_setprio {PMD["B"]}')
    fstamp()
    lq.need('V1')
    a(f's_max_u32 s{sOk}, s{sOk}, s{sTe}')
    wait_tree('B', 'kb_B_bar')
    a('kb_B_bar:')
    stamp()
    a('s_barrier')
    stamp()
    issue_head('B', lq)
    fstamp()
    Mphase('B', lq, True)
    assert not lq.q
    fstamp()
    Sflush('B')
    a('s_branch kb_loopB')
    k_ = 0
    while k_ < len(tail_blocks):
        tail_blocks[k_](); k_ += 1
    a(f'''
    kb_go_slow:
    s_mov_b32 s{sMode}, 1
    s_mov_b32 s{sI}, 0
    s_mov_b32 s{sQ}, 0
    s_mov_b32 s{sC}, -1
    s_mov_b32 s{sLen}, 0
    s_mov_b32 s{sBase}, 0
    s_branch kb_copy
    kb_empty:
    s_cmp_lg_u32 s{sMode}, 0
    s_cbranch_scc1 kb_done
    kb_copy:
    s_mov_b64 s[{sGP}:{sGP+1}], 0
    s_mov_b32 s{sG}, 0
    s_mov_b32 s{sGend}, 0
    s_mov_b32 s{sTot}, 0
    s_mov_b32 s{sStA}, 0
    s_mov_b32 s{sOwnN}, 7
    s_mov_b32 s{sOk}, 0x7fffffff
    ''')
    for j in range(7):
        own_load(j)
    a(f'''s_mov_b32 s{sPend}, 0
          s_mov_b32 s{sPar}, 0
          s_waitcnt vmcnt(0)''')
    acc_zero()
    a(f'''
    s_branch kb_tailA
    kb_done:
    ''')
    if STAMP:
        stamp()
        a('s_waitcnt vmcnt(0)')
        stamp()
        srd(a, S_POS, 24, 25, 0x100000, 0x1000000)
        a(f'''v_lshlrev_b32 v{T}, 2, v0
              s_lshl_b32 s{sT0}, s2, 11
              v_add_u32 v{T}, s{sT0}, v{T}
              buffer_store_dword v{vStamp}, v{T}, {sr(S_POS)}, 0 offen''')
    a(f'''
    s_waitcnt vmcnt(2)
    s_cmp_eq_u32 s{sMode}, 0
    s_cbranch_scc1 kb_exit
    s_waitcnt vmcnt(0) lgkmcnt(0)
    s_barrier
    v_and_b32 v{T+8}, 7, v0
    v_lshlrev_b32 v{T+8}, 2, v{T+8}
    v_add_u32 v{T+8}, {L_GCNT}, v{T+8}
    v_mov_b32 v{T+9}, 0
    ds_write_b32 v{T+8}, v{T+9}
    s_mov_b32 s{S_BASE}, s20
    s_mov_b32 s{S_BASE+1}, s21
    s_cmp_ge_u32 s{sI}, 4
    s_cbranch_scc1 kb_mode2
    s_lshl_b32 s{sT0}, s2, 13
    s_add_u32 s{sT0}, s{sT0}, {WS_CELL - WSO}
    v_lshl_add_u32 v{T+4}, v0, 4, s{sT0}
    v_and_b32 v{T+6}, -64, v{T+4}
    s_lshl_b32 s{sT1}, s{sI}, 2
    buffer_load_dword v{CE+4}, v{T+6}, {sr(S_WS)}, 0 offen
    buffer_load_dword v{CE}, v{T+4}, {sr(S_WS)}, s{sT1} offen
    v_lshrrev_b32 v{T+3}, 7, v0
    v_cmp_eq_u32 s[{GE}:{GE+1}], s{sQ}, v{T+3}
    v_and_b32 v{T+5}, 3, v0
    v_add_u32 v{T+5}, s{sT1}, v{T+5}
    v_lshlrev_b32 v{T+5}, 2, v{T+5}
    v_cmp_ne_u32 vcc, 0, v{T+5}
    s_and_b64 s[{GE}:{GE+1}], vcc, s[{GE}:{GE+1}]
    s_waitcnt vmcnt(0)
    v_and_b32 v{CE+4}, 0xffff, v{CE+4}
    v_cmp_lt_u32 vcc, v{T+5}, v{CE+4}
    s_and_b64 s[{GE}:{GE+1}], vcc, s[{GE}:{GE+1}]
    s_add_u32 s{sQ}, s{sQ}, 1
    s_lshr_b32 s{sT0}, s{sQ}, 2
    s_add_u32 s{sI}, s{sI}, s{sT0}
    s_and_b32 s{sQ}, s{sQ}, 3
    s_branch kb_round
    kb_mode2:
    s_cmp_lt_u32 s{sBase}, s{sLen}
    s_cbranch_scc1 kb_m2_go
    s_add_u32 s{sC}, s{sC}, 1
    s_cmp_ge_u32 s{sC}, {NCHUNK}
    s_cbranch_scc1 kb_exit
    s_lshl_b32 s{sT0}, s2, 13
    s_lshl_b32 s{sT1}, s{sC}, 6
    s_add_u32 s{sT0}, s{sT0}, s{sT1}
    s_add_u32 s{sT0}, s{sT0}, {WS_CELL}
    s_load_dword s{sT1}, s[24:25], s{sT0}
    s_waitcnt lgkmcnt(0)
    s_and_b32 s{sT2}, s{sT1}, 0xffff
    s_lshr_b32 s{sLen}, s{sT1}, 16
    s_cmp_gt_u32 s{sT2}, 64
    s_cselect_b32 s{sLen}, s{sLen}, 0
    s_mov_b32 s{sBase}, 0
    s_branch kb_mode2
    kb_m2_go:
    v_add_u32 v{T+3}, s{sBase}, v0
    v_cmp_gt_u32 s[{GE}:{GE+1}], s{sLen}, v{T+3}
    v_cmp_gt_u32 vcc, 128, v0
    s_and_b64 s[{GE}:{GE+1}], vcc, s[{GE}:{GE+1}]
    s_mov_b64 vcc, s[{GE}:{GE+1}]
    s_mul_i32 s{sT0}, s{sC}, {OVF_STRIDE}
    s_add_u32 s{sT0}, s{sT0}, {WS_OVF - WSO}
    v_lshl_add_u32 v{T+4}, v{T+3}, 2, s{sT0}
    v_mov_b32 v{T+5}, 0x40000000
    v_cndmask_b32 v{T+4}, v{T+5}, v{T+4}, vcc
    buffer_load_dword v{CE}, v{T+4}, {sr(S_WS)}, 0 offen
    s_waitcnt vmcnt(0)
    v_lshrrev_b32 v{T+3}, 16, v{CE}
    v_subrev_u32 v{T+3}, s{sNode0}, v{T+3}
    v_cmp_gt_u32 vcc, 98, v{T+3}
    s_and_b64 s[{GE}:{GE+1}], vcc, s[{GE}:{GE+1}]
    s_add_u32 s{sBase}, s{sBase}, 128
    kb_round:
    s_mov_b64 s[{GE+2}:{GE+3}], 0
    v_mov_b32 v{CE+4}, 0
    s_waitcnt lgkmcnt(0)
    s_barrier
    s_branch kb_propose
    kb_exit:
    s_endpgm
    ''')
    return L_END
```

```python
import sys, gen, re
def mk(src, out, mode):
    s = open(src).read()
    la = [l for l in s.split('\n') if l.startswith('; @launch')]
    D = '; @launch kernel=d_kernel grid=(1,1,1) block=(64,1,1) lds=0'
    s = s.replace(la[-1] + '\n', la[-1] + '\n' + D + '\n')
    s = s.replace('ka_kernel:\n', 'ka_kernel:\ns_memrealtime s[80:81]\n', 1)
    i = s.index('s_endpgm')
    s = s[:i] + '''s_cmp_lg_u32 s2, 0
s_cbranch_scc1 dg_a
v_mov_b32 v1, s80
v_mov_b32 v2, 0x1F00000
global_store_dword v2, v1, s[20:21]
dg_a:
''' + s[i:]
    s = s.replace('kb_kernel:\n', 'kb_kernel:\ns_memrealtime s[22:23]\n', 1)
    s = s.replace('kb_done:\n', '''kb_done:
s_cmp_lg_u32 s2, 0
s_cbranch_scc1 dg_b
v_mov_b32 v1, s22
v_mov_b32 v2, 0x1F00004
global_store_dword v2, v1, s[24:25]
dg_b:
''', 1)
    s = re.sub(r'(\.amdhsa_kernel ka_kernel\n.*\n\s*\.amdhsa_next_free_sgpr) \d+', r'\1 88', s)
    op = {0: 's_mov_b32 s12, 0', 1: 's_sub_u32 s12, s7, s6', 2: 's_sub_u32 s12, s8, s7'}[mode]
    code = f'''.globl d_kernel
.p2align 8
.type d_kernel,@function
d_kernel:
s_memrealtime s[8:9]
s_cmp_lg_u32 s2, 0
s_cbranch_scc1 d_exit
s_load_dwordx2 s[4:5], s[0:1], 80
s_mov_b32 s13, 0x1F00000
s_waitcnt lgkmcnt(0)
s_load_dwordx2 s[6:7], s[4:5], s13
s_waitcnt lgkmcnt(0)
{op}
s_min_u32 s12, s12, 8000
s_memrealtime s[10:11]
s_waitcnt lgkmcnt(0)
d_loop:
s_memrealtime s[14:15]
s_waitcnt lgkmcnt(0)
s_sub_u32 s14, s14, s10
s_cmp_lt_u32 s14, s12
s_cbranch_scc1 d_loop
d_exit:
s_endpgm
'''
    s = s.replace('.section .rodata,"a"\n', code + '.section .rodata,"a"\n' + gen.desc('d_kernel', 8, 20))
    open(out, 'w').write(s)
for src in sys.argv[1:]:
    for m in range(3):
        mk(src, 'dg%d_%s' % (m, src), m)
```

```python
from consts import *
from gen_ka import srd

L_RING = 0
L_STG = 98304
STG_H = 16 * 528
L_TMP = L_STG + 4 * STG_H
L_GCNT = L_TMP + 3584
L_RBF = L_GCNT + 64
L_META = L_RBF + 16384
L_END = L_META + 16 * 512
assert L_RBF % 16 == 0 and L_META % 16 == 0 and L_END <= 163840
LISTCAP = 416
PADSRC = 0x100000

class RA:
    def __init__(self, start=1):
        self.n = start
    def __call__(self, k=1, align=1):
        self.n = (self.n + align - 1) // align * align
        r = self.n
        self.n += k
        return r

def vr(b, k):
    return f'v[{b}:{b+k-1}]'

def gen_kb(a, opts):
    R = RA(1)
    vSwzH, vSwzV, vAV, vAR, vAS, vBP, vKey, vOut, vSrc, vSrcB, vOH, vOV, vOne, vOwnA, vStamp = [R() for _ in range(15)]
    vAH = R(4)
    W2 = R(48, 4); WR = R(6, 2); RBF = R(4, 2)
    OWN = R(40, 4); ACC = R(16, 4)
    PHI = [R(12, 4), R(12, 4)]; WRD = R(12, 4)
    HA = R(16, 4); HB = R(16, 4)
    V = R(24, 4)
    DLT = R(8, 4); vOut2 = R(); vStgW = R(); vStgR = R(); vStgT = R(); IDN = R(2, 2)
    TR = V
    XB = 2 * STG_H
    OS = lambda j: (j + 3) % 5
    assert R.n <= 256, R.n
    RR = [HA, HB]
    DL = HA + 12; SEL = HB + 12
    MSG = [RBF, WRD, WRD + 4, WRD + 8]
    S_SV, S_OUT, S_H, S_POS, S_WS, S_BASE = 28, 32, 36, 40, 44, 48
    sW, sMask, sNode0, sMode, sI, sQ, sC, sLen, sBase = 52, 53, 54, 55, 26, 27, 3, 88, 89
    FR = 64
    GE = 80
    sGP = 90
    sTot, sTe, sGend, sGst, sG, sStA, sStB, sStC, sDma, sX = 92, 93, 94, 95, 96, 97, 98, 99, 100, 101
    s256, s512, s768 = 56, 57, 58
    sT0, sT1, sT2, sT3 = 59, 60, 61, 62
    sW2, sC8, sT4, sSl = 16, 17, 18, 19
    sOwO, sStO = sStA, sStB
    sPend, sPar = 12, 13
    sOk, sOwnN, sK8, sNeg, sGC, sTM = 8, 9, 10, 11, 14, 15
    WSO = WS_W2P
    sr = lambda b: f's[{b}:{b+3}]'
    M = f's{sMask}'
    STAMP = opts.get('stamp')
    def stamp():
        if STAMP:
            a(f'''{"s_memtime" if STAMP == "2" else "s_memrealtime"} s[22:23]
                 s_waitcnt lgkmcnt(0)
                 s_mov_b32 m0, s63
                 s_nop 1
                 v_writelane_b32 v{vStamp}, s22, m0
                 s_add_u32 s63, s63, 1
                 s_min_u32 s63, s63, 63''')
    def fstamp():
        if opts.get('fine'):
            stamp()
    a(f'''
    .globl kb_kernel
    .p2align 8
    .type kb_kernel,@function
    kb_kernel:
    s_cmp_ge_u32 s2, 256
    s_cbranch_scc1 kb_exit
    s_load_dwordx2 s[24:25], s[0:1], 80
    s_load_dwordx4 s[4:7], s[0:1], 0
    s_load_dwordx2 s[20:21], s[0:1], 64
    s_load_dwordx2 s[12:13], s[0:1], 32
    ''')
    T = PHI[0]
    U = HA
    CE = V
    tL, tN, tG = T, T + 1, T + 2
    def out_base():
        a(f'''
        v_and_b32 v{tN}, 15, v0
        v_bfe_u32 v{tG}, v0, 4, 2
        v_bfe_u32 v{T+10}, v0, 3, 3
        v_lshlrev_b32 v{T+10}, 8, v{T+10}
        v_and_b32 v{T+11}, 7, v0
        v_lshl_or_b32 v{T+10}, v{T+11}, 4, v{T+10}
        s_and_b32 s{sT2}, s{sW}, 3
        s_lshl_b32 s{sT3}, s{sT2}, 2
        s_add_u32 s{sT3}, s{sT3}, s{sNode0}
        s_lshl_b32 s{sT3}, s{sT3}, 10
        s_lshr_b32 s{sT1}, s{sW}, 2
        s_lshl_b32 s{sT4}, s{sT1}, 7
        s_add_u32 s{sT3}, s{sT3}, s{sT4}
        v_add_u32 v{vOut}, s{sT3}, v{T+10}
        s_cmp_eq_u32 s{sT2}, 3
        s_cselect_b32 s{sT3}, 0x40000000, 0
        v_add_u32 v{vOut2}, s{sT3}, v{vOut}
        s_mul_i32 s{sT1}, s{sT1}, {STG_H}
        s_add_u32 s{sT1}, s{sT1}, {L_STG}
        s_lshl_b32 s{sT3}, s{sT2}, 5
        s_add_u32 s{sT3}, s{sT3}, s{sT1}
        v_mul_u32_u24 v{T+10}, 528, v{tN}
        v_lshl_add_u32 v{T+10}, v{tG}, 3, v{T+10}
        v_add_u32 v{vStgW}, s{sT3}, v{T+10}
        v_bfe_u32 v{T+10}, v0, 2, 4
        v_mul_u32_u24 v{T+10}, 528, v{T+10}
        v_and_b32 v{T+11}, 3, v0
        v_lshl_add_u32 v{T+10}, v{T+11}, 3, v{T+10}
        v_add_u32 v{vStgT}, s{sT3}, v{T+10}
        v_lshlrev_b32 v{T+10}, 2, v{tG}
        v_sub_u32 v{T+10}, v{tN}, v{T+10}
        v_mov_b32 v{T+11}, 0x3f80
        v_mov_b32 v{T+12}, 0x3f800000
        v_cmp_eq_u32 vcc, 0, v{T+10}
        v_cndmask_b32 v{IDN}, 0, v{T+11}, vcc
        v_cmp_eq_u32 vcc, 1, v{T+10}
        v_cndmask_b32 v{IDN}, v{IDN}, v{T+12}, vcc
        v_cmp_eq_u32 vcc, 2, v{T+10}
        v_cndmask_b32 v{IDN+1}, 0, v{T+11}, vcc
        v_cmp_eq_u32 vcc, 3, v{T+10}
        v_cndmask_b32 v{IDN+1}, v{IDN+1}, v{T+12}, vcc
        s_mul_i32 s{sT3}, s{sT2}, {4*528}
        s_add_u32 s{sT3}, s{sT3}, s{sT1}
        s_add_u32 s{sT3}, s{sT3}, {XB}
        v_bfe_u32 v{T+10}, v0, 5, 1
        v_mul_u32_u24 v{T+10}, 528, v{T+10}
        v_and_b32 v{T+11}, 31, v0
        v_lshl_add_u32 v{T+10}, v{T+11}, 4, v{T+10}
        v_add_u32 v{vStgR}, s{sT3}, v{T+10}
        ''')
    NTO = ' nt' if opts.get('ntown', '1') == '1' else ''
    NTS = ' nt' if opts.get('ntst', '0') == '1' else ''
    def own_ins(j, flags, so=sT3):
        return [f'buffer_load_dwordx4 {vr(OWN+8*OS(j)+4*b,4)}, v{[vOut, vOut2][b]}, {sr(S_BASE)}, s{so} offen offset:{2048*b}{flags}' for b in range(2)]
    def own_load(j, flags=None):
        a(f's_mov_b32 s{sT3}, {14336*j}')
        for x in own_ins(j, NTO if flags is None else flags):
            a(x)
    def own01(t):
        a(f'v_subrev_u32 v{t}, {XB}, v{vStgR}')
        for j in range(2):
            for b in range(2):
                a(f'ds_write_b128 v{t}, {vr(OWN+8*OS(j)+4*b,4)} offset:{XB*j+1056*b}')
    def tr_reads():
        return [f'ds_read_b64_tr_b16 {vr(TR+2*c,2)}, v{vStgT} offset:{128*c}' for c in range(4)]
    def toggle():
        a(f'''v_add_u32 v{vStgW}, s{sPar}, v{vStgW}
              v_add_u32 v{vStgT}, s{sPar}, v{vStgT}
              v_subrev_u32 v{vStgR}, s{sPar}, v{vStgR}
              s_sub_u32 s{sPar}, 0, s{sPar}''')
    a(f'''
    v_lshrrev_b32 v{T+3}, 6, v0
    v_readfirstlane_b32 s{sW}, v{T+3}
    s_lshl_b32 s{sT0}, s2, 13
    s_add_u32 s{sT0}, s{sT0}, {WS_CELL - WSO}
    v_lshl_add_u32 v{T+4}, v0, 4, s{sT0}
    s_mul_i32 s{sNode0}, s2, 98
    s_mov_b32 s63, 0
    ''')
    a('s_waitcnt lgkmcnt(0)')
    stamp()
    srd(a, S_WS, 24, 25, WS_OVF + OVF_BYTES - WSO, WSO)
    a(f'''
    buffer_load_dwordx4 {vr(CE,4)}, v{T+4}, {sr(S_WS)}, 0 offen
    v_and_b32 v{tL}, 63, v0
    v_lshlrev_b32 v{CE+7}, 4, v{tL}
    v_lshlrev_b32 v{CE+8}, 3, v{tL}
    s_mul_i32 s{sW2}, s{sW}, 12288
    s_mul_i32 s{sT2}, s{sW}, 1536
    s_add_u32 s{sT2}, s{sT2}, {WS_WRP - WSO}
    ''')
    srd(a, S_BASE, 4, 5, 25600000)
    srd(a, S_SV, 4, 5, 25600000)
    srd(a, S_OUT, 20, 21, 25600000)
    srd(a, S_H, 24, 25, 6400000, WS_H)
    srd(a, S_POS, 6, 7, 150000)
    VM = []
    def wbatch(first):
        lab = 'kb_wb%d' % first
        a(f'''s_bitcmp{1 if not first else 0}_b32 s2, {opts.get('rotbit', 3)}
              s_cbranch_scc1 {lab}_1''')
        for h in range(2):
            a(f's_add_u32 s{sT1}, s{sW2}, {6144*h}')
            for i in range(6):
                if i == 4:
                    a(f's_add_u32 s{sT1}, s{sT1}, 4096')
                a(f'buffer_load_dwordx4 {vr(W2+4*(6*h+i),4)}, v{CE+7}, {sr(S_WS)}, s{sT1} offen offset:{1024*(i%4)}')
            if h == 0:
                a(f'''s_branch {lab}_e
                      {lab}_1:''')
        a(f'{lab}_e:')
        VM.extend(['w'] * 6)
    def wr_load():
        for i in range(3):
            a(f'buffer_load_dwordx2 {vr(WR+2*i,2)}, v{CE+8}, {sr(S_WS)}, s{sT2} offen offset:{512*i}')
        VM.extend(['w'] * 3)
    SRC3 = V + 12
    def dma_addr(srcb):
        o = []
        if opts.get('fakesrc'):
            o.append(f'v_and_b32 v{srcb}, {opts["fakesrc"]}, v{srcb}')
        o += [f'v_lshl_add_u32 v{vOH}, v{srcb}, 8, v{vSwzH}', f'v_lshl_add_u32 v{vOV}, v{srcb}, 10, v{vSwzV}']
        return o
    def dma_piece(k):
        if opts.get('nodma'):
            return [f's_mov_b32 m0, s{sDma}']
        if k == 0:
            return [f's_mov_b32 m0, s{sDma}', f'buffer_load_dwordx4 v{vOH}, {sr(S_H)}, 0 offen lds']
        o = [f's_add_u32 m0, s{sDma}, {1024*k}', f'buffer_load_dwordx4 v{vOV}, {sr(S_SV)}, s{[0, s256, s512, s768][k]} offen lds']
        if k == 3:
            o += [f's_add_u32 s{sDma}, s{sDma}, 0x8000', f's_cmp_ge_u32 s{sDma}, 0x18000',
                  f's_cselect_b32 s{sT4}, 0x18000, 0', f's_sub_u32 s{sDma}, s{sDma}, s{sT4}']
        return o
    def item_groups(it):
        k, j = it[0], int(it[1])
        if k == 'o':
            g = [[x] for x in own_ins(j, NTO)]
            g[0].insert(0, f's_mov_b32 s{sT3}, {14336*j}')
        else:
            nd = opts.pop('nodma', None)
            g = [dma_piece(q) for q in range(4)]
            if nd:
                opts['nodma'] = nd
            g[0] = dma_addr(SRC3 + j) + g[0]
        return [(it, x) for x in g]
    def emit_items(items):
        for it in items:
            if it == 't':
                a(f'''kb_touch1__kb_t1__{opts.get('tend', 'kb_loopA')}__{sW}:
                      kb_t1:''')
            elif it == 'w0':
                wbatch(0)
            elif it == 'w1':
                wbatch(1)
            elif it == 'wr':
                wr_load()
            else:
                for tag, g in item_groups(it):
                    for x in g:
                        a(x)
                    VM.append(tag)
    def vm_after(tags):
        last = max(i for i, t in enumerate(VM) if t in tags)
        return len(VM) - 1 - last
    P1 = opts.get('p1', 'w0,wr').split(',')
    P2 = opts.get('p2', 'd0,w1').split(',')
    P3 = opts.get('p3', 'o0,o1,d1').split(',')
    NPRE = 1 + max(int(x[1]) for x in P1 + P2 + P3 if x[0] == 'o')
    assert NPRE == 2
    VM.append('cell')
    a(f'''
    v_and_b32 v{T+8}, 7, v0
    v_lshlrev_b32 v{T+8}, 2, v{T+8}
    v_add_u32 v{T+8}, {L_GCNT}, v{T+8}
    v_mov_b32 v{T+9}, 0
    ds_write_b32 v{T+8}, v{T+9}
    s_waitcnt lgkmcnt(0)
    s_barrier
    s_load_dwordx8 s[{FR}:{FR+7}], s[12:13], 0
    ''')
    emit_items(P1)
    out_base()
    a(f'''
    s_mov_b32 s{sMask}, 0xffff0000
    s_mov_b32 s{sMode}, 0
    s_movk_i32 s{s256}, 256
    s_movk_i32 s{s512}, 512
    s_movk_i32 s{s768}, 768
    s_mov_b32 s{sK8}, 0x80008000
    s_mov_b32 s{sC8}, 0x8000
    s_mul_i32 s{sNeg}, s2, {-147*98}
    s_mov_b32 s{sGC}, {L_GCNT}
    s_mov_b32 s{sTM}, {L_TMP}
    v_mov_b32 v{vOne}, 0x3f803f80
    s_lshr_b32 s{sT0}, s{sW}, 1
    s_lshl_b32 s{sT1}, s{sT0}, 2
    v_add_u32 v{T+3}, s{sT1}, v{tG}
    v_xor_b32 v{T+3}, v{T+3}, v{tN}
    v_lshlrev_b32 v{vSwzH}, 4, v{T+3}
    v_and_b32 v{T+3}, 1, v{tG}
    v_lshl_or_b32 v{T+3}, v{T+3}, 1, s{sT1}
    v_xor_b32 v{T+3}, v{T+3}, v{tN}
    v_lshlrev_b32 v{vSwzV}, 4, v{T+3}
    v_and_b32 v{T+5}, 3, v0
    v_lshlrev_b32 v{T+5}, 2, v{T+5}
    v_cmp_ne_u32 s[{GE+2}:{GE+3}], 0, v{T+5}
    ''')
    if opts.get('pret', '0') == '1':
        a(f'''s_mov_b32 s{sOwnN}, 99
              s_cmp_ge_u32 s{sW}, {opts.get('bfrom', 4)}
              s_cbranch_scc1 kb_ownB
              s_branch kb_ownA''')
    a('kb_pret:')
    stamp()
    a(f'''
    s_waitcnt vmcnt({vm_after(['cell'])}) lgkmcnt(0)
    v_and_b32 v{CE+4}, 0xffff, v{CE}
    v_mov_b32_dpp v{CE+4}, v{CE+4} quad_perm:[0,0,0,0] row_mask:0xf bank_mask:0xf
    ''')
    for k in range(7, -1, -1):
        a(f'''s_and_b32 s{FR+2*k+1}, s{FR+k}, s{sMask}
              s_lshl_b32 s{FR+2*k}, s{FR+k}, 16''')
    a(f'''
    v_sub_u32 v{CE+5}, v{CE+4}, v{T+5}
    v_cmp_lt_i32 vcc, 0, v{CE+5}
    s_and_b64 s[{GE}:{GE+1}], vcc, s[{GE+2}:{GE+3}]
    v_cmp_lt_i32 s[{GE+2}:{GE+3}], 16, v{CE+5}
    kb_propose:
    v_mov_b32 v{T+9}, 1
    v_mov_b32 v{CE+6}, 147
    v_and_b32 v{tL}, 63, v0
    v_lshlrev_b32 v{CE+7}, 4, v{tL}
    v_lshlrev_b32 v{CE+8}, 3, v{tL}
    ''')
    stamp()
    def wload(n):
        pass
    def prop(lo, nw):
        for q in range(2):
            a(f'''
            v_lshrrev_b32 v{U+q}, 16, v{CE+lo+q}
            v_mad_u32_u24 v{U+q}, v{U+q}, v{CE+6}, s{sNeg}
            v_lshrrev_b32 v{U+q}, 11, v{U+q}
            v_lshl_add_u32 v{U+4+q}, v{U+q}, 2, s{sGC}
            ''')
        for q in range(2):
            a(f'''s_mov_b64 exec, s[{GE+2*q}:{GE+2*q+1}]
                  ds_add_rtn_u32 v{U+8+q}, v{U+4+q}, v{T+9}''')
        a('s_mov_b64 exec, -1')
        for q in range(2):
            a(f'v_lshl_add_u32 v{U+q}, v{U+q}, 9, s{sTM}')
        wload(nw)
        a('s_waitcnt lgkmcnt(0)')
        for q in range(2):
            a(f'''v_min_u32 v{U+8+q}, 0x7f, v{U+8+q}
                  v_lshl_add_u32 v{U+q}, v{U+8+q}, 2, v{U+q}''')
        for q in range(2):
            a(f'''s_mov_b64 exec, s[{GE+2*q}:{GE+2*q+1}]
                  ds_write_b32 v{U+q}, v{CE+lo+q}''')
        a('s_mov_b64 exec, -1')
    W1N = W2N = W3N = 0
    prop(0, W1N)
    a(f'''
    v_cmp_lt_u32 vcc, 32, v{CE+4}
    s_cbranch_vccz kb_prop_done
    v_cmp_lt_i32 s[{GE}:{GE+1}], 32, v{CE+5}
    v_cmp_lt_i32 s[{GE+2}:{GE+3}], 48, v{CE+5}
    ''')
    prop(2, 0)
    a(f'''
    v_cmp_lt_u32 vcc, 64, v{CE+4}
    v_mov_b32 v{U}, {L_GCNT + 28}
    s_mov_b64 exec, vcc
    ds_add_u32 v{U}, v{T+9}
    s_mov_b64 exec, -1
    kb_prop_done:
    v_mov_b32 v{U}, {L_GCNT}
    s_waitcnt lgkmcnt(0)
    s_barrier
    ds_read_b128 {vr(U+4,4)}, v{U}
    ds_read_b128 {vr(U+8,4)}, v{U} offset:16
    ''')
    wload(W2N)
    tP = T + 3
    a(f'''
    v_and_b32 v{tN}, 15, v0
    v_bfe_u32 v{tG}, v0, 4, 2
    v_lshrrev_b32 v{T+4}, 2, v{tL}
    v_and_b32 v{T+5}, 3, v{tL}
    s_lshl_b32 s{sT0}, s{sW}, 2
    v_add_u32 v{T+6}, s{sT0}, v{T+5}
    v_lshl_add_u32 v{tP}, v{T+4}, 5, v{T+6}
    v_lshl_add_u32 v{T+7}, v{tP}, 2, s{sTM}
    s_waitcnt lgkmcnt(0)
    ''')
    stamp()
    for j in range(8):
        a(f'v_readfirstlane_b32 s{GE+j}, v{U+4+j}')
    sA, sB, sD = sStA, sStB, sStC
    a(f'''
    s_max_u32 s{sA}, s{GE}, s{GE+1}
    s_max_u32 s{sB}, s{GE+2}, s{GE+3}
    s_max_u32 s{sD}, s{GE+4}, s{GE+5}
    s_max_u32 s{sA}, s{sA}, s{GE+6}
    s_max_u32 s{sB}, s{sB}, s{sD}
    s_max_u32 s{sA}, s{sA}, s{sB}
    s_mov_b32 s{sTot}, 0
    ''')
    for j in range(7):
        a(f's_add_u32 s{sTot}, s{sTot}, s{GE+j}')
        if j < 6:
            a(f'''s_lshl_b32 s{sB}, s{GE+j}, 2
                  s_sub_u32 s{sB}, 512, s{sB}
                  v_cmpx_le_u32 vcc, s{sTot}, v{tP}
                  v_add_u32 v{T+7}, s{sB}, v{T+7}''')
        a(f's_mov_b32 s{GE+j}, s{sTot}')
    a(f'''
    s_mov_b64 exec, -1
    ds_read_b32 v{T+8}, v{T+7}
    ''')
    wload(W3N)
    a(f'''
    s_cmp_gt_u32 s{sA}, 128
    s_cselect_b32 s{GE+7}, 1, s{GE+7}
    s_cmp_gt_u32 s{sTot}, {LISTCAP}
    s_cselect_b32 s{GE+7}, 1, s{GE+7}
    s_cmp_lg_u32 s{GE+7}, 0
    s_cbranch_scc1 kb_go_slow
    s_cmp_eq_u32 s{sTot}, 0
    s_cbranch_scc1 kb_empty
    ''')
    a(f'''
    s_lshl_b32 s{sT0}, s{GE+1}, 9
    s_or_b32 s{sGP}, s{GE}, s{sT0}
    s_lshl_b32 s{sT0}, s{GE+2}, 18
    s_or_b32 s{sGP}, s{sGP}, s{sT0}
    s_lshl_b32 s{sT0}, s{GE+3}, 27
    s_or_b32 s{sGP}, s{sGP}, s{sT0}
    s_lshr_b32 s{sGP+1}, s{GE+3}, 5
    s_lshl_b32 s{sT0}, s{GE+4}, 4
    s_or_b32 s{sGP+1}, s{sGP+1}, s{sT0}
    s_lshl_b32 s{sT0}, s{GE+5}, 13
    s_or_b32 s{sGP+1}, s{sGP+1}, s{sT0}
    s_lshl_b32 s{sT0}, s{GE+6}, 22
    s_or_b32 s{sGP+1}, s{sGP+1}, s{sT0}
    v_cmp_gt_u32 vcc, s{sTot}, v{tP}
    v_mov_b32 v{T+9}, {PADSRC}
    v_mov_b32 v{T+10}, 0x3fff
    v_lshlrev_b32 v{vBP}, 2, v{tG}
    s_waitcnt lgkmcnt(0)
    v_and_b32 v{T+11}, 0xffff, v{T+8}
    v_lshrrev_b32 v{T+12}, 16, v{T+8}
    v_cndmask_b32 v{vSrc}, v{T+9}, v{T+11}, vcc
    v_cndmask_b32 v{T+13}, v{T+9}, v{T+12}, vcc
    ds_bpermute_b32 v{SRC3}, v{vBP}, v{vSrc}
    ds_bpermute_b32 v{SRC3+1}, v{vBP}, v{vSrc} offset:16
    ds_bpermute_b32 v{vSrcB}, v{vBP}, v{vSrc} offset:32
    v_add_u32 v{vBP}, 48, v{vBP}
    v_mul_u32_u24 v{T+14}, 6, v{vSrc}
    v_and_b32 v{T+14}, -4, v{T+14}
    v_mul_u32_u24 v{T+15}, 6, v{T+13}
    v_and_b32 v{T+15}, -4, v{T+15}
    ''')
    wload(15)
    a(f'''
    buffer_load_dwordx2 {vr(T+16,2)}, v{T+14}, {sr(S_POS)}, 0 offen
    buffer_load_dwordx2 {vr(T+18,2)}, v{T+15}, {sr(S_POS)}, 0 offen
    v_subrev_u32 v{T+12}, s{sNode0}, v{T+12}
    v_cndmask_b32 v{T+10}, v{T+10}, v{T+12}, vcc
    v_lshlrev_b32 v{T+10}, 1, v{T+10}
    s_lshl_b32 s{sDma}, s{sW}, 12
    s_waitcnt lgkmcnt(1)
    ''')
    VM.extend(['pos', 'pos'])
    a(f'''s_mul_i32 s{sT2}, s{sW}, 1536
          s_add_u32 s{sT2}, s{sT2}, {WS_WRP - WSO}''')
    emit_items(P2)
    if opts.get('p2bar', '1') == '1':
        a('s_barrier')
    stamp()
    a(f'''
    v_lshrrev_b32 v{U}, 2, v{tN}
    v_lshlrev_b32 v{U}, 13, v{U}
    v_and_b32 v{U+1}, 3, v{tN}
    v_lshl_or_b32 v{U}, v{U+1}, 8, v{U}
    v_xor_b32 v{U+1}, v{tG}, v{tN}
    ''')
    for s in range(4):
        a(f'''v_xor_b32 v{U+2}, {4*s}, v{U+1}
              v_lshl_or_b32 v{vAH+s}, v{U+2}, 4, v{U}''')
    a(f'''
    v_bfe_u32 v{U}, v{tL}, 3, 1
    v_lshl_or_b32 v{U+1}, v{tG}, 1, v{U}
    v_xor_b32 v{U+1}, s{sW}, v{U+1}
    v_lshlrev_b32 v{U+1}, 5, v{U+1}
    v_lshl_or_b32 v{U+1}, v{U}, 8, v{U+1}
    v_lshl_or_b32 v{U+1}, v{tG}, 13, v{U+1}
    v_lshl_or_b32 v{U+1}, v{T+5}, 3, v{U+1}
    v_and_b32 v{U+2}, 4, v{tL}
    v_xor_b32 v{U+2}, 4, v{U+2}
    v_lshl_or_b32 v{vAV}, v{U+2}, 18, v{U+1}
    v_lshlrev_b32 v{vAR}, 3, v{tL}
    v_add_u32 v{vAR}, {L_RBF}, v{vAR}
    v_lshlrev_b32 v{vAS}, 5, v{tG}
    v_add_u32 v{vAS}, {L_META}, v{vAS}
    v_lshlrev_b32 v{vKey}, 1, v{tN}
    v_lshl_or_b32 v{vKey}, v{vKey}, 16, v{vKey}
    ''')
    tWR, tWS, tWD = T + 20, T + 21, T + 22
    a(f'''
    s_and_b32 s{sT0}, s{sW}, 1
    s_lshl_b32 s{sT2}, s{sT0}, 3
    s_lshl_b32 s{sT0}, s{sT0}, 9
    s_lshr_b32 s{sT1}, s{sW}, 1
    s_lshl_b32 s{sT1}, s{sT1}, 5
    s_add_u32 s{sT2}, s{sT2}, s{sT1}
    s_add_u32 s{sT2}, s{sT2}, {L_META + 384}
    s_add_u32 s{sT0}, s{sT0}, s{sT1}
    s_add_u32 s{sT0}, s{sT0}, {L_RBF}
    v_lshlrev_b32 v{tWR}, 10, v{T+4}
    v_lshl_add_u32 v{tWR}, v{T+5}, 3, v{tWR}
    v_add_u32 v{tWR}, s{sT0}, v{tWR}
    v_lshlrev_b32 v{tWS}, 9, v{T+4}
    v_lshl_add_u32 v{tWD}, v{T+5}, 1, v{tWS}
    v_add_u32 v{tWD}, s{sT2}, v{tWD}
    v_lshl_add_u32 v{tWS}, v{T+6}, 2, v{tWS}
    v_add_u32 v{tWS}, {L_META}, v{tWS}
    ds_write_b16 v{tWD}, v{T+10}
    v_lshlrev_b32 v{T+14}, 4, v{vSrc}
    v_lshlrev_b32 v{T+15}, 4, v{T+13}
    s_waitcnt vmcnt({vm_after(['pos'])})
    ''')
    stamp()
    real_a = a
    p3q = []
    for it in P3:
        p3q += item_groups(it)
    cnt = [0]
    GAP = int(opts.get('p3gap', 8))
    def a(txt):
        for ln in txt.split('\n'):
            ln = ln.strip()
            if not ln:
                continue
            real_a(ln)
            cnt[0] += 1
            if cnt[0] % GAP == 0 and p3q:
                tag, g = p3q.pop(0)
                for x in g:
                    real_a(x)
                VM.append(tag)
    x, y, z = U, U + 1, U + 2
    a(f'''
    v_alignbit_b32 v{U+8}, v{T+17}, v{T+16}, v{T+14}
    v_lshrrev_b32 v{U+9}, v{T+14}, v{T+17}
    v_alignbit_b32 v{U+10}, v{T+19}, v{T+18}, v{T+15}
    v_lshrrev_b32 v{U+11}, v{T+15}, v{T+19}
    v_lshlrev_b32 v{x}, 16, v{U+8}
    v_and_b32 v{y}, {M}, v{U+8}
    v_lshlrev_b32 v{z}, 16, v{U+9}
    v_lshlrev_b32 v{U+3}, 16, v{U+10}
    v_and_b32 v{U+4}, {M}, v{U+10}
    v_lshlrev_b32 v{U+5}, 16, v{U+11}
    v_sub_f32 v{x}, v{x}, v{U+3}
    v_sub_f32 v{y}, v{y}, v{U+4}
    v_sub_f32 v{z}, v{z}, v{U+5}
    v_cvt_pk_bf16_f32 v{x}, 0, v{x}
    v_cvt_pk_bf16_f32 v{y}, 0, v{y}
    v_cvt_pk_bf16_f32 v{z}, 0, v{z}
    v_mul_f32 v{U+3}, v{x}, v{x}
    v_mul_f32 v{U+4}, v{y}, v{y}
    v_mul_f32 v{U+5}, v{z}, v{z}
    v_cvt_pk_bf16_f32 v{U+3}, 0, v{U+3}
    v_cvt_pk_bf16_f32 v{U+4}, 0, v{U+4}
    v_cvt_pk_bf16_f32 v{U+5}, 0, v{U+5}
    v_add_f32 v{U+3}, v{U+3}, v{U+4}
    v_add_f32 v{U+3}, v{U+3}, v{U+5}
    v_cvt_pk_bf16_f32 v{U+3}, 0, v{U+3}
    v_add_f32 v{U+3}, 0x322bcc77, v{U+3}
    v_cvt_pk_bf16_f32 v{U+3}, 0, v{U+3}
    v_sqrt_f32 v{U+3}, v{U+3}
    v_cvt_pk_bf16_f32 v{U+3}, 0, v{U+3}
    v_rcp_f32 v{U+4}, v{U+3}
    ''')
    d, rd = U + 3, U + 4
    X = U + 12
    P = T + 24
    for k in range(16):
        a(f'v_mul_f32 v{X+k}, s{FR+k}, v{d}')
    a(f'''
    v_mul_f32 v{U+5}, 0x40490fdb, v{d}
    v_mul_f32 v{x}, v{x}, v{rd}
    v_cvt_pk_bf16_f32 v{U+5}, 0, v{U+5}
    v_mul_f32 v{y}, v{y}, v{rd}
    v_mul_f32 v{U+5}, 0x3e4ccccd, v{U+5}
    v_mul_f32 v{z}, v{z}, v{rd}
    v_cvt_pk_bf16_f32 v{U+5}, 0, v{U+5}
    v_cvt_pk_bf16_f32 v{x}, 0, v{x}
    v_mul_f32 v{U+5}, 0.15915494, v{U+5}
    v_cvt_pk_bf16_f32 v{y}, 0, v{y}
    v_cos_f32 v{U+5}, v{U+5}
    v_cvt_pk_bf16_f32 v{z}, 0, v{z}
    v_cvt_pk_bf16_f32 v{U+5}, 0, v{U+5}
    ds_write_b32 v{tWS}, v{x}
    v_add_f32 v{U+5}, 1.0, v{U+5}
    ds_write_b32 v{tWS}, v{y} offset:128
    v_cvt_pk_bf16_f32 v{U+5}, 0, v{U+5}
    ds_write_b32 v{tWS}, v{z} offset:256
    v_mul_f32 v{U+5}, 0.5, v{U+5}
    v_cmp_gt_f32 vcc, 0x40a00000, v{d}
    v_cndmask_b32 v{U+5}, 0, v{U+5}, vcc
    v_mul_f32 v{rd}, v{rd}, v{U+5}
    ''')
    for k in range(16):
        a(f'v_cvt_pk_bf16_f32 v{X+k}, 0, v{X+k}')
    for k in range(16):
        a(f'v_mul_f32 v{X+k}, 0.15915494, v{X+k}')
    for k in range(16):
        a(f'v_sin_f32 v{X+k}, v{X+k}')
    for k in range(16):
        a(f'v_mul_f32 v{X+k}, v{X+k}, v{rd}')
    for k in range(8):
        a(f'v_cvt_pk_bf16_f32 v{P+k}, v{X+2*k}, v{X+2*k+1}')
    for g in range(4):
        a(f'ds_write_b64 v{tWR}, {vr(P+2*g,2)} offset:{128*g}')
    a = real_a
    for tag, g in p3q:
        for x in g:
            a(x)
        VM.append(tag)
    def acc_zero():
        for i in range(16):
            a(f'v_mov_b32 v{ACC+i}, 0')
    nA = vm_after(['d1'])
    assert nA % 2 == 0
    tail_blocks = []
    a(f'''
    s_mov_b32 s{sG}, 0
    s_and_b32 s{sGend}, s{sGP}, 0x1ff
    s_mov_b32 s{sTe}, 32
    s_mov_b32 s{sOwO}, {14336*(NPRE-1)}
    s_mov_b32 s{sStO}, 0x40000000
    s_mov_b32 s{sX}, 0x8000
    s_mov_b32 s{sSl}, 0
    s_mov_b32 s{sPar}, {XB}
    s_mov_b32 s{sOk}, 0
    s_mov_b32 s{sOwnN}, {NPRE}
    s_cmp_lg_u32 s{sMode}, 0
    s_cbranch_scc1 kb_slow_own
    ''')
    if vm_after(['o0', 'o1']) < vm_after(['pos']):
        a(f's_waitcnt vmcnt({vm_after(["o0", "o1"])})')
    own01(T)
    a('kb_slow_ownr:')
    def blk_so():
        a('''kb_slow_own:
             s_waitcnt vmcnt(0)''')
        for j in range(2):
            own_load(j, ' sc0 sc1')
        a('s_waitcnt vmcnt(0)')
        own01(T)
        a('s_waitcnt lgkmcnt(0)')
        for j in range(2, 7):
            own_load(j, ' sc0 sc1')
        a(f'''s_mov_b32 s{sOwnN}, 7
              s_mov_b32 s{sOk}, 0x7fffffff
              s_waitcnt vmcnt(0)
              s_branch kb_slow_ownr''')
    tail_blocks.append(blk_so)
    stamp()
    acc_zero()
    a(f'''
    s_cmp_ge_u32 s{sW}, {opts.get('bfrom', 4)}
    s_waitcnt vmcnt({vm_after(['d0', 'w'])}) lgkmcnt(0)
    s_cbranch_scc1 kb_B_entry
    ''')
    PG = int(opts.get('pg', 2)); PS = int(opts.get('ps', 3))
    PMD = {'A': int(opts.get('pma', 0)), 'B': int(opts.get('pmb', 1))}
    SMEND = opts.get('smend', '1') == '1'

    class LQ:
        def __init__(self):
            self.q = []
        def issue(self, tag, txt):
            if len(self.q) >= 15:
                a('s_waitcnt lgkmcnt(8)'); self.q = self.q[-8:]
            a(txt); self.q.append(tag)
        def need(self, *tags):
            idx = [i for i, t in enumerate(self.q) if t in tags]
            if not idx:
                return
            last = max(idx)
            a(f's_waitcnt lgkmcnt({len(self.q)-1-last})')
            self.q = self.q[last + 1:]
    def gemm(t, s):
        H = HA if t == 0 else HB
        out = []
        for b in range(3):
            c = '0' if s == 0 else vr(PHI[t] + 4 * b, 4)
            out.append(f'v_mfma_f32_16x16x32_bf16 {vr(PHI[t]+4*b,4)}, {vr(H+4*s,4)}, {vr(W2+16*b+4*s,4)}, {c}')
        return out
    def wf(t):
        return [f'v_mfma_f32_16x16x16_bf16 {vr(WRD+4*b,4)}, {vr(RBF+2*t,2)}, {vr(WR+2*b,2)}, 0' for b in range(3)]
    def sm(k, z=False):
        a(f'v_mfma_f32_16x16x32_bf16 {vr(ACC+4*k,4)}, {vr(MSG[k],4)}, {vr(SEL,4)}, {"0" if z else vr(ACC+4*k,4)}')
    def selb():
        for i in range(4):
            a(f'v_xor_b32 v{SEL+i}, v{DL+i}, v{vKey}')
        for i in range(4):
            a(f'v_pk_mad_i16 v{SEL+i}, v{SEL+i}, s{sK8}, v{vOne} clamp')
    def vreads(t):
        return [('V%d' % t, f'ds_read_b64_tr_b16 {vr(V+12*t+4*c+2*p,2)}, v{vAV} offset:{4096*t+1024*(c+1)+512*p}') for c in range(3) for p in range(2)]
    def issue_head(X_, lq):
        if X_ == 'B0':
            a(f'''s_cmp_ge_u32 s{sOwnN}, 7
                  s_cbranch_scc1 kb_ownrB0
                  s_add_u32 s{sOwnN}, s{sOwnN}, 1
                  s_add_u32 s{sOwO}, s{sOwO}, 14336''')
            for x in own_ins(NPRE, NTO, sOwO):
                a(x)
            a('kb_ownrB0:')
        else:
            a(f'''
            s_cmp_lt_u32 s{sOwnN}, 7
            s_cbranch_scc1 kb_own{X_}
            kb_ownr{X_}:
            ''')
        for x in dma_addr(vSrcB):
            a(x)
        p0 = dma_piece(0)
        a(p0[0])
        lq.issue('bp', f'ds_bpermute_b32 v{vSrcB}, v{vBP}, v{vSrc}')
        for x in p0[1:]:
            a(x)
        a(f'v_add_u32 v{vBP}, 16, v{vBP}')
    def own_blk(X_):
        a(f'''kb_own{X_}:
              s_add_u32 s{sOwnN}, s{sOwnN}, 1
              s_add_u32 s{sOwO}, s{sOwO}, 14336''')
        for j in range(NPRE + (X_ == 'B'), 7):
            a(f'''s_cmp_lg_u32 s{sOwnN}, {j+1}
                  s_cbranch_scc1 kb_own{X_}_{j+1}''')
            for x in own_ins(j, NTO, sOwO):
                a(x)
            a(f'''s_branch kb_ownr{X_}
                  kb_own{X_}_{j+1}:''')
        a('s_branch kb_pret')
    p0_, p1_ = PHI
    DSL = [int(x) for x in opts.get('dsl', '6,13,20').split(',')]
    def G(X_, with_issue, lq):
        for s in range(4):
            lq.issue('HA%d' % s, f'ds_read_b128 {vr(HA+4*s,4)}, v{vAH+s}')
        lq.issue('B0', f'ds_read_b64 {vr(RBF,2)}, v{vAR}')
        if with_issue:
            issue_head(X_, lq)
        mf = []
        for s in range(4):
            mf += [(m, 'HA%d' % s) for m in gemm(0, s)]
        mf += [(m, 'B0') for m in wf(0)]
        for s in range(4):
            mf += [(m, 'B1') for m in gemm(1, s)]
        mf += [(m, 'B1') for m in wf(1)]
        ls = {i: [] for i in range(30)}
        for s in range(4):
            ls[s].append(('HB%d' % s, f'ds_read_b128 {vr(HB+4*s,4)}, v{vAH+s} offset:4096'))
        ls[4].append(('B1', f'ds_read_b64 {vr(RBF+2,2)}, v{vAR} offset:512'))
        for i, x in enumerate(vreads(0)):
            ls[5 + i].append(x)
        for c in range(3):
            ls[12 + c].append(('R0', f'ds_read_b128 {vr(RR[0]+4*c,4)}, v{vAS} offset:{128*c}'))
        for i, x in enumerate(vreads(1)):
            ls[15 + i].append(x)
        ls[21].append(('DL', f'ds_read_b128 {vr(DL,4)}, v{vAS} offset:384'))
        for c in range(3):
            ls[24 + c].append(('R1', f'ds_read_b128 {vr(RR[1]+4*c,4)}, v{vAS} offset:{128*c+16}'))
        vs = {i: [] for i in range(30)}
        for s in range(4):
            vs[4 + s].append(f'v_add_u32 v{vAH+s}, s{sX}, v{vAH+s}')
        vs[8].append(f'v_add_u32 v{vAR}, 1024, v{vAR}')
        late = [f'v_mul_f32 v{p0_+i}, v{p0_+i}, v{WRD+i}' for i in (8, 9, 10, 11, 0, 1, 2, 3, 4, 5, 6, 7)]
        late += [f'v_cvt_pk_bf16_f32 v{MSG[0]}, v{p0_}, v{p0_+1}', f'v_cvt_pk_bf16_f32 v{MSG[0]+1}, v{p0_+2}, v{p0_+3}']
        late += [('R0', f'v_mul_f32 v{RR[0]+4*c+i}, v{RR[0]+4*c+i}, v{p0_+8+i}') for c in range(3) for i in range(4)]
        sl = 17
        while late:
            vs[sl] += late[:2]; late = late[2:]; sl += 1
        assert sl <= 30
        vs[21].append(f'v_add_u32 v{vAV}, s{sX}, v{vAV}')
        vs[27].append(f'v_add_u32 v{vAS}, 512, v{vAS}')
        vs[22].append(f's_add_u32 s{sSl}, s{sSl}, s{sX}')
        vs[23].append(f's_cmp_eq_u32 s{sSl}, 0x10000')
        vs[23].append(f's_cselect_b32 s{sX}, 0xffff0000, s{sC8}')
        for i, (m, tag) in enumerate(mf):
            lq.need(tag)
            pc = None
            if with_issue and i in DSL:
                pc = dma_piece(1 + DSL.index(i)); a(pc[0])
            a(m)
            if pc:
                for x in pc[1:]:
                    a(x)
            for tag2, x in ls[i]:
                lq.issue(tag2, x)
            for x in vs[i]:
                if isinstance(x, tuple):
                    lq.need(x[0]); x = x[1]
                a(x)
    MSL = [int(x) for x in opts.get('msl', '12,28,44').split(',')]
    def Mphase(X_, lq, with_dma):
        p0, p1 = PHI
        cnt = [0]
        def v(x):
            if with_dma and cnt[0] in MSL:
                pc = dma_piece(1 + MSL.index(cnt[0]))
                a(pc[0]); a(x)
                for y in pc[1:]:
                    a(y)
            else:
                a(x)
            cnt[0] += 1
        lq.issue('DLT', f'ds_read_b128 {vr(DLT,4)}, v{vStgR}')
        lq.issue('DLT', f'ds_read_b128 {vr(DLT+4,4)}, v{vStgR} offset:1056')
        lq.need('V0', 'DL')
        for i in range(4):
            v(f'v_xor_b32 v{SEL+i}, v{DL+i}, v{vKey}')
        for i in range(12):
            v(f'v_fmac_f32 v{RR[0]+i}, v{V+i}, v{p0+4+i%4}')
        for i in range(4):
            v(f'v_pk_mad_i16 v{SEL+i}, v{SEL+i}, s{sK8}, v{vOne} clamp')
        for i in range(12):
            v(f'v_mul_f32 v{p1+i}, v{p1+i}, v{WRD+i}')
        v(f'v_cvt_pk_bf16_f32 v{MSG[0]+2}, v{p1}, v{p1+1}')
        v(f'v_cvt_pk_bf16_f32 v{MSG[0]+3}, v{p1+2}, v{p1+3}')
        lq.need('V1', 'R1')
        for x in tr_reads():
            lq.issue('DLT', x)
        for c in range(3):
            for i in range(4):
                v(f'v_mul_f32 v{RR[1]+4*c+i}, v{RR[1]+4*c+i}, v{p1+8+i}')
            if not SMEND:
                sm(c)
            for i in range(4):
                v(f'v_fmac_f32 v{RR[1]+4*c+i}, v{V+12+4*c+i}, v{p1+4+i}')
            for t in range(2):
                for h in range(2):
                    v(f'v_cvt_pk_bf16_f32 v{MSG[1+c]+2*t+h}, v{RR[t]+4*c+2*h}, v{RR[t]+4*c+2*h+1}')
        if SMEND:
            a(f's_setprio {PS}')
            for c in range(3):
                sm(c)
        sm(3)
        a(f's_setprio {PMD[X_]}')
        lq.need('DLT')
        assert cnt[0] > max(MSL)
    ST = PHI[0]
    def stores():
        for h in range(2):
            a(f'buffer_store_dwordx4 {vr(DLT+4*h,4)}, v{[vOut, vOut2][h]}, {sr(S_OUT)}, s{sStO} offen offset:{2048*h}{NTS}')
    OT = V + 8
    def service(L, reads, last=False):
        if reads:
            a(f'''ds_read_b128 {vr(DLT,4)}, v{vStgR}
                  ds_read_b128 {vr(DLT+4,4)}, v{vStgR} offset:1056''')
            if not last:
                for x in tr_reads():
                    a(x)
            a('s_waitcnt lgkmcnt(0)')
        stores()
        if last:
            return
        if not reads:
            a(f'''s_bitcmp1_b32 s{sStO}, 30
                  s_cbranch_scc1 kb_segend{L[1]}''')
        a(f'''
        s_sub_u32 s{sT1}, s{sG}, 8
        s_min_u32 s{sT1}, s{sT1}, 32
        s_lshl_b32 s{sT0}, s{sT1}, 2
        s_add_u32 s{sT0}, s{sT0}, 32
        s_cmp_gt_u32 s{sT0}, s{sOk}
        s_cbranch_scc1 kb_fb{L}
        kb_fbr{L}:
        s_set_gpr_idx_on s{sT1}, 0x1
        s_mov_b32 s{sStO}, 0x40000000
        s_waitcnt vmcnt(12)
        ''')
        for i in range(8):
            a(f'v_mov_b32 v{OT+i}, v{OWN+i}')
        a('s_set_gpr_idx_off')
        for b in range(2):
            a(f'ds_write_b128 v{vStgR}, {vr(OT+4*b,4)} offset:{1056*b}')
        def blk():
            a(f'''kb_fb{L}:
                  s_cmp_ge_u32 s{sOwnN}, 7
                  s_cbranch_scc1 kb_fb2{L}''')
            for j in range(NPRE, 7):
                own_load(j)
            a(f'''kb_fb2{L}:
                  s_mov_b32 s{sOwnN}, 7
                  s_mov_b32 s{sOk}, 0x7fffffff
                  s_waitcnt vmcnt(0)
                  s_branch kb_fbr{L}''')
        tail_blocks.append(blk)
    PF = int(opts.get('pf', 3))
    def Sflush(X_):
        service('r' + X_, False)
        a(f'''
        kb_segend{X_}:
        s_cmp_gt_u32 s{sGend}, s{sTe}
        s_cbranch_scc1 kb_next{X_}
        kb_flush{X_}:
        s_bitcmp0_b32 s{sStO}, 30
        s_cbranch_scc1 kb_extra{X_}
        kb_extrar{X_}:
        s_setprio {PF}
        ''')
        for c in range(4):
            a(f'v_mfma_f32_16x16x16_bf16 {vr(ACC+4*c,4)}, {vr(TR+2*c,2)}, {vr(IDN,2)}, {vr(ACC+4*c,4)}')
        a(f'''
        v_add_u32 v{vKey}, 0x001c001c, v{vKey}
        s_mul_i32 s{sStO}, s{sG}, {0x40000000 // 8 if opts.get('nostore') else 1792}
        s_add_u32 s{sG}, s{sG}, 8
        s_lshr_b64 s[{sGP}:{sGP+1}], s[{sGP}:{sGP+1}], 9
        s_mov_b32 s{sGst}, s{sGend}
        s_and_b32 s{sGend}, s{sGP}, 0x1ff
        ''')
        if opts.get('nostore'):
            a(f's_mov_b32 s{sStO}, 0x20000000')
        selb()
        for i in range(8):
            a(f'v_cvt_pk_bf16_f32 v{ST+i}, v{ACC+2*i}, v{ACC+2*i+1}')
            if i & 1:
                a(f'ds_write_b64 v{vStgW}, {vr(ST+i-1,2)} offset:{64*(i-1)}')
        a(f'''
        s_cmp_eq_u32 s{sG}, 56
        s_cbranch_scc1 kb_fin{X_}
        ''')
        for k in range(4):
            sm(k, True)
        toggle()
        a(f'''
        s_setprio {PMD[X_]}
        s_cmp_le_u32 s{sGend}, s{sTe}
        s_cbranch_scc1 kb_extra{X_}
        kb_next{X_}:
        s_max_u32 s{sOk}, s{sOk}, s{sTe}
        s_add_u32 s{sTe}, s{sTe}, 32
        ''')
    def end_blks(X_):
        a(f'''kb_fin{X_}:
              v_subrev_u32 v{vStgR}, s{sPar}, v{vStgR}
              s_waitcnt lgkmcnt(0)
              s_barrier''')
        service('f' + X_, True, True)
        a(f'v_add_u32 v{vStgR}, s{sPar}, v{vStgR}')
        if X_ == 'A':
            a('s_barrier')
        a('s_branch kb_done')
        a(f'''kb_extra{X_}:
              s_waitcnt lgkmcnt(0)
              s_barrier''')
        service('x' + X_, True)
        a(f's_branch kb_extrar{X_}')
        own_blk(X_)
    a('kb_loopA:')
    stamp()
    a(f'''s_setprio {PG}
          s_barrier''')
    stamp()
    lq = LQ()
    G('A', True, lq)
    a(f's_setprio {PMD["A"]}')
    fstamp()
    Mphase('A', lq, False)
    assert not lq.q
    fstamp()
    Sflush('A')
    fstamp()
    a('''s_waitcnt vmcnt(8) lgkmcnt(0)
         s_branch kb_loopA''')
    end_blks('A')
    a('''kb_B_entry:
         s_barrier''')
    lq = LQ()
    issue_head('B0', lq)
    for k in range(1, 4):
        for x in dma_piece(k):
            a(x)
    stores()
    a('kb_loopB:')
    a(f's_setprio {PG}')
    fstamp()
    assert lq.q == ['bp']
    G('B', False, lq)
    a(f's_setprio {PMD["B"]}')
    fstamp()
    lq.need('V1')
    a(f's_max_u32 s{sOk}, s{sOk}, s{sTe}')
    a('s_waitcnt vmcnt(8)')
    stamp()
    a('s_barrier')
    stamp()
    issue_head('B', lq)
    fstamp()
    Mphase('B', lq, True)
    assert not lq.q
    fstamp()
    Sflush('B')
    a('s_branch kb_loopB')
    end_blks('B')
    k_ = 0
    while k_ < len(tail_blocks):
        tail_blocks[k_](); k_ += 1
    a(f'''
    kb_go_slow:
    s_mov_b32 s{sMode}, 1
    s_mov_b32 s{sI}, 0
    s_mov_b32 s{sQ}, 0
    s_mov_b32 s{sC}, -1
    s_mov_b32 s{sLen}, 0
    s_mov_b32 s{sBase}, 0
    s_branch kb_copy
    kb_empty:
    s_cmp_lg_u32 s{sMode}, 0
    s_cbranch_scc1 kb_done
    kb_copy:
    s_mov_b64 s[{sGP}:{sGP+1}], 0
    s_mov_b32 s{sG}, 0
    s_mov_b32 s{sGend}, 0
    s_mov_b32 s{sTot}, 0
    s_mov_b32 s{sStO}, 0x40000000
    s_mov_b32 s{sTe}, 32
    s_mov_b32 s{sOwnN}, 7
    s_mov_b32 s{sOk}, 0x7fffffff
    ''')
    for j in range(2):
        own_load(j)
    a('s_waitcnt vmcnt(0)')
    own01(T)
    a('s_waitcnt lgkmcnt(0)')
    for j in range(2, 7):
        own_load(j)
    a(f'''s_mov_b32 s{sPar}, {XB}
          s_barrier''')
    for i in range(4):
        for m in MSG:
            a(f'v_mov_b32 v{m+i}, 0')
        a(f'v_mov_b32 v{DL+i}, 0')
    a(f'v_mov_b32 v{vKey}, 0')
    for x in tr_reads():
        a(x)
    acc_zero()
    a('s_waitcnt vmcnt(0) lgkmcnt(0)')
    a(f'''
    s_branch kb_flushA
    kb_done:
    ''')
    if STAMP:
        stamp()
        a('s_waitcnt vmcnt(0)')
        stamp()
        srd(a, S_POS, 24, 25, 0x100000, 0x1000000)
        a(f'''v_lshlrev_b32 v{T}, 2, v0
              s_lshl_b32 s{sT0}, s2, 11
              v_add_u32 v{T}, s{sT0}, v{T}
              buffer_store_dword v{vStamp}, v{T}, {sr(S_POS)}, 0 offen''')
    a(f'''
    s_waitcnt vmcnt(2)
    s_cmp_eq_u32 s{sMode}, 0
    s_cbranch_scc1 kb_exit
    s_waitcnt vmcnt(0) lgkmcnt(0)
    s_barrier
    v_and_b32 v{T+8}, 7, v0
    v_lshlrev_b32 v{T+8}, 2, v{T+8}
    v_add_u32 v{T+8}, {L_GCNT}, v{T+8}
    v_mov_b32 v{T+9}, 0
    ds_write_b32 v{T+8}, v{T+9}
    s_mov_b32 s{S_BASE}, s20
    s_mov_b32 s{S_BASE+1}, s21
    s_cmp_ge_u32 s{sI}, 4
    s_cbranch_scc1 kb_mode2
    s_lshl_b32 s{sT0}, s2, 13
    s_add_u32 s{sT0}, s{sT0}, {WS_CELL - WSO}
    v_lshl_add_u32 v{T+4}, v0, 4, s{sT0}
    v_and_b32 v{T+6}, -64, v{T+4}
    s_lshl_b32 s{sT1}, s{sI}, 2
    buffer_load_dword v{CE+4}, v{T+6}, {sr(S_WS)}, 0 offen
    buffer_load_dword v{CE}, v{T+4}, {sr(S_WS)}, s{sT1} offen
    v_lshrrev_b32 v{T+3}, 7, v0
    v_cmp_eq_u32 s[{GE}:{GE+1}], s{sQ}, v{T+3}
    v_and_b32 v{T+5}, 3, v0
    v_add_u32 v{T+5}, s{sT1}, v{T+5}
    v_lshlrev_b32 v{T+5}, 2, v{T+5}
    v_cmp_ne_u32 vcc, 0, v{T+5}
    s_and_b64 s[{GE}:{GE+1}], vcc, s[{GE}:{GE+1}]
    s_waitcnt vmcnt(0)
    v_and_b32 v{CE+4}, 0xffff, v{CE+4}
    v_cmp_lt_u32 vcc, v{T+5}, v{CE+4}
    s_and_b64 s[{GE}:{GE+1}], vcc, s[{GE}:{GE+1}]
    s_add_u32 s{sQ}, s{sQ}, 1
    s_lshr_b32 s{sT0}, s{sQ}, 2
    s_add_u32 s{sI}, s{sI}, s{sT0}
    s_and_b32 s{sQ}, s{sQ}, 3
    s_branch kb_round
    kb_mode2:
    s_cmp_lt_u32 s{sBase}, s{sLen}
    s_cbranch_scc1 kb_m2_go
    s_add_u32 s{sC}, s{sC}, 1
    s_cmp_ge_u32 s{sC}, {NCHUNK}
    s_cbranch_scc1 kb_exit
    s_lshl_b32 s{sT0}, s2, 13
    s_lshl_b32 s{sT1}, s{sC}, 6
    s_add_u32 s{sT0}, s{sT0}, s{sT1}
    s_add_u32 s{sT0}, s{sT0}, {WS_CELL}
    s_load_dword s{sT1}, s[24:25], s{sT0}
    s_waitcnt lgkmcnt(0)
    s_and_b32 s{sT2}, s{sT1}, 0xffff
    s_lshr_b32 s{sLen}, s{sT1}, 16
    s_cmp_gt_u32 s{sT2}, 64
    s_cselect_b32 s{sLen}, s{sLen}, 0
    s_mov_b32 s{sBase}, 0
    s_branch kb_mode2
    kb_m2_go:
    v_add_u32 v{T+3}, s{sBase}, v0
    v_cmp_gt_u32 s[{GE}:{GE+1}], s{sLen}, v{T+3}
    v_cmp_gt_u32 vcc, 128, v0
    s_and_b64 s[{GE}:{GE+1}], vcc, s[{GE}:{GE+1}]
    s_mov_b64 vcc, s[{GE}:{GE+1}]
    s_mul_i32 s{sT0}, s{sC}, {OVF_STRIDE}
    s_add_u32 s{sT0}, s{sT0}, {WS_OVF - WSO}
    v_lshl_add_u32 v{T+4}, v{T+3}, 2, s{sT0}
    v_mov_b32 v{T+5}, 0x40000000
    v_cndmask_b32 v{T+4}, v{T+5}, v{T+4}, vcc
    buffer_load_dword v{CE}, v{T+4}, {sr(S_WS)}, 0 offen
    s_waitcnt vmcnt(0)
    v_lshrrev_b32 v{T+3}, 16, v{CE}
    v_subrev_u32 v{T+3}, s{sNode0}, v{T+3}
    v_cmp_gt_u32 vcc, 98, v{T+3}
    s_and_b64 s[{GE}:{GE+1}], vcc, s[{GE}:{GE+1}]
    s_add_u32 s{sBase}, s{sBase}, 128
    kb_round:
    s_mov_b64 s[{GE+2}:{GE+3}], 0
    v_mov_b32 v{CE+4}, 0
    s_waitcnt lgkmcnt(0)
    s_barrier
    s_branch kb_propose
    kb_exit:
    s_endpgm
    ''')
    return L_END
```

```python
from consts import *

def srd(a, r, lo, hi, nbytes, off=0):
    if off:
        a(f'''s_add_u32 s{r}, s{lo}, {off}
              s_addc_u32 s{r+1}, s{hi}, 0''')
    else:
        a(f'''s_mov_b32 s{r}, s{lo}
              s_mov_b32 s{r+1}, s{hi}''')
    a(f'''s_mov_b32 s{r+2}, {nbytes}
          s_mov_b32 s{r+3}, 0x00020000''')

NP = 19
L_OVC = 1024
L_TAB = 2048
assert L_TAB + 8 * NP * 1024 <= KA_LDS

def gen_ka(a, opts={}):
    STAMP = opts.get('stampa')
    fl_ = lambda k: (' ' + opts[k].replace('+', ' ')) if opts.get(k) else ''
    KAH, KAR, KAC = fl_('kah'), fl_('kar'), fl_('kac')
    cnt = [0]
    def stamp(reset=False):
        if reset:
            cnt[0] = 1
        if STAMP:
            a(f'''s_memrealtime s[80:81]
                 s_waitcnt lgkmcnt(0)
                 v_writelane_b32 v160, s80, {cnt[0]}''')
            cnt[0] += 1
    def stamp_out():
        if STAMP:
            stamp()
            a('s_waitcnt vmcnt(0)')
            stamp()
            srd(a, 76, 20, 21, 0x100000, 0x1100000)
            a('''v_lshlrev_b32 v161, 2, v0
                 s_lshl_b32 s82, s2, 12
                 v_add_u32 v161, s82, v161
                 buffer_store_dword v160, v161, s[76:79], 0 offen''')
    PFE, PFH, PFN = int(opts.get('pfe', 0)), int(opts.get('pfh', 0)), int(opts.get('pfn', 2))
    def pf():
        srd(a, 68, 4, 5, 25600000)
        a('''s_mul_i32 s72, s2, 100352
             v_lshlrev_b32 v144, 7, v0
             buffer_load_dword v145, v144, s[68:71], s72 offen''')
        if PFN > 1:
            a('''s_add_u32 s72, s72, 65536
                 v_mov_b32 v146, 0x40000000
                 v_cmp_gt_u32 vcc, 272, v0
                 v_cndmask_b32 v144, v146, v144, vcc
                 buffer_load_dword v146, v144, s[68:71], s72 offen''')
    a(f'''
    .globl ka_kernel
    .p2align 8
    .type ka_kernel,@function
    ka_kernel:
    s_load_dwordx16 s[4:19], s[0:1], 0
    s_load_dwordx2 s[20:21], s[0:1], 80
    ''')
    stamp()
    a(f'''
    s_cmp_ge_u32 s2, {KA_GRID}
    s_cbranch_scc1 ka_exit
    v_lshrrev_b32 v1, 6, v0
    v_readfirstlane_b32 s23, v1
    v_and_b32 v1, 63, v0
    s_lshr_b32 s62, s2, 4
    s_lshl_b32 s22, s62, 3
    s_and_b32 s3, s2, 7
    s_or_b32 s22, s22, s3
    s_bitcmp1_b32 s2, 3
    s_cbranch_scc1 ka_h
    ''')
    SV = [4, 5, 6, 7, 8, 9, 10]
    DV = [12, 13, 14, 15, 16, 17, 18]
    a(f"""
    s_mul_i32 s44, s22, {CHUNK*4}
    v_lshl_add_u32 v20, v0, 4, s44
    s_add_u32 s45, s44, {2048*4}
    v_lshl_add_u32 v21, v0, 3, s45
    s_add_u32 s45, s44, {3072*4}
    v_lshl_add_u32 v22, v0, 2, s45
    v_mov_b32 v2, 0x40000000
    v_cmp_gt_u32 vcc, {CHUNK-3072}, v0
    v_cndmask_b32 v22, v2, v22, vcc
    v_lshlrev_b32 v2, 4, v1
    s_mul_i32 s45, s23, {NP*1024}
    s_add_u32 s46, s45, {NP*1024}
    s_mul_i32 s47, s62, {NP}
    s_lshr_b32 s47, s47, 4
    s_lshl_b32 s47, s47, 10
    s_add_u32 s47, s47, s45
    s_waitcnt lgkmcnt(0)
    """)
    srd(a, 32, 6, 7, 150000)
    srd(a, 24, 8, 9, 1600000)
    srd(a, 28, 10, 11, 1600000)
    PRE = int(opts.get('pre', 2))
    for i in range(NP):
        if i == PRE:
            nte = ' nt' if opts.get('nte', '0') == '1' else fl_('kae')
            a(f"""
            buffer_load_dwordx4 v[4:7], v20, s[24:27], 0 offen{nte}
            buffer_load_dwordx4 v[12:15], v20, s[28:31], 0 offen{nte}
            buffer_load_dwordx2 v[8:9], v21, s[24:27], 0 offen{nte}
            buffer_load_dwordx2 v[16:17], v21, s[28:31], 0 offen{nte}
            buffer_load_dword v10, v22, s[24:27], 0 offen{nte}
            buffer_load_dword v18, v22, s[28:31], 0 offen{nte}
            s_barrier
            """)
        a(f"""s_add_u32 m0, s47, {L_TAB}
              buffer_load_dwordx4 v2, s[32:35], s47 offen{fl_('kat')} lds""")
        if i < NP - 1:
            a(f"""s_add_u32 s47, s47, 1024
                  s_cmp_eq_u32 s47, s46
                  s_cselect_b32 s47, s45, s47""")
    if PFE == 1:
        pf()
    XE = PFN if PFE == 1 else 0
    stamp(True)
    a(f"""
    v_lshlrev_b32 v3, 2, v0
    v_mov_b32 v2, 4
    v_cmp_gt_u32 vcc, 256, v0
    v_cndmask_b32 v23, 0, v2, vcc
    ds_write_b32 v3, v23
    v_cmp_gt_u32 s[46:47], s26, v20
    v_cmp_gt_u32 s[54:55], s26, v21
    v_cmp_gt_u32 s[58:59], s26, v22
    s_mov_b64 s[48:49], s[46:47]
    s_mov_b64 s[50:51], s[46:47]
    s_mov_b64 s[52:53], s[46:47]
    s_mov_b64 s[56:57], s[54:55]
    """)
    srd(a, 36, 20, 21, CELL_BYTES, WS_CELL)
    srd(a, 40, 20, 21, OVF_BYTES, WS_OVF)
    a(f"""
    s_mov_b32 s44, 0xffff0000
    s_mov_b32 s45, 0x41c28000
    s_mov_b32 s64, 0x0000bf80
    s_mov_b32 s65, 0xbf800000
    s_movk_i32 s66, {L_TAB}
    s_waitcnt vmcnt({NP-PRE+XE})
    """)
    stamp()
    REC = [64 + k for k in range(7)]
    CA = [80 + k for k in range(7)]
    AS = [88 + k for k in range(7)]
    AD = [96 + k for k in range(7)]
    RK = [104 + k for k in range(7)]
    PS = [24 + 2 * k for k in range(7)]
    PD = [40 + 2 * k for k in range(7)]
    MK = lambda k: f's[{46+2*k}:{47+2*k}]'
    UNAL = opts.get('unal', '0') == '1'
    for k in range(7):
        S, D = SV[k], DV[k]
        a(f"""
        v_mad_u32_u24 v{AS[k]}, v{S}, 6, s66
        v_mad_u32_u24 v{AD[k]}, v{D}, 6, s66
        v_and_b32 v{AS[k]}, -4, v{AS[k]}
        v_and_b32 v{AD[k]}, -4, v{AD[k]}""")
        a(f"""
        v_mul_u32_u24 v56, 10700, v{D}
        v_lshrrev_b32 v56, 20, v56
        v_lshlrev_b32 v{CA[k]}, 2, v56
        v_lshl_or_b32 v{REC[k]}, v{D}, 16, v{S}
        """)
    a(f"""
    s_waitcnt vmcnt({XE}) lgkmcnt(0)
    s_barrier
    """)
    if PFE == 2:
        pf()
    stamp()
    a(f's_mov_b64 exec, {MK(6)}')
    for k in [6, 0, 1, 2, 3, 4, 5]:
        if UNAL:
            a(f"""ds_read_b64 v[{PS[k]}:{PS[k]+1}], v{AS[k]} offset:{L_TAB}
                  ds_read_b64 v[{PD[k]}:{PD[k]+1}], v{AD[k]} offset:{L_TAB}""")
        elif opts.get('b64'):
            a(f"""ds_read_b64 v[{PS[k]}:{PS[k]+1}], v{AS[k]}
                  ds_read_b64 v[{PD[k]}:{PD[k]+1}], v{AD[k]}""")
        else:
            a(f"""ds_read2_b32 v[{PS[k]}:{PS[k]+1}], v{AS[k]} offset1:1
                  ds_read2_b32 v[{PD[k]}:{PD[k]+1}], v{AD[k]} offset1:1""")
        if k == 6:
            a('s_mov_b64 exec, -1')
    if not UNAL:
        for k in range(7):
            a(f"""v_lshlrev_b32 v{SV[k]}, 4, v{SV[k]}
                  v_lshlrev_b32 v{DV[k]}, 4, v{DV[k]}""")
    order = [6, 0, 1, 2, 3, 4, 5]
    def fin(i):
        k = order[i]; t = 56 + 3 * (i & 1)
        a(f"""
        v_mul_f32 v{t}, v{t}, v{t}
        v_fmac_f32 v{t}, v{t+1}, v{t+1}
        v_fmac_f32 v{t}, v{t+2}, v{t+2}
        v_cmp_gt_f32 vcc, s45, v{t}
        s_and_b64 {MK(k)}, {MK(k)}, vcc
        """)
    for i, k in enumerate(order):
        ps, pd = PS[k], PD[k]
        t = 56 + 3 * (i & 1)
        a(f's_waitcnt lgkmcnt({12-2*i})')
        if not UNAL:
            a(f"""
            v_alignbit_b32 v{ps}, v{ps+1}, v{ps}, v{SV[k]}
            v_lshrrev_b32 v{ps+1}, v{SV[k]}, v{ps+1}
            v_alignbit_b32 v{pd}, v{pd+1}, v{pd}, v{DV[k]}
            v_lshrrev_b32 v{pd+1}, v{DV[k]}, v{pd+1}
            """)
        if i:
            fin(i - 1)
        a(f"""
        v_lshlrev_b32 v{t}, 16, v{ps}
        v_and_b32 v{t+1}, s44, v{ps}
        v_lshlrev_b32 v{t+2}, 16, v{ps+1}
        v_dot2_f32_bf16 v{t}, v{pd}, s64, v{t}
        v_dot2_f32_bf16 v{t+1}, v{pd}, s65, v{t+1}
        v_dot2_f32_bf16 v{t+2}, v{pd+1}, s64, v{t+2}
        """)
    fin(6)
    if STAMP == '4': stamp()
    for k in range(7):
        a(f"""s_mov_b64 exec, {MK(k)}
              ds_add_rtn_u32 v{RK[k]}, v{CA[k]}, v2""")
    a(f"""s_mov_b64 exec, -1
         v_and_b32 v3, -4, v0
         v_mov_b32 v12, {L_OVC}
         v_lshrrev_b32 v13, 2, v0
         v_and_b32 v14, 3, v0
         v_lshlrev_b32 v1, 2, v14
         v_lshl_or_b32 v1, v13, 6, v1
         v_add_u32 v1, {L_TAB}, v1
         v_add_u32 v19, 8192, v1
         v_lshlrev_b32 v13, 13, v13
         v_lshl_or_b32 v13, v14, 4, v13
         s_lshl_b32 s3, s22, 6
         v_add_u32 v13, s3, v13
         s_mov_b64 s[60:61], 0
         s_waitcnt lgkmcnt(0)
         s_barrier""")
    stamp()
    for k in range(7):
        a(f"""
        v_cmp_gt_u32 vcc, 64, v{RK[k]}
        v_lshl_add_u32 v{CA[k]}, v{CA[k]}, 4, v{RK[k]}
        s_and_b64 exec, vcc, {MK(k)}
        ds_write_b32 v{CA[k]}, v{REC[k]} offset:{L_TAB}
        s_andn2_b64 {MK(k)}, {MK(k)}, vcc
        s_or_b64 s[60:61], s[60:61], {MK(k)}
        s_mov_b64 exec, -1
        """)
    a(f"""
    s_cmp_eq_u64 s[60:61], 0
    s_cbranch_scc1 ka_e_noovf
    s_mul_i32 s3, s22, {OVF_STRIDE}
    """)
    for k in range(7):
        a(f"""
        s_mov_b64 exec, {MK(k)}
        ds_add_rtn_u32 v57, v12, v2
        s_waitcnt lgkmcnt(0)
        v_add_u32 v57, s3, v57
        buffer_store_dword v{REC[k]}, v57, s[40:43], 0 offen{KAR}
        """)
    a(f"""
    s_mov_b64 exec, -1
    ka_e_noovf:
    v_cmp_eq_u32 vcc, 0, v14
    s_mov_b32 s3, {128*CELL_WG_STRIDE}
    s_waitcnt lgkmcnt(0)
    s_barrier
    """)
    stamp()
    a(f"""
    ds_read_b32 v16, v12
    ds_read2_b32 v[4:5], v1 offset1:4
    ds_read2_b32 v[6:7], v1 offset0:8 offset1:12
    ds_read_b32 v14, v3
    ds_read2_b32 v[8:9], v19 offset1:4
    ds_read2_b32 v[10:11], v19 offset0:8 offset1:12
    ds_read_b32 v15, v3 offset:512
    s_waitcnt lgkmcnt(3)
    v_lshl_or_b32 v14, v16, 14, v14
    v_cndmask_b32 v4, v4, v14, vcc
    buffer_store_dwordx4 v[4:7], v13, s[36:39], 0 offen{KAC}
    s_waitcnt lgkmcnt(0)
    v_lshl_or_b32 v15, v16, 14, v15
    v_cndmask_b32 v8, v8, v15, vcc
    buffer_store_dwordx4 v[8:11], v13, s[36:39], s3 offen{KAC}
    """)
    stamp_out()
    a('s_endpgm')
    a(f'''
    ka_h:
    v_lshrrev_b32 v2, 4, v1
    v_and_b32 v3, 15, v1
    s_cmp_ge_u32 s22, 112
    s_cbranch_scc1 ka_prep
    v_lshlrev_b32 v4, 2, v2
    v_xor_b32 v4, v4, v3
    v_lshlrev_b32 v4, 4, v4
    v_lshl_or_b32 v4, v2, 8, v4
    s_and_b32 s24, s23, 3
    s_lshl_b32 s24, s24, 13
    s_and_b32 s42, s62, 7
    s_lshl_b32 s42, s42, 10
    s_lshl_b32 s26, s23, 5
    s_mul_i32 s27, s22, 224
    s_add_u32 s26, s26, s27
    s_lshl_b32 s25, s23, 13
    s_add_u32 s25, s25, 32768
    v_xor_b32 v7, v2, v3
    v_lshlrev_b32 v7, 4, v7
    v_add_u32 v8, s26, v2
    v_lshl_or_b32 v7, v8, 10, v7
    s_waitcnt lgkmcnt(0)
    ''')
    srd(a, 28, 14, 15, 32768)
    srd(a, 32, 4, 5, 25600000)
    a('''s_or_b32 s3, s24, s42
         s_cmp_lt_u32 s23, 4
         s_cbranch_scc1 ka_hs0''')
    for i in range(7):
        a(f'''s_add_u32 s42, s42, 1024
              s_and_b32 s42, s42, 0x1fff
              s_or_b32 s3, s24, s42
              s_mov_b32 m0, s3
              buffer_load_dwordx4 v4, s[28:31], s3 offen lds''')
    a('''s_waitcnt vmcnt(0)
         s_barrier
         s_cmp_eq_u32 s23, 7
         s_cbranch_scc1 ka_pfexit
         s_branch ka_hs
         ka_hs0:
         s_mov_b32 m0, s3
         buffer_load_dwordx4 v4, s[28:31], s3 offen lds
         ka_hs:''')
    for i in range(8):
        a(f'''v_xor_b32 v{16+i}, {((4*i) & 15) << 4}, v7
              s_add_u32 m0, s25, {1024*i}
              s_movk_i32 s3, {4096*i}
              buffer_load_dwordx4 v{16+i}, s[32:35], s3 offen{' nt' if opts.get('nts', '0') == '1' else fl_('kas')} lds''')
    if PFH == 1:
        pf()
    XH = PFN if PFH == 1 else 0
    srd(a, 36, 20, 21, 6400000, WS_H)
    a(f'''
    v_lshrrev_b32 v6, 5, v1
    v_bfe_u32 v8, v1, 2, 2
    v_and_b32 v9, 1, v1
    v_lshlrev_b32 v9, 5, v9
    v_and_b32 v10, 1, v2
    v_lshl_or_b32 v9, v10, 4, v9
    v_bfe_u32 v10, v1, 1, 1
    v_lshl_or_b32 v9, v10, 3, v9
    v_lshlrev_b32 v10, 6, v8
    v_xor_b32 v9, v9, v10
    v_lshl_add_u32 v10, v6, 3, v8
    v_lshl_or_b32 v11, v10, 8, v9
    v_xor_b32 v12, 64, v11
    v_xor_b32 v13, 0x80, v11
    v_xor_b32 v14, 0xc0, v11
    v_and_b32 v5, 31, v1
    v_xor_b32 v15, v6, v3
    v_lshlrev_b32 v15, 4, v15
    v_lshl_or_b32 v15, v5, 8, v15
    v_add_u32 v15, s25, v15
    v_add_u32 v5, s26, v5
    v_lshlrev_b32 v5, 8, v5
    v_lshl_or_b32 v5, v6, 5, v5
    s_mov_b32 s40, 0xbfb8aa3b
    s_mov_b32 s41, 0xbfb8aa3b
    ''')
    stamp(True)
    a(f'''
    s_cmp_ge_u32 s23, 4
    s_cbranch_scc1 ka_hnb
    s_waitcnt vmcnt({8+XH})
    s_barrier
    ka_hnb:
    ''')
    stamp()
    BF = 16
    AF = 48
    ACC = [80, 96]
    TM = 112
    OUT = 128
    def rdA(j):
        mt, s = j >> 3, j & 7
        b = AF + 4 * (j % 8)
        for u in range(2):
            a(f'ds_read_b64_tr_b16 v[{b+2*u}:{b+2*u+1}], v{11+mt} offset:{s*4096+u*1024}')
    for j in range(3):
        rdA(j)
    a(f's_waitcnt vmcnt({XH})')
    if PFH == 2:
        pf()
    stamp()
    for s in range(8):
        if s:
            a(f'v_xor_b32 v{TM+s}, {32*s}, v15')
        a(f'ds_read_b128 v[{BF+4*s}:{BF+4*s+3}], v{TM+s if s else 15}')
    def silu(mt):
        A = ACC[mt & 1]
        o = OUT + 8 * (mt & 1)
        out = []
        for h in range(2):
            r = range(4 * h, 4 * h + 4)
            r8 = range(8 * h, 8 * h + 8)
            if opts.get('pk', '0') == '0':
                out += [f'v_mul_f32 v{TM+i}, s40, v{A+i}' for i in r8]
                out += [f'v_exp_f32 v{TM+i}, v{TM+i}' for i in r8]
                out += [f'v_add_f32 v{TM+i}, 1.0, v{TM+i}' for i in r8]
                out += [f'v_rcp_f32 v{TM+i}, v{TM+i}' for i in r8]
                out += [f'v_mul_f32 v{TM+i}, v{TM+i}, v{A+i}' for i in r8]
                out += [f'v_cvt_pk_bf16_f32 v{o+i}, v{TM+2*i}, v{TM+2*i+1}' for i in r]
                out += [f'buffer_store_dwordx4 v[{o+4*h}:{o+4*h+3}], v5, s[36:39], 0 offen offset:{64*mt+16*h}{KAH}']
                continue
            out += [f'v_pk_mul_f32 v[{TM+2*i}:{TM+2*i+1}], v[{A+2*i}:{A+2*i+1}], s[40:41]' for i in r]
            out += [f'v_exp_f32 v{TM+i}, v{TM+i}' for i in range(8 * h, 8 * h + 8)]
            out += [f'v_pk_add_f32 v[{TM+2*i}:{TM+2*i+1}], v[{TM+2*i}:{TM+2*i+1}], 1.0 op_sel_hi:[1,0]' for i in r]
            out += [f'v_rcp_f32 v{TM+i}, v{TM+i}' for i in range(8 * h, 8 * h + 8)]
            out += [f'v_pk_mul_f32 v[{TM+2*i}:{TM+2*i+1}], v[{TM+2*i}:{TM+2*i+1}], v[{A+2*i}:{A+2*i+1}]' for i in r]
            out += [f'v_cvt_pk_bf16_f32 v{o+i}, v{TM+2*i}, v{TM+2*i+1}' for i in r]
            out += [f'buffer_store_dwordx4 v[{o+4*h}:{o+4*h+3}], v5, s[36:39], 0 offen offset:{64*mt+16*h}{KAH}']
        return out
    pend = []
    q = ['A0', 'A0', 'A1', 'A1', 'A2', 'A2'] + [f'B{s}' for s in range(8)]
    nextA = 3
    for j in range(32):
        mt, s = j >> 3, j & 7
        while nextA < 32 and nextA <= j + 5 and len(q) <= 13:
            rdA(nextA); q += [f'A{nextA}'] * 2; nextA += 1
        need = [i for i, t in enumerate(q) if t == f'A{j}' or (mt == 0 and t == f'B{s}')]
        if need:
            last = max(need)
            a(f's_waitcnt lgkmcnt({len(q) - 1 - last})')
            q = q[last + 1:]
        b = AF + 4 * (j % 8)
        A = ACC[mt & 1]
        c = '0' if s == 0 else f'v[{A}:{A+15}]'
        a(f'v_mfma_f32_32x32x16_bf16 v[{A}:{A+15}], v[{b}:{b+3}], v[{BF+4*s}:{BF+4*s+3}], {c}')
        if s == 1 and mt > 0:
            pend = silu(mt - 1)
        if pend and s >= 1:
            n = (len(pend) + (7 - s)) // (8 - s)
            for x in pend[:n]:
                a(x)
            pend = pend[n:]
    stamp()
    for x in silu(3):
        a(x)
    stamp_out()
    a('s_endpgm')
    a(f'''
    ka_prep:
    s_sub_u32 s24, s22, 112
    s_lshl_b32 s24, s24, 3
    s_add_u32 s24, s24, s23
    s_waitcnt lgkmcnt(0)
    s_cmp_ge_u32 s24, 120
    s_cbranch_scc1 ka_pfexit
    s_cmp_ge_u32 s24, 96
    s_cbranch_scc1 ka_prep_wr
    s_lshr_b32 s25, s24, 2
    s_and_b32 s26, s24, 3
    s_mul_i32 s27, s25, 0x5556
    s_lshr_b32 s27, s27, 16
    s_mul_i32 s3, s27, 3
    s_sub_u32 s3, s25, s3
    s_lshl_b32 s27, s27, 5
    s_lshl_b32 s3, s3, 8
    s_add_u32 s27, s27, s3
    s_mul_i32 s26, s26, {32*768}
    s_add_u32 s27, s27, s26
    v_mul_u32_u24 v4, {8*768}, v2
    v_lshl_add_u32 v4, v3, 1, v4
    v_add_u32 v4, s27, v4
    s_lshl_b32 s3, s24, 10
    v_lshlrev_b32 v5, 4, v1
    v_add_u32 v5, s3, v5
    v_add_u32 v6, {4*768}, v4
    ''')
    srd(a, 40, 16, 17, 98304)
    srd(a, 44, 20, 21, 98304, WS_W2P)
    for j in range(8):
        a(f'buffer_load_ushort v{12+j}, v{4 if j < 4 else 6}, s[40:43], 0 offen offset:{768*(j&3)}')
    a('s_waitcnt vmcnt(0)')
    for j in range(4):
        a(f'v_lshl_or_b32 v{8+j}, v{13+2*j}, 16, v{12+2*j}')
    a(f'''
    buffer_store_dwordx4 v[8:11], v5, s[44:47], 0 offen
    s_branch ka_pfexit
    ka_prep_wr:
    s_sub_u32 s25, s24, 96
    s_mul_i32 s27, s25, 0x5556
    s_lshr_b32 s27, s27, 16
    s_mul_i32 s3, s27, 3
    s_sub_u32 s3, s25, s3
    s_lshl_b32 s27, s27, 5
    s_lshl_b32 s3, s3, 8
    s_add_u32 s27, s27, s3
    v_mul_u32_u24 v4, {4*768}, v2
    v_lshl_add_u32 v4, v3, 1, v4
    v_add_u32 v4, s27, v4
    s_lshl_b32 s3, s25, 9
    v_lshlrev_b32 v5, 3, v1
    v_add_u32 v5, s3, v5
    ''')
    srd(a, 40, 18, 19, 12288)
    srd(a, 44, 20, 21, 12288, WS_WRP)
    for j in range(4):
        a(f'buffer_load_ushort v{12+j}, v4, s[40:43], 0 offen offset:{768*j}')
    a('s_waitcnt vmcnt(0)')
    for j in range(2):
        a(f'v_lshl_or_b32 v{8+j}, v{13+2*j}, 16, v{12+2*j}')
    a(f'''
    buffer_store_dwordx2 v[8:9], v5, s[44:47], 0 offen
    ka_pfexit:
    ''')
    if PFH:
        pf()
    a(f'''
    ka_exit:
    s_endpgm
    ''')
```

```python
from consts import *
from gen_ka import srd

L_RING = 0
L_STG = 98304
STG_H = 16 * 528
L_TMP = L_STG + 4 * STG_H
L_GCNT = L_TMP + 3584
L_RBF = L_GCNT + 64
L_META = L_RBF + 16384
L_END = L_META + 16 * 512
assert L_RBF % 16 == 0 and L_META % 16 == 0 and L_END <= 163840
LISTCAP = 416
PADSRC = 0x100000

class RA:
    def __init__(self, start=1):
        self.n = start
    def __call__(self, k=1, align=1):
        self.n = (self.n + align - 1) // align * align
        r = self.n
        self.n += k
        return r

def vr(b, k):
    return f'v[{b}:{b+k-1}]'

def gen_kb(a, opts):
    R = RA(1)
    vSwzH, vSwzV, vAV, vAR, vAS, vBP, vKey, vOut, vSrc, vSrcB, vOH, vOV, vOne, vOwnA, vStamp = [R() for _ in range(15)]
    vAH = R(4)
    W2 = R(48, 4); WR = R(6, 2); RBF = R(4, 2)
    OWN = R(40, 4); ACC = R(16, 4)
    PHI = [R(12, 4), R(12, 4)]; WRD = R(12, 4)
    HA = R(16, 4); HB = R(16, 4)
    V = R(24, 4)
    DLT = R(8, 4); vOut2 = R(); vStgW = R(); vStgR = R(); vStgT = R(); IDN = R(2, 2)
    TR = V
    XB = 2 * STG_H
    OS = lambda j: (j + 3) % 5
    assert R.n <= 256, R.n
    RR = [HA, HB]
    DL = HA + 12; SEL = HB + 12
    MSG = [RBF, WRD, WRD + 4, WRD + 8]
    S_SV, S_OUT, S_H, S_POS, S_WS, S_BASE = 28, 32, 36, 40, 44, 48
    sW, sMask, sNode0, sMode, sI, sQ, sC, sLen, sBase = 52, 53, 54, 55, 26, 27, 3, 88, 89
    FR = 64
    GE = 80
    sGP = 90
    sTot, sTe, sGend, sGst, sG, sStA, sStB, sStC, sDma, sX = 92, 93, 94, 95, 96, 97, 98, 99, 100, 101
    s256, s512, s768 = 56, 57, 58
    sT0, sT1, sT2, sT3 = 59, 60, 61, 62
    sW2, sC8, sT4, sSl = 16, 17, 18, 19
    sOwO, sStO = sStA, sStB
    sPend, sPar = 12, 13
    sOk, sOwnN, sK8, sNeg, sGC, sTM = 8, 9, 10, 11, 14, 15
    WSO = WS_W2P
    sr = lambda b: f's[{b}:{b+3}]'
    M = f's{sMask}'
    STAMP = opts.get('stamp')
    def stamp():
        if STAMP:
            a(f'''{"s_memtime" if STAMP == "2" else "s_memrealtime"} s[22:23]
                 s_waitcnt lgkmcnt(0)
                 s_mov_b32 m0, s63
                 s_nop 1
                 v_writelane_b32 v{vStamp}, s22, m0
                 s_add_u32 s63, s63, 1
                 s_min_u32 s63, s63, 63''')
    def fstamp():
        if opts.get('fine'):
            stamp()
    a(f'''
    .globl kb_kernel
    .p2align 8
    .type kb_kernel,@function
    kb_kernel:
    s_cmp_ge_u32 s2, 256
    s_cbranch_scc1 kb_exit
    s_load_dwordx2 s[24:25], s[0:1], 80
    s_load_dwordx4 s[4:7], s[0:1], 0
    s_load_dwordx2 s[20:21], s[0:1], 64
    s_load_dwordx2 s[12:13], s[0:1], 32
    ''')
    T = PHI[0]
    U = HA
    CE = V
    tL, tN, tG = T, T + 1, T + 2
    def out_base():
        a(f'''
        v_and_b32 v{tN}, 15, v0
        v_bfe_u32 v{tG}, v0, 4, 2
        v_bfe_u32 v{T+10}, v0, 3, 3
        v_lshlrev_b32 v{T+10}, 8, v{T+10}
        v_and_b32 v{T+11}, 7, v0
        v_lshl_or_b32 v{T+10}, v{T+11}, 4, v{T+10}
        s_and_b32 s{sT2}, s{sW}, 3
        s_lshl_b32 s{sT3}, s{sT2}, 2
        s_add_u32 s{sT3}, s{sT3}, s{sNode0}
        s_lshl_b32 s{sT3}, s{sT3}, 10
        s_lshr_b32 s{sT1}, s{sW}, 2
        s_lshl_b32 s{sT4}, s{sT1}, 7
        s_add_u32 s{sT3}, s{sT3}, s{sT4}
        v_add_u32 v{vOut}, s{sT3}, v{T+10}
        s_cmp_eq_u32 s{sT2}, 3
        s_cselect_b32 s{sT3}, 0x40000000, 0
        v_add_u32 v{vOut2}, s{sT3}, v{vOut}
        s_mul_i32 s{sT1}, s{sT1}, {STG_H}
        s_add_u32 s{sT1}, s{sT1}, {L_STG}
        s_lshl_b32 s{sT3}, s{sT2}, 5
        s_add_u32 s{sT3}, s{sT3}, s{sT1}
        v_mul_u32_u24 v{T+10}, 528, v{tN}
        v_lshl_add_u32 v{T+10}, v{tG}, 3, v{T+10}
        v_add_u32 v{vStgW}, s{sT3}, v{T+10}
        v_bfe_u32 v{T+10}, v0, 2, 4
        v_mul_u32_u24 v{T+10}, 528, v{T+10}
        v_and_b32 v{T+11}, 3, v0
        v_lshl_add_u32 v{T+10}, v{T+11}, 3, v{T+10}
        v_add_u32 v{vStgT}, s{sT3}, v{T+10}
        v_lshlrev_b32 v{T+10}, 2, v{tG}
        v_sub_u32 v{T+10}, v{tN}, v{T+10}
        v_mov_b32 v{T+11}, 0x3f80
        v_mov_b32 v{T+12}, 0x3f800000
        v_cmp_eq_u32 vcc, 0, v{T+10}
        v_cndmask_b32 v{IDN}, 0, v{T+11}, vcc
        v_cmp_eq_u32 vcc, 1, v{T+10}
        v_cndmask_b32 v{IDN}, v{IDN}, v{T+12}, vcc
        v_cmp_eq_u32 vcc, 2, v{T+10}
        v_cndmask_b32 v{IDN+1}, 0, v{T+11}, vcc
        v_cmp_eq_u32 vcc, 3, v{T+10}
        v_cndmask_b32 v{IDN+1}, v{IDN+1}, v{T+12}, vcc
        s_mul_i32 s{sT3}, s{sT2}, {4*528}
        s_add_u32 s{sT3}, s{sT3}, s{sT1}
        s_add_u32 s{sT3}, s{sT3}, {XB}
        v_bfe_u32 v{T+10}, v0, 5, 1
        v_mul_u32_u24 v{T+10}, 528, v{T+10}
        v_and_b32 v{T+11}, 31, v0
        v_lshl_add_u32 v{T+10}, v{T+11}, 4, v{T+10}
        v_add_u32 v{vStgR}, s{sT3}, v{T+10}
        ''')
    NTO = ' nt' if opts.get('ntown', '0') == '1' else ''
    NTS = ' nt sc1' if opts.get('ntst', '1') == '1' else ''
    fl_ = lambda k: (' ' + opts[k].replace('+', ' ')) if opts.get(k) else ''
    if opts.get('kbs'): NTS = fl_('kbs')
    if opts.get('kbo'): NTO = fl_('kbo')
    GV, GH = fl_('gv'), fl_('gh')
    def own_ins(j, flags, so=sT3):
        return [f'buffer_load_dwordx4 {vr(OWN+8*OS(j)+4*b,4)}, v{[vOut, vOut2][b]}, {sr(S_BASE)}, s{so} offen offset:{2048*b}{flags}' for b in range(2)]
    def own_load(j, flags=None):
        a(f's_mov_b32 s{sT3}, {14336*j}')
        for x in own_ins(j, NTO if flags is None else flags):
            a(x)
    def own01(t):
        a(f'v_subrev_u32 v{t}, {XB}, v{vStgR}')
        for j in range(2):
            for b in range(2):
                a(f'ds_write_b128 v{t}, {vr(OWN+8*OS(j)+4*b,4)} offset:{XB*j+1056*b}')
    def tr_reads():
        return [f'ds_read_b64_tr_b16 {vr(TR+2*c,2)}, v{vStgT} offset:{128*c}' for c in range(4)]
    def toggle():
        a(f'''v_add_u32 v{vStgW}, s{sPar}, v{vStgW}
              v_add_u32 v{vStgT}, s{sPar}, v{vStgT}
              v_subrev_u32 v{vStgR}, s{sPar}, v{vStgR}
              s_sub_u32 s{sPar}, 0, s{sPar}''')
    a(f'''
    v_lshrrev_b32 v{T+3}, 6, v0
    v_readfirstlane_b32 s{sW}, v{T+3}
    s_lshl_b32 s{sT0}, s2, 13
    s_add_u32 s{sT0}, s{sT0}, {WS_CELL - WSO}
    v_lshl_add_u32 v{T+4}, v0, 4, s{sT0}
    s_mul_i32 s{sNode0}, s2, 98
    s_mov_b32 s63, 0
    ''')
    a('s_waitcnt lgkmcnt(0)')
    stamp()
    srd(a, S_WS, 24, 25, WS_OVF + OVF_BYTES - WSO, WSO)
    a(f'''
    buffer_load_dwordx4 {vr(CE,4)}, v{T+4}, {sr(S_WS)}, 0 offen
    v_and_b32 v{tL}, 63, v0
    v_lshlrev_b32 v{CE+7}, 4, v{tL}
    v_lshlrev_b32 v{CE+8}, 3, v{tL}
    s_mul_i32 s{sW2}, s{sW}, 12288
    s_mul_i32 s{sT2}, s{sW}, 1536
    s_add_u32 s{sT2}, s{sT2}, {WS_WRP - WSO}
    ''')
    srd(a, S_BASE, 4, 5, 25600000)
    srd(a, S_SV, 4, 5, 25600000)
    srd(a, S_OUT, 20, 21, 25600000)
    srd(a, S_H, 24, 25, 6400000, WS_H)
    srd(a, S_POS, 6, 7, 150000)
    VM = []
    def wbatch(first):
        lab = 'kb_wb%d' % first
        a(f'''s_bitcmp{1 if not first else 0}_b32 s2, {opts.get('rotbit', 3)}
              s_cbranch_scc1 {lab}_1''')
        for h in range(2):
            a(f's_add_u32 s{sT1}, s{sW2}, {6144*h}')
            for i in range(6):
                if i == 4:
                    a(f's_add_u32 s{sT1}, s{sT1}, 4096')
                a(f'buffer_load_dwordx4 {vr(W2+4*(6*h+i),4)}, v{CE+7}, {sr(S_WS)}, s{sT1} offen offset:{1024*(i%4)}')
            if h == 0:
                a(f'''s_branch {lab}_e
                      {lab}_1:''')
        a(f'{lab}_e:')
        VM.extend(['w'] * 6)
    def wr_load():
        for i in range(3):
            a(f'buffer_load_dwordx2 {vr(WR+2*i,2)}, v{CE+8}, {sr(S_WS)}, s{sT2} offen offset:{512*i}')
        VM.extend(['w'] * 3)
    SRC3 = V + 12
    def dma_addr(srcb):
        o = []
        if opts.get('fakesrc'):
            o.append(f'v_and_b32 v{srcb}, {opts["fakesrc"]}, v{srcb}')
        o += [f'v_lshl_add_u32 v{vOH}, v{srcb}, 8, v{vSwzH}', f'v_lshl_add_u32 v{vOV}, v{srcb}, 10, v{vSwzV}']
        return o
    def dma_piece(k):
        if opts.get('nodma'):
            return [f's_mov_b32 m0, s{sDma}']
        if k == 0:
            return [f's_mov_b32 m0, s{sDma}', f'buffer_load_dwordx4 v{vOH}, {sr(S_H)}, 0 offen{GH} lds']
        o = [f's_add_u32 m0, s{sDma}, {1024*k}', f'buffer_load_dwordx4 v{vOV}, {sr(S_SV)}, s{[0, s256, s512, s768][k]} offen{GV} lds']
        if k == 3:
            o += [f's_add_u32 s{sDma}, s{sDma}, 0x8000', f's_cmp_ge_u32 s{sDma}, 0x18000',
                  f's_cselect_b32 s{sT4}, 0x18000, 0', f's_sub_u32 s{sDma}, s{sDma}, s{sT4}']
        return o
    def item_groups(it):
        k, j = it[0], int(it[1])
        if k == 'o':
            g = [[x] for x in own_ins(j, NTO)]
            g[0].insert(0, f's_mov_b32 s{sT3}, {14336*j}')
        else:
            nd = opts.pop('nodma', None)
            g = [dma_piece(q) for q in range(4)]
            if nd:
                opts['nodma'] = nd
            g[0] = dma_addr(SRC3 + j) + g[0]
        return [(it, x) for x in g]
    def emit_items(items):
        for it in items:
            if it == 't':
                a(f'''kb_touch1__kb_t1__{opts.get('tend', 'kb_loopA')}__{sW}:
                      kb_t1:''')
            elif it == 'w0':
                wbatch(0)
            elif it == 'w1':
                wbatch(1)
            elif it == 'wr':
                wr_load()
            else:
                for tag, g in item_groups(it):
                    for x in g:
                        a(x)
                    VM.append(tag)
    def vm_after(tags):
        last = max(i for i, t in enumerate(VM) if t in tags)
        return len(VM) - 1 - last
    P1 = opts.get('p1', 'w0,wr').split(',')
    P2 = opts.get('p2', 'd0,w1').split(',')
    P3 = opts.get('p3', 'o0,o1,d1').split(',')
    NPRE = 1 + max(int(x[1]) for x in P1 + P2 + P3 if x[0] == 'o')
    assert NPRE == 2
    VM.append('cell')
    a(f'''
    v_and_b32 v{T+8}, 7, v0
    v_lshlrev_b32 v{T+8}, 2, v{T+8}
    v_add_u32 v{T+8}, {L_GCNT}, v{T+8}
    v_mov_b32 v{T+9}, 0
    ds_write_b32 v{T+8}, v{T+9}
    s_waitcnt lgkmcnt(0)
    s_barrier
    s_load_dwordx8 s[{FR}:{FR+7}], s[12:13], 0
    ''')
    emit_items(P1)
    out_base()
    a(f'''
    s_mov_b32 s{sMask}, 0xffff0000
    s_mov_b32 s{sMode}, 0
    s_movk_i32 s{s256}, 256
    s_movk_i32 s{s512}, 512
    s_movk_i32 s{s768}, 768
    s_mov_b32 s{sK8}, 0x80008000
    s_mov_b32 s{sC8}, 0x8000
    s_mul_i32 s{sNeg}, s2, {-147*98}
    s_mov_b32 s{sGC}, {L_GCNT}
    s_mov_b32 s{sTM}, {L_TMP}
    v_mov_b32 v{vOne}, 0x3f803f80
    s_lshr_b32 s{sT0}, s{sW}, 1
    s_lshl_b32 s{sT1}, s{sT0}, 2
    v_add_u32 v{T+3}, s{sT1}, v{tG}
    v_xor_b32 v{T+3}, v{T+3}, v{tN}
    v_lshlrev_b32 v{vSwzH}, 4, v{T+3}
    v_and_b32 v{T+3}, 1, v{tG}
    v_lshl_or_b32 v{T+3}, v{T+3}, 1, s{sT1}
    v_xor_b32 v{T+3}, v{T+3}, v{tN}
    v_lshlrev_b32 v{vSwzV}, 4, v{T+3}
    v_and_b32 v{T+5}, 3, v0
    v_lshlrev_b32 v{T+5}, 2, v{T+5}
    v_cmp_ne_u32 s[{GE+2}:{GE+3}], 0, v{T+5}
    ''')
    if opts.get('pret', '0') == '1':
        a(f'''s_mov_b32 s{sOwnN}, 99
              s_cmp_ge_u32 s{sW}, {opts.get('bfrom', 4)}
              s_cbranch_scc1 kb_ownB
              s_branch kb_ownA''')
    a('kb_pret:')
    stamp()
    a(f'''
    s_waitcnt vmcnt({vm_after(['cell'])}) lgkmcnt(0)
    v_and_b32 v{CE+4}, 0xffff, v{CE}
    v_mov_b32_dpp v{CE+4}, v{CE+4} quad_perm:[0,0,0,0] row_mask:0xf bank_mask:0xf
    ''')
    for k in range(7, -1, -1):
        a(f'''s_and_b32 s{FR+2*k+1}, s{FR+k}, s{sMask}
              s_lshl_b32 s{FR+2*k}, s{FR+k}, 16''')
    a(f'''
    v_sub_u32 v{CE+5}, v{CE+4}, v{T+5}
    v_cmp_lt_i32 vcc, 0, v{CE+5}
    s_and_b64 s[{GE}:{GE+1}], vcc, s[{GE+2}:{GE+3}]
    v_cmp_lt_i32 s[{GE+2}:{GE+3}], 16, v{CE+5}
    kb_propose:
    v_mov_b32 v{T+9}, 1
    v_mov_b32 v{CE+6}, 147
    v_and_b32 v{tL}, 63, v0
    v_lshlrev_b32 v{CE+7}, 4, v{tL}
    v_lshlrev_b32 v{CE+8}, 3, v{tL}
    ''')
    stamp()
    def wload(n):
        pass
    def prop(lo, nw):
        for q in range(2):
            a(f'''
            v_lshrrev_b32 v{U+q}, 16, v{CE+lo+q}
            v_mad_u32_u24 v{U+q}, v{U+q}, v{CE+6}, s{sNeg}
            v_lshrrev_b32 v{U+q}, 11, v{U+q}
            v_lshl_add_u32 v{U+4+q}, v{U+q}, 2, s{sGC}
            ''')
        for q in range(2):
            a(f'''s_mov_b64 exec, s[{GE+2*q}:{GE+2*q+1}]
                  ds_add_rtn_u32 v{U+8+q}, v{U+4+q}, v{T+9}''')
        a('s_mov_b64 exec, -1')
        for q in range(2):
            a(f'v_lshl_add_u32 v{U+q}, v{U+q}, 9, s{sTM}')
        wload(nw)
        a('s_waitcnt lgkmcnt(0)')
        for q in range(2):
            a(f'''v_min_u32 v{U+8+q}, 0x7f, v{U+8+q}
                  v_lshl_add_u32 v{U+q}, v{U+8+q}, 2, v{U+q}''')
        for q in range(2):
            a(f'''s_mov_b64 exec, s[{GE+2*q}:{GE+2*q+1}]
                  ds_write_b32 v{U+q}, v{CE+lo+q}''')
        a('s_mov_b64 exec, -1')
    W1N = W2N = W3N = 0
    prop(0, W1N)
    a(f'''
    v_cmp_lt_u32 vcc, 32, v{CE+4}
    s_cbranch_vccz kb_prop_done
    v_cmp_lt_i32 s[{GE}:{GE+1}], 32, v{CE+5}
    v_cmp_lt_i32 s[{GE+2}:{GE+3}], 48, v{CE+5}
    ''')
    prop(2, 0)
    a(f'''
    v_cmp_lt_u32 vcc, 64, v{CE+4}
    v_mov_b32 v{U}, {L_GCNT + 28}
    s_mov_b64 exec, vcc
    ds_add_u32 v{U}, v{T+9}
    s_mov_b64 exec, -1
    kb_prop_done:
    v_mov_b32 v{U}, {L_GCNT}
    s_waitcnt lgkmcnt(0)
    s_barrier
    ds_read_b128 {vr(U+4,4)}, v{U}
    ds_read_b128 {vr(U+8,4)}, v{U} offset:16
    ''')
    wload(W2N)
    tP = T + 3
    a(f'''
    v_and_b32 v{tN}, 15, v0
    v_bfe_u32 v{tG}, v0, 4, 2
    v_lshrrev_b32 v{T+4}, 2, v{tL}
    v_and_b32 v{T+5}, 3, v{tL}
    s_lshl_b32 s{sT0}, s{sW}, 2
    v_add_u32 v{T+6}, s{sT0}, v{T+5}
    v_lshl_add_u32 v{tP}, v{T+4}, 5, v{T+6}
    v_lshl_add_u32 v{T+7}, v{tP}, 2, s{sTM}
    s_waitcnt lgkmcnt(0)
    ''')
    stamp()
    for j in range(8):
        a(f'v_readfirstlane_b32 s{GE+j}, v{U+4+j}')
    sA, sB, sD = sStA, sStB, sStC
    a(f'''
    s_max_u32 s{sA}, s{GE}, s{GE+1}
    s_max_u32 s{sB}, s{GE+2}, s{GE+3}
    s_max_u32 s{sD}, s{GE+4}, s{GE+5}
    s_max_u32 s{sA}, s{sA}, s{GE+6}
    s_max_u32 s{sB}, s{sB}, s{sD}
    s_max_u32 s{sA}, s{sA}, s{sB}
    s_mov_b32 s{sTot}, 0
    ''')
    for j in range(7):
        a(f's_add_u32 s{sTot}, s{sTot}, s{GE+j}')
        if j < 6:
            a(f'''s_lshl_b32 s{sB}, s{GE+j}, 2
                  s_sub_u32 s{sB}, 512, s{sB}
                  v_cmpx_le_u32 vcc, s{sTot}, v{tP}
                  v_add_u32 v{T+7}, s{sB}, v{T+7}''')
        a(f's_mov_b32 s{GE+j}, s{sTot}')
    a(f'''
    s_mov_b64 exec, -1
    ds_read_b32 v{T+8}, v{T+7}
    ''')
    wload(W3N)
    a(f'''
    s_cmp_gt_u32 s{sA}, 128
    s_cselect_b32 s{GE+7}, 1, s{GE+7}
    s_cmp_gt_u32 s{sTot}, {LISTCAP}
    s_cselect_b32 s{GE+7}, 1, s{GE+7}
    s_cmp_lg_u32 s{GE+7}, 0
    s_cbranch_scc1 kb_go_slow
    s_cmp_eq_u32 s{sTot}, 0
    s_cbranch_scc1 kb_empty
    ''')
    a(f'''
    s_lshl_b32 s{sT0}, s{GE+1}, 9
    s_or_b32 s{sGP}, s{GE}, s{sT0}
    s_lshl_b32 s{sT0}, s{GE+2}, 18
    s_or_b32 s{sGP}, s{sGP}, s{sT0}
    s_lshl_b32 s{sT0}, s{GE+3}, 27
    s_or_b32 s{sGP}, s{sGP}, s{sT0}
    s_lshr_b32 s{sGP+1}, s{GE+3}, 5
    s_lshl_b32 s{sT0}, s{GE+4}, 4
    s_or_b32 s{sGP+1}, s{sGP+1}, s{sT0}
    s_lshl_b32 s{sT0}, s{GE+5}, 13
    s_or_b32 s{sGP+1}, s{sGP+1}, s{sT0}
    s_lshl_b32 s{sT0}, s{GE+6}, 22
    s_or_b32 s{sGP+1}, s{sGP+1}, s{sT0}
    v_cmp_gt_u32 vcc, s{sTot}, v{tP}
    v_mov_b32 v{T+9}, {PADSRC}
    v_mov_b32 v{T+10}, 0x3fff
    v_lshlrev_b32 v{vBP}, 2, v{tG}
    s_waitcnt lgkmcnt(0)
    v_and_b32 v{T+11}, 0xffff, v{T+8}
    v_lshrrev_b32 v{T+12}, 16, v{T+8}
    v_cndmask_b32 v{vSrc}, v{T+9}, v{T+11}, vcc
    v_cndmask_b32 v{T+13}, v{T+9}, v{T+12}, vcc
    ds_bpermute_b32 v{SRC3}, v{vBP}, v{vSrc}
    ds_bpermute_b32 v{SRC3+1}, v{vBP}, v{vSrc} offset:16
    ds_bpermute_b32 v{vSrcB}, v{vBP}, v{vSrc} offset:32
    v_add_u32 v{vBP}, 48, v{vBP}
    v_mul_u32_u24 v{T+14}, 6, v{vSrc}
    v_and_b32 v{T+14}, -4, v{T+14}
    v_mul_u32_u24 v{T+15}, 6, v{T+13}
    v_and_b32 v{T+15}, -4, v{T+15}
    ''')
    wload(15)
    a(f'''
    buffer_load_dwordx2 {vr(T+16,2)}, v{T+14}, {sr(S_POS)}, 0 offen
    buffer_load_dwordx2 {vr(T+18,2)}, v{T+15}, {sr(S_POS)}, 0 offen
    v_subrev_u32 v{T+12}, s{sNode0}, v{T+12}
    v_cndmask_b32 v{T+10}, v{T+10}, v{T+12}, vcc
    v_lshlrev_b32 v{T+10}, 1, v{T+10}
    s_lshl_b32 s{sDma}, s{sW}, 12
    s_waitcnt lgkmcnt(1)
    ''')
    VM.extend(['pos', 'pos'])
    a(f'''s_mul_i32 s{sT2}, s{sW}, 1536
          s_add_u32 s{sT2}, s{sT2}, {WS_WRP - WSO}''')
    emit_items(P2)
    if opts.get('p2bar', '1') == '1':
        a('s_barrier')
    stamp()
    a(f'''
    v_lshrrev_b32 v{U}, 2, v{tN}
    v_lshlrev_b32 v{U}, 13, v{U}
    v_and_b32 v{U+1}, 3, v{tN}
    v_lshl_or_b32 v{U}, v{U+1}, 8, v{U}
    v_xor_b32 v{U+1}, v{tG}, v{tN}
    ''')
    for s in range(4):
        a(f'''v_xor_b32 v{U+2}, {4*s}, v{U+1}
              v_lshl_or_b32 v{vAH+s}, v{U+2}, 4, v{U}''')
    a(f'''
    v_bfe_u32 v{U}, v{tL}, 3, 1
    v_lshl_or_b32 v{U+1}, v{tG}, 1, v{U}
    v_xor_b32 v{U+1}, s{sW}, v{U+1}
    v_lshlrev_b32 v{U+1}, 5, v{U+1}
    v_lshl_or_b32 v{U+1}, v{U}, 8, v{U+1}
    v_lshl_or_b32 v{U+1}, v{tG}, 13, v{U+1}
    v_lshl_or_b32 v{U+1}, v{T+5}, 3, v{U+1}
    v_and_b32 v{U+2}, 4, v{tL}
    v_xor_b32 v{U+2}, 4, v{U+2}
    v_lshl_or_b32 v{vAV}, v{U+2}, 18, v{U+1}
    v_lshlrev_b32 v{vAR}, 3, v{tL}
    v_add_u32 v{vAR}, {L_RBF}, v{vAR}
    v_lshlrev_b32 v{vAS}, 5, v{tG}
    v_add_u32 v{vAS}, {L_META}, v{vAS}
    v_lshlrev_b32 v{vKey}, 1, v{tN}
    v_lshl_or_b32 v{vKey}, v{vKey}, 16, v{vKey}
    ''')
    tWR, tWS, tWD = T + 20, T + 21, T + 22
    a(f'''
    s_and_b32 s{sT0}, s{sW}, 1
    s_lshl_b32 s{sT2}, s{sT0}, 3
    s_lshl_b32 s{sT0}, s{sT0}, 9
    s_lshr_b32 s{sT1}, s{sW}, 1
    s_lshl_b32 s{sT1}, s{sT1}, 5
    s_add_u32 s{sT2}, s{sT2}, s{sT1}
    s_add_u32 s{sT2}, s{sT2}, {L_META + 384}
    s_add_u32 s{sT0}, s{sT0}, s{sT1}
    s_add_u32 s{sT0}, s{sT0}, {L_RBF}
    v_lshlrev_b32 v{tWR}, 10, v{T+4}
    v_lshl_add_u32 v{tWR}, v{T+5}, 3, v{tWR}
    v_add_u32 v{tWR}, s{sT0}, v{tWR}
    v_lshlrev_b32 v{tWS}, 9, v{T+4}
    v_lshl_add_u32 v{tWD}, v{T+5}, 1, v{tWS}
    v_add_u32 v{tWD}, s{sT2}, v{tWD}
    v_lshl_add_u32 v{tWS}, v{T+6}, 2, v{tWS}
    v_add_u32 v{tWS}, {L_META}, v{tWS}
    ds_write_b16 v{tWD}, v{T+10}
    v_lshlrev_b32 v{T+14}, 4, v{vSrc}
    v_lshlrev_b32 v{T+15}, 4, v{T+13}
    s_waitcnt vmcnt({vm_after(['pos'])})
    ''')
    stamp()
    real_a = a
    p3q = []
    for it in P3:
        p3q += item_groups(it)
    cnt = [0]
    GAP = int(opts.get('p3gap', 8))
    def a(txt):
        for ln in txt.split('\n'):
            ln = ln.strip()
            if not ln:
                continue
            real_a(ln)
            cnt[0] += 1
            if cnt[0] % GAP == 0 and p3q:
                tag, g = p3q.pop(0)
                for x in g:
                    real_a(x)
                VM.append(tag)
    x, y, z = U, U + 1, U + 2
    a(f'''
    v_alignbit_b32 v{U+8}, v{T+17}, v{T+16}, v{T+14}
    v_lshrrev_b32 v{U+9}, v{T+14}, v{T+17}
    v_alignbit_b32 v{U+10}, v{T+19}, v{T+18}, v{T+15}
    v_lshrrev_b32 v{U+11}, v{T+15}, v{T+19}
    v_lshlrev_b32 v{x}, 16, v{U+8}
    v_and_b32 v{y}, {M}, v{U+8}
    v_lshlrev_b32 v{z}, 16, v{U+9}
    v_lshlrev_b32 v{U+3}, 16, v{U+10}
    v_and_b32 v{U+4}, {M}, v{U+10}
    v_lshlrev_b32 v{U+5}, 16, v{U+11}
    v_sub_f32 v{x}, v{x}, v{U+3}
    v_sub_f32 v{y}, v{y}, v{U+4}
    v_sub_f32 v{z}, v{z}, v{U+5}
    v_cvt_pk_bf16_f32 v{x}, 0, v{x}
    v_cvt_pk_bf16_f32 v{y}, 0, v{y}
    v_cvt_pk_bf16_f32 v{z}, 0, v{z}
    v_mul_f32 v{U+3}, v{x}, v{x}
    v_mul_f32 v{U+4}, v{y}, v{y}
    v_mul_f32 v{U+5}, v{z}, v{z}
    v_cvt_pk_bf16_f32 v{U+3}, 0, v{U+3}
    v_cvt_pk_bf16_f32 v{U+4}, 0, v{U+4}
    v_cvt_pk_bf16_f32 v{U+5}, 0, v{U+5}
    v_add_f32 v{U+3}, v{U+3}, v{U+4}
    v_add_f32 v{U+3}, v{U+3}, v{U+5}
    v_cvt_pk_bf16_f32 v{U+3}, 0, v{U+3}
    v_add_f32 v{U+3}, 0x322bcc77, v{U+3}
    v_cvt_pk_bf16_f32 v{U+3}, 0, v{U+3}
    v_sqrt_f32 v{U+3}, v{U+3}
    v_cvt_pk_bf16_f32 v{U+3}, 0, v{U+3}
    v_rcp_f32 v{U+4}, v{U+3}
    ''')
    d, rd = U + 3, U + 4
    X = U + 12
    P = T + 24
    for k in range(16):
        a(f'v_mul_f32 v{X+k}, s{FR+k}, v{d}')
    a(f'''
    v_mul_f32 v{U+5}, 0x40490fdb, v{d}
    v_mul_f32 v{x}, v{x}, v{rd}
    v_cvt_pk_bf16_f32 v{U+5}, 0, v{U+5}
    v_mul_f32 v{y}, v{y}, v{rd}
    v_mul_f32 v{U+5}, 0x3e4ccccd, v{U+5}
    v_mul_f32 v{z}, v{z}, v{rd}
    v_cvt_pk_bf16_f32 v{U+5}, 0, v{U+5}
    v_cvt_pk_bf16_f32 v{x}, 0, v{x}
    v_mul_f32 v{U+5}, 0.15915494, v{U+5}
    v_cvt_pk_bf16_f32 v{y}, 0, v{y}
    v_cos_f32 v{U+5}, v{U+5}
    v_cvt_pk_bf16_f32 v{z}, 0, v{z}
    v_cvt_pk_bf16_f32 v{U+5}, 0, v{U+5}
    ds_write_b32 v{tWS}, v{x}
    v_add_f32 v{U+5}, 1.0, v{U+5}
    ds_write_b32 v{tWS}, v{y} offset:128
    v_cvt_pk_bf16_f32 v{U+5}, 0, v{U+5}
    ds_write_b32 v{tWS}, v{z} offset:256
    v_mul_f32 v{U+5}, 0.5, v{U+5}
    v_cmp_gt_f32 vcc, 0x40a00000, v{d}
    v_cndmask_b32 v{U+5}, 0, v{U+5}, vcc
    v_mul_f32 v{rd}, v{rd}, v{U+5}
    ''')
    for k in range(16):
        a(f'v_cvt_pk_bf16_f32 v{X+k}, 0, v{X+k}')
    for k in range(16):
        a(f'v_mul_f32 v{X+k}, 0.15915494, v{X+k}')
    for k in range(16):
        a(f'v_sin_f32 v{X+k}, v{X+k}')
    for k in range(16):
        a(f'v_mul_f32 v{X+k}, v{X+k}, v{rd}')
    for k in range(8):
        a(f'v_cvt_pk_bf16_f32 v{P+k}, v{X+2*k}, v{X+2*k+1}')
    for g in range(4):
        a(f'ds_write_b64 v{tWR}, {vr(P+2*g,2)} offset:{128*g}')
    a = real_a
    for tag, g in p3q:
        for x in g:
            a(x)
        VM.append(tag)
    def acc_zero():
        for i in range(16):
            a(f'v_mov_b32 v{ACC+i}, 0')
    nA = vm_after(['d1'])
    assert nA % 2 == 0
    tail_blocks = []
    a(f'''
    s_mov_b32 s{sG}, 0
    s_and_b32 s{sGend}, s{sGP}, 0x1ff
    s_mov_b32 s{sTe}, 32
    s_mov_b32 s{sOwO}, {14336*(NPRE-1)}
    s_mov_b32 s{sStO}, 0x40000000
    s_mov_b32 s{sX}, 0x8000
    s_mov_b32 s{sSl}, 0
    s_mov_b32 s{sPar}, {XB}
    s_mov_b32 s{sOk}, 0
    s_mov_b32 s{sOwnN}, {NPRE}
    s_cmp_lg_u32 s{sMode}, 0
    s_cbranch_scc1 kb_slow_own
    ''')
    if vm_after(['o0', 'o1']) < vm_after(['pos']):
        a(f's_waitcnt vmcnt({vm_after(["o0", "o1"])})')
    own01(T)
    a('kb_slow_ownr:')
    def blk_so():
        a('''kb_slow_own:
             s_waitcnt vmcnt(0)''')
        for j in range(2):
            own_load(j, ' sc0 sc1')
        a('s_waitcnt vmcnt(0)')
        own01(T)
        a('s_waitcnt lgkmcnt(0)')
        for j in range(2, 7):
            own_load(j, ' sc0 sc1')
        a(f'''s_mov_b32 s{sOwnN}, 7
              s_mov_b32 s{sOk}, 0x7fffffff
              s_waitcnt vmcnt(0)
              s_branch kb_slow_ownr''')
    tail_blocks.append(blk_so)
    stamp()
    acc_zero()
    a(f'''
    s_cmp_ge_u32 s{sW}, {opts.get('bfrom', 4)}
    s_waitcnt vmcnt({vm_after(['d0', 'w'])}) lgkmcnt(0)
    s_cbranch_scc1 kb_B_entry
    ''')
    PG = int(opts.get('pg', 2)); PS = int(opts.get('ps', 3))
    PMD = {'A': int(opts.get('pma', 0)), 'B': int(opts.get('pmb', 1))}
    SMEND = opts.get('smend', '1') == '1'

    class LQ:
        def __init__(self):
            self.q = []
        def issue(self, tag, txt):
            if len(self.q) >= 15:
                a('s_waitcnt lgkmcnt(8)'); self.q = self.q[-8:]
            a(txt); self.q.append(tag)
        def need(self, *tags):
            idx = [i for i, t in enumerate(self.q) if t in tags]
            if not idx:
                return
            last = max(idx)
            a(f's_waitcnt lgkmcnt({len(self.q)-1-last})')
            self.q = self.q[last + 1:]
    def gemm(t, s):
        H = HA if t == 0 else HB
        out = []
        for b in range(3):
            c = '0' if s == 0 else vr(PHI[t] + 4 * b, 4)
            out.append(f'v_mfma_f32_16x16x32_bf16 {vr(PHI[t]+4*b,4)}, {vr(H+4*s,4)}, {vr(W2+16*b+4*s,4)}, {c}')
        return out
    def wf(t):
        return [f'v_mfma_f32_16x16x16_bf16 {vr(WRD+4*b,4)}, {vr(RBF+2*t,2)}, {vr(WR+2*b,2)}, 0' for b in range(3)]
    def sm(k, z=False):
        a(f'v_mfma_f32_16x16x32_bf16 {vr(ACC+4*k,4)}, {vr(MSG[k],4)}, {vr(SEL,4)}, {"0" if z else vr(ACC+4*k,4)}')
    def selb():
        for i in range(4):
            a(f'v_xor_b32 v{SEL+i}, v{DL+i}, v{vKey}')
        for i in range(4):
            a(f'v_pk_mad_i16 v{SEL+i}, v{SEL+i}, s{sK8}, v{vOne} clamp')
    def vreads(t):
        return [('V%d' % t, f'ds_read_b64_tr_b16 {vr(V+12*t+4*c+2*p,2)}, v{vAV} offset:{4096*t+1024*(c+1)+512*p}') for c in range(3) for p in range(2)]
    def issue_head(X_, lq):
        if X_ == 'B0':
            a(f'''s_cmp_ge_u32 s{sOwnN}, 7
                  s_cbranch_scc1 kb_ownrB0
                  s_add_u32 s{sOwnN}, s{sOwnN}, 1
                  s_add_u32 s{sOwO}, s{sOwO}, 14336''')
            for x in own_ins(NPRE, NTO, sOwO):
                a(x)
            a('kb_ownrB0:')
        else:
            a(f'''
            s_cmp_lt_u32 s{sOwnN}, 7
            s_cbranch_scc1 kb_own{X_}
            kb_ownr{X_}:
            ''')
        for x in dma_addr(vSrcB):
            a(x)
        p0 = dma_piece(0)
        a(p0[0])
        lq.issue('bp', f'ds_bpermute_b32 v{vSrcB}, v{vBP}, v{vSrc}')
        for x in p0[1:]:
            a(x)
        a(f'v_add_u32 v{vBP}, 16, v{vBP}')
    def own_blk(X_):
        a(f'''kb_own{X_}:
              s_add_u32 s{sOwnN}, s{sOwnN}, 1
              s_add_u32 s{sOwO}, s{sOwO}, 14336''')
        for j in range(NPRE + (X_ == 'B'), 7):
            a(f'''s_cmp_lg_u32 s{sOwnN}, {j+1}
                  s_cbranch_scc1 kb_own{X_}_{j+1}''')
            for x in own_ins(j, NTO, sOwO):
                a(x)
            a(f'''s_branch kb_ownr{X_}
                  kb_own{X_}_{j+1}:''')
        a('s_branch kb_pret')
    p0_, p1_ = PHI
    DSL = [int(x) for x in opts.get('dsl', '6,13,20').split(',')]
    def G(X_, with_issue, lq):
        for s in range(4):
            lq.issue('HA%d' % s, f'ds_read_b128 {vr(HA+4*s,4)}, v{vAH+s}')
        lq.issue('B0', f'ds_read_b64 {vr(RBF,2)}, v{vAR}')
        if with_issue:
            issue_head(X_, lq)
        mf = []
        for s in range(4):
            mf += [(m, 'HA%d' % s) for m in gemm(0, s)]
        mf += [(m, 'B0') for m in wf(0)]
        for s in range(4):
            mf += [(m, 'B1') for m in gemm(1, s)]
        mf += [(m, 'B1') for m in wf(1)]
        ls = {i: [] for i in range(30)}
        for s in range(4):
            ls[s].append(('HB%d' % s, f'ds_read_b128 {vr(HB+4*s,4)}, v{vAH+s} offset:4096'))
        ls[4].append(('B1', f'ds_read_b64 {vr(RBF+2,2)}, v{vAR} offset:512'))
        for i, x in enumerate(vreads(0)):
            ls[5 + i].append(x)
        for c in range(3):
            ls[12 + c].append(('R0', f'ds_read_b128 {vr(RR[0]+4*c,4)}, v{vAS} offset:{128*c}'))
        for i, x in enumerate(vreads(1)):
            ls[15 + i].append(x)
        ls[21].append(('DL', f'ds_read_b128 {vr(DL,4)}, v{vAS} offset:384'))
        for c in range(3):
            ls[24 + c].append(('R1', f'ds_read_b128 {vr(RR[1]+4*c,4)}, v{vAS} offset:{128*c+16}'))
        vs = {i: [] for i in range(30)}
        for s in range(4):
            vs[4 + s].append(f'v_add_u32 v{vAH+s}, s{sX}, v{vAH+s}')
        vs[8].append(f'v_add_u32 v{vAR}, 1024, v{vAR}')
        late = [f'v_mul_f32 v{p0_+i}, v{p0_+i}, v{WRD+i}' for i in (8, 9, 10, 11, 0, 1, 2, 3, 4, 5, 6, 7)]
        late += [f'v_cvt_pk_bf16_f32 v{MSG[0]}, v{p0_}, v{p0_+1}', f'v_cvt_pk_bf16_f32 v{MSG[0]+1}, v{p0_+2}, v{p0_+3}']
        late += [('R0', f'v_mul_f32 v{RR[0]+4*c+i}, v{RR[0]+4*c+i}, v{p0_+8+i}') for c in range(3) for i in range(4)]
        sl = 17
        while late:
            vs[sl] += late[:2]; late = late[2:]; sl += 1
        assert sl <= 30
        vs[21].append(f'v_add_u32 v{vAV}, s{sX}, v{vAV}')
        vs[27].append(f'v_add_u32 v{vAS}, 512, v{vAS}')
        vs[22].append(f's_add_u32 s{sSl}, s{sSl}, s{sX}')
        vs[23].append(f's_cmp_eq_u32 s{sSl}, 0x10000')
        vs[23].append(f's_cselect_b32 s{sX}, 0xffff0000, s{sC8}')
        for i, (m, tag) in enumerate(mf):
            lq.need(tag)
            pc = None
            if with_issue and i in DSL:
                pc = dma_piece(1 + DSL.index(i)); a(pc[0])
            a(m)
            if pc:
                for x in pc[1:]:
                    a(x)
            for tag2, x in ls[i]:
                lq.issue(tag2, x)
            for x in vs[i]:
                if isinstance(x, tuple):
                    lq.need(x[0]); x = x[1]
                a(x)
    MSL = [int(x) for x in opts.get('msl', '12,28,44').split(',')]
    def Mphase(X_, lq, with_dma):
        p0, p1 = PHI
        cnt = [0]
        def v(x):
            if with_dma and cnt[0] in MSL:
                pc = dma_piece(1 + MSL.index(cnt[0]))
                a(pc[0]); a(x)
                for y in pc[1:]:
                    a(y)
            else:
                a(x)
            cnt[0] += 1
        lq.issue('DLT', f'ds_read_b128 {vr(DLT,4)}, v{vStgR}')
        lq.issue('DLT', f'ds_read_b128 {vr(DLT+4,4)}, v{vStgR} offset:1056')
        lq.need('V0', 'DL')
        for i in range(4):
            v(f'v_xor_b32 v{SEL+i}, v{DL+i}, v{vKey}')
        for i in range(12):
            v(f'v_fmac_f32 v{RR[0]+i}, v{V+i}, v{p0+4+i%4}')
        for i in range(4):
            v(f'v_pk_mad_i16 v{SEL+i}, v{SEL+i}, s{sK8}, v{vOne} clamp')
        for i in range(12):
            v(f'v_mul_f32 v{p1+i}, v{p1+i}, v{WRD+i}')
        v(f'v_cvt_pk_bf16_f32 v{MSG[0]+2}, v{p1}, v{p1+1}')
        v(f'v_cvt_pk_bf16_f32 v{MSG[0]+3}, v{p1+2}, v{p1+3}')
        lq.need('V1', 'R1')
        for x in tr_reads():
            lq.issue('DLT', x)
        for c in range(3):
            for i in range(4):
                v(f'v_mul_f32 v{RR[1]+4*c+i}, v{RR[1]+4*c+i}, v{p1+8+i}')
            if not SMEND:
                sm(c)
            for i in range(4):
                v(f'v_fmac_f32 v{RR[1]+4*c+i}, v{V+12+4*c+i}, v{p1+4+i}')
            for t in range(2):
                for h in range(2):
                    v(f'v_cvt_pk_bf16_f32 v{MSG[1+c]+2*t+h}, v{RR[t]+4*c+2*h}, v{RR[t]+4*c+2*h+1}')
        if SMEND:
            a(f's_setprio {PS}')
            for c in range(3):
                sm(c)
        sm(3)
        a(f's_setprio {PMD[X_]}')
        lq.need('DLT')
        assert cnt[0] > max(MSL)
    ST = PHI[0]
    def stores():
        for h in range(2):
            a(f'buffer_store_dwordx4 {vr(DLT+4*h,4)}, v{[vOut, vOut2][h]}, {sr(S_OUT)}, s{sStO} offen offset:{2048*h}{NTS}')
    OT = V + 8
    def service(L, reads, last=False):
        if reads:
            a(f'''ds_read_b128 {vr(DLT,4)}, v{vStgR}
                  ds_read_b128 {vr(DLT+4,4)}, v{vStgR} offset:1056''')
            if not last:
                for x in tr_reads():
                    a(x)
            a('s_waitcnt lgkmcnt(0)')
        stores()
        if last:
            return
        if not reads:
            a(f'''s_bitcmp1_b32 s{sStO}, 30
                  s_cbranch_scc1 kb_segend{L[1]}''')
        a(f'''
        s_sub_u32 s{sT1}, s{sG}, 8
        s_min_u32 s{sT1}, s{sT1}, 32
        s_lshl_b32 s{sT0}, s{sT1}, 2
        s_add_u32 s{sT0}, s{sT0}, 32
        s_cmp_gt_u32 s{sT0}, s{sOk}
        s_cbranch_scc1 kb_fb{L}
        kb_fbr{L}:
        s_set_gpr_idx_on s{sT1}, 0x1
        s_mov_b32 s{sStO}, 0x40000000
        s_waitcnt vmcnt(12)
        ''')
        for i in range(8):
            a(f'v_mov_b32 v{OT+i}, v{OWN+i}')
        a('s_set_gpr_idx_off')
        for b in range(2):
            a(f'ds_write_b128 v{vStgR}, {vr(OT+4*b,4)} offset:{1056*b}')
        def blk():
            a(f'''kb_fb{L}:
                  s_cmp_ge_u32 s{sOwnN}, 7
                  s_cbranch_scc1 kb_fb2{L}''')
            for j in range(NPRE, 7):
                own_load(j)
            a(f'''kb_fb2{L}:
                  s_mov_b32 s{sOwnN}, 7
                  s_mov_b32 s{sOk}, 0x7fffffff
                  s_waitcnt vmcnt(0)
                  s_branch kb_fbr{L}''')
        tail_blocks.append(blk)
    PF = int(opts.get('pf', 3))
    def Sflush(X_):
        service('r' + X_, False)
        a(f'''
        kb_segend{X_}:
        s_cmp_gt_u32 s{sGend}, s{sTe}
        s_cbranch_scc1 kb_next{X_}
        kb_flush{X_}:
        s_bitcmp0_b32 s{sStO}, 30
        s_cbranch_scc1 kb_extra{X_}
        kb_extrar{X_}:
        s_setprio {PF}
        ''')
        for c in range(4):
            a(f'v_mfma_f32_16x16x16_bf16 {vr(ACC+4*c,4)}, {vr(TR+2*c,2)}, {vr(IDN,2)}, {vr(ACC+4*c,4)}')
        a(f'''
        v_add_u32 v{vKey}, 0x001c001c, v{vKey}
        s_mul_i32 s{sStO}, s{sG}, {0x40000000 // 8 if opts.get('nostore') else 1792}
        s_add_u32 s{sG}, s{sG}, 8
        s_lshr_b64 s[{sGP}:{sGP+1}], s[{sGP}:{sGP+1}], 9
        s_mov_b32 s{sGst}, s{sGend}
        s_and_b32 s{sGend}, s{sGP}, 0x1ff
        ''')
        if opts.get('nostore'):
            a(f's_mov_b32 s{sStO}, 0x20000000')
        selb()
        for i in range(8):
            a(f'v_cvt_pk_bf16_f32 v{ST+i}, v{ACC+2*i}, v{ACC+2*i+1}')
            if i & 1:
                a(f'ds_write_b64 v{vStgW}, {vr(ST+i-1,2)} offset:{64*(i-1)}')
        a(f'''
        s_cmp_eq_u32 s{sG}, 56
        s_cbranch_scc1 kb_fin{X_}
        ''')
        for k in range(4):
            sm(k, True)
        toggle()
        a(f'''
        s_setprio {PMD[X_]}
        s_cmp_le_u32 s{sGend}, s{sTe}
        s_cbranch_scc1 kb_extra{X_}
        kb_next{X_}:
        s_max_u32 s{sOk}, s{sOk}, s{sTe}
        s_add_u32 s{sTe}, s{sTe}, 32
        ''')
    def end_blks(X_):
        a(f'''kb_fin{X_}:
              v_subrev_u32 v{vStgR}, s{sPar}, v{vStgR}
              s_waitcnt lgkmcnt(0)
              s_barrier''')
        service('f' + X_, True, True)
        a(f'v_add_u32 v{vStgR}, s{sPar}, v{vStgR}')
        if X_ == 'A':
            a('s_barrier')
        a('s_branch kb_done')
        a(f'''kb_extra{X_}:
              s_waitcnt lgkmcnt(0)
              s_barrier''')
        service('x' + X_, True)
        a(f's_branch kb_extrar{X_}')
        own_blk(X_)
    a('kb_loopA:')
    stamp()
    a(f'''s_setprio {PG}
          s_barrier''')
    stamp()
    lq = LQ()
    G('A', True, lq)
    a(f's_setprio {PMD["A"]}')
    fstamp()
    Mphase('A', lq, False)
    assert not lq.q
    fstamp()
    Sflush('A')
    fstamp()
    a('''s_waitcnt vmcnt(8) lgkmcnt(0)
         s_branch kb_loopA''')
    end_blks('A')
    a('''kb_B_entry:
         s_barrier''')
    lq = LQ()
    issue_head('B0', lq)
    for k in range(1, 4):
        for x in dma_piece(k):
            a(x)
    stores()
    a('kb_loopB:')
    a(f's_setprio {PG}')
    fstamp()
    assert lq.q == ['bp']
    G('B', False, lq)
    a(f's_setprio {PMD["B"]}')
    fstamp()
    lq.need('V1')
    a(f's_max_u32 s{sOk}, s{sOk}, s{sTe}')
    a('s_waitcnt vmcnt(8)')
    stamp()
    a('s_barrier')
    stamp()
    issue_head('B', lq)
    fstamp()
    Mphase('B', lq, True)
    assert not lq.q
    fstamp()
    Sflush('B')
    a('s_branch kb_loopB')
    end_blks('B')
    k_ = 0
    while k_ < len(tail_blocks):
        tail_blocks[k_](); k_ += 1
    a(f'''
    kb_go_slow:
    s_mov_b32 s{sMode}, 1
    s_mov_b32 s{sI}, 0
    s_mov_b32 s{sQ}, 0
    s_mov_b32 s{sC}, -1
    s_mov_b32 s{sLen}, 0
    s_mov_b32 s{sBase}, 0
    s_branch kb_copy
    kb_empty:
    s_cmp_lg_u32 s{sMode}, 0
    s_cbranch_scc1 kb_done
    kb_copy:
    s_mov_b64 s[{sGP}:{sGP+1}], 0
    s_mov_b32 s{sG}, 0
    s_mov_b32 s{sGend}, 0
    s_mov_b32 s{sTot}, 0
    s_mov_b32 s{sStO}, 0x40000000
    s_mov_b32 s{sTe}, 32
    s_mov_b32 s{sOwnN}, 7
    s_mov_b32 s{sOk}, 0x7fffffff
    ''')
    for j in range(2):
        own_load(j)
    a('s_waitcnt vmcnt(0)')
    own01(T)
    a('s_waitcnt lgkmcnt(0)')
    for j in range(2, 7):
        own_load(j)
    a(f'''s_mov_b32 s{sPar}, {XB}
          s_barrier''')
    for i in range(4):
        for m in MSG:
            a(f'v_mov_b32 v{m+i}, 0')
        a(f'v_mov_b32 v{DL+i}, 0')
    a(f'v_mov_b32 v{vKey}, 0')
    for x in tr_reads():
        a(x)
    acc_zero()
    a('s_waitcnt vmcnt(0) lgkmcnt(0)')
    a(f'''
    s_branch kb_flushA
    kb_done:
    ''')
    if STAMP:
        stamp()
        a('s_waitcnt vmcnt(0)')
        stamp()
        srd(a, S_POS, 24, 25, 0x100000, 0x1000000)
        a(f'''v_lshlrev_b32 v{T}, 2, v0
              s_lshl_b32 s{sT0}, s2, 11
              v_add_u32 v{T}, s{sT0}, v{T}
              buffer_store_dword v{vStamp}, v{T}, {sr(S_POS)}, 0 offen''')
    a(f'''
    s_waitcnt vmcnt(2)
    s_cmp_eq_u32 s{sMode}, 0
    s_cbranch_scc1 kb_exit
    s_waitcnt vmcnt(0) lgkmcnt(0)
    s_barrier
    v_and_b32 v{T+8}, 7, v0
    v_lshlrev_b32 v{T+8}, 2, v{T+8}
    v_add_u32 v{T+8}, {L_GCNT}, v{T+8}
    v_mov_b32 v{T+9}, 0
    ds_write_b32 v{T+8}, v{T+9}
    s_mov_b32 s{S_BASE}, s20
    s_mov_b32 s{S_BASE+1}, s21
    s_cmp_ge_u32 s{sI}, 4
    s_cbranch_scc1 kb_mode2
    s_lshl_b32 s{sT0}, s2, 13
    s_add_u32 s{sT0}, s{sT0}, {WS_CELL - WSO}
    v_lshl_add_u32 v{T+4}, v0, 4, s{sT0}
    v_and_b32 v{T+6}, -64, v{T+4}
    s_lshl_b32 s{sT1}, s{sI}, 2
    buffer_load_dword v{CE+4}, v{T+6}, {sr(S_WS)}, 0 offen
    buffer_load_dword v{CE}, v{T+4}, {sr(S_WS)}, s{sT1} offen
    v_lshrrev_b32 v{T+3}, 7, v0
    v_cmp_eq_u32 s[{GE}:{GE+1}], s{sQ}, v{T+3}
    v_and_b32 v{T+5}, 3, v0
    v_add_u32 v{T+5}, s{sT1}, v{T+5}
    v_lshlrev_b32 v{T+5}, 2, v{T+5}
    v_cmp_ne_u32 vcc, 0, v{T+5}
    s_and_b64 s[{GE}:{GE+1}], vcc, s[{GE}:{GE+1}]
    s_waitcnt vmcnt(0)
    v_and_b32 v{CE+4}, 0xffff, v{CE+4}
    v_cmp_lt_u32 vcc, v{T+5}, v{CE+4}
    s_and_b64 s[{GE}:{GE+1}], vcc, s[{GE}:{GE+1}]
    s_add_u32 s{sQ}, s{sQ}, 1
    s_lshr_b32 s{sT0}, s{sQ}, 2
    s_add_u32 s{sI}, s{sI}, s{sT0}
    s_and_b32 s{sQ}, s{sQ}, 3
    s_branch kb_round
    kb_mode2:
    s_cmp_lt_u32 s{sBase}, s{sLen}
    s_cbranch_scc1 kb_m2_go
    s_add_u32 s{sC}, s{sC}, 1
    s_cmp_ge_u32 s{sC}, {NCHUNK}
    s_cbranch_scc1 kb_exit
    s_lshl_b32 s{sT0}, s2, 13
    s_lshl_b32 s{sT1}, s{sC}, 6
    s_add_u32 s{sT0}, s{sT0}, s{sT1}
    s_add_u32 s{sT0}, s{sT0}, {WS_CELL}
    s_load_dword s{sT1}, s[24:25], s{sT0}
    s_waitcnt lgkmcnt(0)
    s_and_b32 s{sT2}, s{sT1}, 0xffff
    s_lshr_b32 s{sLen}, s{sT1}, 16
    s_cmp_gt_u32 s{sT2}, 64
    s_cselect_b32 s{sLen}, s{sLen}, 0
    s_mov_b32 s{sBase}, 0
    s_branch kb_mode2
    kb_m2_go:
    v_add_u32 v{T+3}, s{sBase}, v0
    v_cmp_gt_u32 s[{GE}:{GE+1}], s{sLen}, v{T+3}
    v_cmp_gt_u32 vcc, 128, v0
    s_and_b64 s[{GE}:{GE+1}], vcc, s[{GE}:{GE+1}]
    s_mov_b64 vcc, s[{GE}:{GE+1}]
    s_mul_i32 s{sT0}, s{sC}, {OVF_STRIDE}
    s_add_u32 s{sT0}, s{sT0}, {WS_OVF - WSO}
    v_lshl_add_u32 v{T+4}, v{T+3}, 2, s{sT0}
    v_mov_b32 v{T+5}, 0x40000000
    v_cndmask_b32 v{T+4}, v{T+5}, v{T+4}, vcc
    buffer_load_dword v{CE}, v{T+4}, {sr(S_WS)}, 0 offen
    s_waitcnt vmcnt(0)
    v_lshrrev_b32 v{T+3}, 16, v{CE}
    v_subrev_u32 v{T+3}, s{sNode0}, v{T+3}
    v_cmp_gt_u32 vcc, 98, v{T+3}
    s_and_b64 s[{GE}:{GE+1}], vcc, s[{GE}:{GE+1}]
    s_add_u32 s{sBase}, s{sBase}, 128
    kb_round:
    s_mov_b64 s[{GE+2}:{GE+3}], 0
    v_mov_b32 v{CE+4}, 0
    s_waitcnt lgkmcnt(0)
    s_barrier
    s_branch kb_propose
    kb_exit:
    s_endpgm
    ''')
    return L_END
```

```python
from consts import *
from gen_ka import srd

L_RING = 0
L_STG = 98304
STG_H = 16 * 528
L_TMP = L_STG + 4 * STG_H
L_GCNT = L_TMP + 3584
L_RBF = L_GCNT + 64
L_META = L_RBF + 16384
L_END = L_META + 16 * 512
assert L_RBF % 16 == 0 and L_META % 16 == 0 and L_END <= 163840
LISTCAP = 416
PADSRC = 0x100000

class RA:
    def __init__(self, start=1):
        self.n = start
    def __call__(self, k=1, align=1):
        self.n = (self.n + align - 1) // align * align
        r = self.n
        self.n += k
        return r

def vr(b, k):
    return f'v[{b}:{b+k-1}]'

def gen_kb(a, opts):
    R = RA(1)
    vSwzH, vSwzV, vAV, vAR, vAS, vBP, vKey, vOut, vSrc, vSrcB, vOH, vOV, vOne, vOwnA, vStamp = [R() for _ in range(15)]
    vAH = R(4)
    W2 = R(48, 4); WR = R(6, 2); RBF = R(4, 2)
    OWN = R(40, 4); ACC = R(16, 4)
    PHI = [R(12, 4), R(12, 4)]; WRD = R(12, 4)
    HA = R(16, 4); HB = R(16, 4)
    V = R(24, 4)
    DLT = R(8, 4); vOut2 = R(); vStgW = R(); vStgR = R(); vStgT = R(); IDN = R(2, 2)
    FD = R(2) if 'f0' in ''.join(str(v) for v in opts.values()) else None
    TR = V
    XB = 2 * STG_H
    OS = lambda j: (j + 3) % 5
    assert R.n <= 256, R.n
    RR = [HA, HB]
    DL = HA + 12; SEL = HB + 12
    MSG = [RBF, WRD, WRD + 4, WRD + 8]
    S_SV, S_OUT, S_H, S_POS, S_WS, S_BASE = 28, 32, 36, 40, 44, 48
    sW, sMask, sNode0, sMode, sI, sQ, sC, sLen, sBase = 52, 53, 54, 55, 26, 27, 3, 88, 89
    FR = 64
    GE = 80
    sGP = 90
    sTot, sTe, sGend, sGst, sG, sStA, sStB, sStC, sDma, sX = 92, 93, 94, 95, 96, 97, 98, 99, 100, 101
    s256, s512, s768 = 56, 57, 58
    sT0, sT1, sT2, sT3 = 59, 60, 61, 62
    sW2, sC8, sT4, sSl = 16, 17, 18, 19
    sOwO, sStO = sStA, sStB
    sPend, sPar = 12, 13
    sOk, sOwnN, sK8, sNeg, sGC, sTM = 8, 9, 10, 11, 14, 15
    WSO = WS_W2P
    sr = lambda b: f's[{b}:{b+3}]'
    M = f's{sMask}'
    STAMP = opts.get('stamp')
    def stamp():
        if STAMP:
            a(f'''{"s_memtime" if STAMP == "2" else "s_memrealtime"} s[22:23]
                 s_waitcnt lgkmcnt(0)
                 s_mov_b32 m0, s63
                 s_nop 1
                 v_writelane_b32 v{vStamp}, s22, m0
                 s_add_u32 s63, s63, 1
                 s_min_u32 s63, s63, 63''')
    def fstamp():
        if opts.get('fine'):
            stamp()
    a(f'''
    .globl kb_kernel
    .p2align 8
    .type kb_kernel,@function
    kb_kernel:
    s_cmp_ge_u32 s2, 256
    s_cbranch_scc1 kb_exit
    s_load_dwordx2 s[24:25], s[0:1], 80
    s_load_dwordx4 s[4:7], s[0:1], 0
    s_load_dwordx2 s[20:21], s[0:1], 64
    s_load_dwordx2 s[12:13], s[0:1], 32
    ''')
    T = PHI[0]
    U = HA
    CE = V
    tL, tN, tG = T, T + 1, T + 2
    def out_base():
        a(f'''
        v_and_b32 v{tN}, 15, v0
        v_bfe_u32 v{tG}, v0, 4, 2
        v_bfe_u32 v{T+10}, v0, 3, 3
        v_lshlrev_b32 v{T+10}, 8, v{T+10}
        v_and_b32 v{T+11}, 7, v0
        v_lshl_or_b32 v{T+10}, v{T+11}, 4, v{T+10}
        s_and_b32 s{sT2}, s{sW}, 3
        s_lshl_b32 s{sT3}, s{sT2}, 2
        s_add_u32 s{sT3}, s{sT3}, s{sNode0}
        s_lshl_b32 s{sT3}, s{sT3}, 10
        s_lshr_b32 s{sT1}, s{sW}, 2
        s_lshl_b32 s{sT4}, s{sT1}, 7
        s_add_u32 s{sT3}, s{sT3}, s{sT4}
        v_add_u32 v{vOut}, s{sT3}, v{T+10}
        s_cmp_eq_u32 s{sT2}, 3
        s_cselect_b32 s{sT3}, 0x40000000, 0
        v_add_u32 v{vOut2}, s{sT3}, v{vOut}
        s_mul_i32 s{sT1}, s{sT1}, {STG_H}
        s_add_u32 s{sT1}, s{sT1}, {L_STG}
        s_lshl_b32 s{sT3}, s{sT2}, 5
        s_add_u32 s{sT3}, s{sT3}, s{sT1}
        v_mul_u32_u24 v{T+10}, 528, v{tN}
        v_lshl_add_u32 v{T+10}, v{tG}, 3, v{T+10}
        v_add_u32 v{vStgW}, s{sT3}, v{T+10}
        v_bfe_u32 v{T+10}, v0, 2, 4
        v_mul_u32_u24 v{T+10}, 528, v{T+10}
        v_and_b32 v{T+11}, 3, v0
        v_lshl_add_u32 v{T+10}, v{T+11}, 3, v{T+10}
        v_add_u32 v{vStgT}, s{sT3}, v{T+10}
        v_lshlrev_b32 v{T+10}, 2, v{tG}
        v_sub_u32 v{T+10}, v{tN}, v{T+10}
        v_mov_b32 v{T+11}, 0x3f80
        v_mov_b32 v{T+12}, 0x3f800000
        v_cmp_eq_u32 vcc, 0, v{T+10}
        v_cndmask_b32 v{IDN}, 0, v{T+11}, vcc
        v_cmp_eq_u32 vcc, 1, v{T+10}
        v_cndmask_b32 v{IDN}, v{IDN}, v{T+12}, vcc
        v_cmp_eq_u32 vcc, 2, v{T+10}
        v_cndmask_b32 v{IDN+1}, 0, v{T+11}, vcc
        v_cmp_eq_u32 vcc, 3, v{T+10}
        v_cndmask_b32 v{IDN+1}, v{IDN+1}, v{T+12}, vcc
        s_mul_i32 s{sT3}, s{sT2}, {4*528}
        s_add_u32 s{sT3}, s{sT3}, s{sT1}
        s_add_u32 s{sT3}, s{sT3}, {XB}
        v_bfe_u32 v{T+10}, v0, 5, 1
        v_mul_u32_u24 v{T+10}, 528, v{T+10}
        v_and_b32 v{T+11}, 31, v0
        v_lshl_add_u32 v{T+10}, v{T+11}, 4, v{T+10}
        v_add_u32 v{vStgR}, s{sT3}, v{T+10}
        ''')
    NTO = ' nt' if opts.get('ntown', '0') == '1' else ''
    NTS = ' nt sc1' if opts.get('ntst', '1') == '1' else ''
    fl_ = lambda k: (' ' + opts[k].replace('+', ' ')) if opts.get(k) else ''
    if opts.get('kbs'): NTS = fl_('kbs')
    if opts.get('kbo'): NTO = fl_('kbo')
    GV, GH = fl_('gv'), fl_('gh')
    def own_ins(j, flags, so=sT3):
        return [f'buffer_load_dwordx4 {vr(OWN+8*OS(j)+4*b,4)}, v{[vOut, vOut2][b]}, {sr(S_BASE)}, s{so} offen offset:{2048*b}{flags}' for b in range(2)]
    def own_load(j, flags=None):
        a(f's_mov_b32 s{sT3}, {14336*j}')
        for x in own_ins(j, NTO if flags is None else flags):
            a(x)
    def own01(t):
        a(f'v_subrev_u32 v{t}, {XB}, v{vStgR}')
        for j in range(2):
            for b in range(2):
                a(f'ds_write_b128 v{t}, {vr(OWN+8*OS(j)+4*b,4)} offset:{XB*j+1056*b}')
    def tr_reads():
        return [f'ds_read_b64_tr_b16 {vr(TR+2*c,2)}, v{vStgT} offset:{128*c}' for c in range(4)]
    def toggle():
        a(f'''v_add_u32 v{vStgW}, s{sPar}, v{vStgW}
              v_add_u32 v{vStgT}, s{sPar}, v{vStgT}
              v_subrev_u32 v{vStgR}, s{sPar}, v{vStgR}
              s_sub_u32 s{sPar}, 0, s{sPar}''')
    a(f'''
    v_lshrrev_b32 v{T+3}, 6, v0
    v_readfirstlane_b32 s{sW}, v{T+3}
    s_lshl_b32 s{sT0}, s2, 13
    s_add_u32 s{sT0}, s{sT0}, {WS_CELL - WSO}
    v_lshl_add_u32 v{T+4}, v0, 4, s{sT0}
    s_mul_i32 s{sNode0}, s2, 98
    s_mov_b32 s63, 0
    ''')
    a('s_waitcnt lgkmcnt(0)')
    stamp()
    srd(a, S_WS, 24, 25, WS_OVF + OVF_BYTES - WSO, WSO)
    a(f'''
    buffer_load_dwordx4 {vr(CE,4)}, v{T+4}, {sr(S_WS)}, 0 offen
    v_and_b32 v{tL}, 63, v0
    v_lshlrev_b32 v{CE+7}, 4, v{tL}
    v_lshlrev_b32 v{CE+8}, 3, v{tL}
    s_mul_i32 s{sW2}, s{sW}, 12288
    s_mul_i32 s{sT2}, s{sW}, 1536
    s_add_u32 s{sT2}, s{sT2}, {WS_WRP - WSO}
    ''')
    srd(a, S_BASE, 4, 5, 25600000)
    srd(a, S_SV, 4, 5, 25600000)
    srd(a, S_OUT, 20, 21, 25600000)
    srd(a, S_H, 24, 25, 6400000, WS_H)
    srd(a, S_POS, 6, 7, 150000)
    VM = []
    def wbatch(first):
        lab = 'kb_wb%d' % first
        a(f'''s_bitcmp{1 if not first else 0}_b32 s2, {opts.get('rotbit', 3)}
              s_cbranch_scc1 {lab}_1''')
        for h in range(2):
            a(f's_add_u32 s{sT1}, s{sW2}, {6144*h}')
            for i in range(6):
                if i == 4:
                    a(f's_add_u32 s{sT1}, s{sT1}, 4096')
                a(f'buffer_load_dwordx4 {vr(W2+4*(6*h+i),4)}, v{CE+7}, {sr(S_WS)}, s{sT1} offen offset:{1024*(i%4)}')
            if h == 0:
                a(f'''s_branch {lab}_e
                      {lab}_1:''')
        a(f'{lab}_e:')
        VM.extend(['w'] * 6)
    def wr_load():
        for i in range(3):
            a(f'buffer_load_dwordx2 {vr(WR+2*i,2)}, v{CE+8}, {sr(S_WS)}, s{sT2} offen offset:{512*i}')
        VM.extend(['w'] * 3)
    SRC3 = V + 12
    def dma_addr(srcb):
        o = []
        if opts.get('fakesrc'):
            o.append(f'v_and_b32 v{srcb}, {opts["fakesrc"]}, v{srcb}')
        o += [f'v_lshl_add_u32 v{vOH}, v{srcb}, 8, v{vSwzH}', f'v_lshl_add_u32 v{vOV}, v{srcb}, 10, v{vSwzV}']
        return o
    def dma_piece(k):
        if opts.get('nodma'):
            return [f's_mov_b32 m0, s{sDma}']
        if k == 0:
            return [f's_mov_b32 m0, s{sDma}', f'buffer_load_dwordx4 v{vOH}, {sr(S_H)}, 0 offen{GH} lds']
        o = [f's_add_u32 m0, s{sDma}, {1024*k}', f'buffer_load_dwordx4 v{vOV}, {sr(S_SV)}, s{[0, s256, s512, s768][k]} offen{GV} lds']
        if k == 3:
            o += [f's_add_u32 s{sDma}, s{sDma}, 0x8000', f's_cmp_ge_u32 s{sDma}, 0x18000',
                  f's_cselect_b32 s{sT4}, 0x18000, 0', f's_sub_u32 s{sDma}, s{sDma}, s{sT4}']
        return o
    def item_groups(it):
        k, j = it[0], int(it[1])
        if k == 'o':
            g = [[x] for x in own_ins(j, NTO)]
            g[0].insert(0, f's_mov_b32 s{sT3}, {14336*j}')
        elif k == 'f':
            FSH = int(opts.get('fsh', 7))
            off = int(opts.get('fo', 28672)) + (512 << FSH) * j
            g = [[f's_mul_i32 s{sT3}, s2, 100352', f's_add_u32 s{sT3}, s{sT3}, {off}',
                  f'v_lshlrev_b32 v{FD+j}, {FSH}, v0', f'v_min_u32 v{FD+j}, {100352 - 128 - off}, v{FD+j}',
                  f'buffer_load_dword v{FD+j}, v{FD+j}, {sr(S_BASE)}, s{sT3} offen{fl_("kbf")}']]
        else:
            nd = opts.pop('nodma', None)
            g = [dma_piece(q) for q in range(4)]
            if nd:
                opts['nodma'] = nd
            g[0] = dma_addr(SRC3 + j) + g[0]
        return [(it, x) for x in g]
    def emit_items(items):
        for it in items:
            if it == 't':
                a(f'''kb_touch1__kb_t1__{opts.get('tend', 'kb_loopA')}__{sW}:
                      kb_t1:''')
            elif it == 'w0':
                wbatch(0)
            elif it == 'w1':
                wbatch(1)
            elif it == 'wr':
                wr_load()
            else:
                for tag, g in item_groups(it):
                    for x in g:
                        a(x)
                    VM.append(tag)
    def vm_after(tags):
        last = max(i for i, t in enumerate(VM) if t in tags)
        return len(VM) - 1 - last
    P1 = opts.get('p1', 'w0,wr').split(',')
    P1B = [x for x in opts.get('p1b', '').split(',') if x]
    P2 = opts.get('p2', 'd0,w1').split(',')
    P3 = opts.get('p3', 'o0,o1,d1').split(',')
    NPRE = 1 + max(int(x[1]) for x in P1B + P2 + P3 if x[0] == 'o')
    assert not any(x[0] in 'od' for x in P1) and not any(x[0] in 'dw' for x in P1B)
    assert NPRE == 2
    VM.append('cell')
    a(f'''
    v_and_b32 v{T+8}, 7, v0
    v_lshlrev_b32 v{T+8}, 2, v{T+8}
    v_add_u32 v{T+8}, {L_GCNT}, v{T+8}
    v_mov_b32 v{T+9}, 0
    ds_write_b32 v{T+8}, v{T+9}
    s_waitcnt lgkmcnt(0)
    s_barrier
    s_load_dwordx8 s[{FR}:{FR+7}], s[12:13], 0
    ''')
    emit_items(P1)
    out_base()
    emit_items(P1B)
    a(f'''
    s_mov_b32 s{sMask}, 0xffff0000
    s_mov_b32 s{sMode}, 0
    s_movk_i32 s{s256}, 256
    s_movk_i32 s{s512}, 512
    s_movk_i32 s{s768}, 768
    s_mov_b32 s{sK8}, 0x80008000
    s_mov_b32 s{sC8}, 0x8000
    s_mul_i32 s{sNeg}, s2, {-147*98}
    s_mov_b32 s{sGC}, {L_GCNT}
    s_mov_b32 s{sTM}, {L_TMP}
    v_mov_b32 v{vOne}, 0x3f803f80
    s_lshr_b32 s{sT0}, s{sW}, 1
    s_lshl_b32 s{sT1}, s{sT0}, 2
    v_add_u32 v{T+3}, s{sT1}, v{tG}
    v_xor_b32 v{T+3}, v{T+3}, v{tN}
    v_lshlrev_b32 v{vSwzH}, 4, v{T+3}
    v_and_b32 v{T+3}, 1, v{tG}
    v_lshl_or_b32 v{T+3}, v{T+3}, 1, s{sT1}
    v_xor_b32 v{T+3}, v{T+3}, v{tN}
    v_lshlrev_b32 v{vSwzV}, 4, v{T+3}
    v_and_b32 v{T+5}, 3, v0
    v_lshlrev_b32 v{T+5}, 2, v{T+5}
    v_cmp_ne_u32 s[{GE+2}:{GE+3}], 0, v{T+5}
    ''')
    if opts.get('pret', '0') == '1':
        a(f'''s_mov_b32 s{sOwnN}, 99
              s_cmp_ge_u32 s{sW}, {opts.get('bfrom', 4)}
              s_cbranch_scc1 kb_ownB
              s_branch kb_ownA''')
    a('kb_pret:')
    stamp()
    a(f'''
    s_waitcnt vmcnt({vm_after(['cell'])}) lgkmcnt(0)
    v_and_b32 v{CE+4}, 0xffff, v{CE}
    v_mov_b32_dpp v{CE+4}, v{CE+4} quad_perm:[0,0,0,0] row_mask:0xf bank_mask:0xf
    ''')
    for k in range(7, -1, -1):
        a(f'''s_and_b32 s{FR+2*k+1}, s{FR+k}, s{sMask}
              s_lshl_b32 s{FR+2*k}, s{FR+k}, 16''')
    a(f'''
    v_sub_u32 v{CE+5}, v{CE+4}, v{T+5}
    v_cmp_lt_i32 vcc, 0, v{CE+5}
    s_and_b64 s[{GE}:{GE+1}], vcc, s[{GE+2}:{GE+3}]
    v_cmp_lt_i32 s[{GE+2}:{GE+3}], 16, v{CE+5}
    kb_propose:
    v_mov_b32 v{T+9}, 1
    v_mov_b32 v{CE+6}, 147
    v_and_b32 v{tL}, 63, v0
    v_lshlrev_b32 v{CE+7}, 4, v{tL}
    v_lshlrev_b32 v{CE+8}, 3, v{tL}
    ''')
    stamp()
    def wload(n):
        pass
    def prop(lo, nw):
        for q in range(2):
            a(f'''
            v_lshrrev_b32 v{U+q}, 16, v{CE+lo+q}
            v_mad_u32_u24 v{U+q}, v{U+q}, v{CE+6}, s{sNeg}
            v_lshrrev_b32 v{U+q}, 11, v{U+q}
            v_lshl_add_u32 v{U+4+q}, v{U+q}, 2, s{sGC}
            ''')
        for q in range(2):
            a(f'''s_mov_b64 exec, s[{GE+2*q}:{GE+2*q+1}]
                  ds_add_rtn_u32 v{U+8+q}, v{U+4+q}, v{T+9}''')
        a('s_mov_b64 exec, -1')
        for q in range(2):
            a(f'v_lshl_add_u32 v{U+q}, v{U+q}, 9, s{sTM}')
        wload(nw)
        a('s_waitcnt lgkmcnt(0)')
        for q in range(2):
            a(f'''v_min_u32 v{U+8+q}, 0x7f, v{U+8+q}
                  v_lshl_add_u32 v{U+q}, v{U+8+q}, 2, v{U+q}''')
        for q in range(2):
            a(f'''s_mov_b64 exec, s[{GE+2*q}:{GE+2*q+1}]
                  ds_write_b32 v{U+q}, v{CE+lo+q}''')
        a('s_mov_b64 exec, -1')
    W1N = W2N = W3N = 0
    prop(0, W1N)
    a(f'''
    v_cmp_lt_u32 vcc, 32, v{CE+4}
    s_cbranch_vccz kb_prop_done
    v_cmp_lt_i32 s[{GE}:{GE+1}], 32, v{CE+5}
    v_cmp_lt_i32 s[{GE+2}:{GE+3}], 48, v{CE+5}
    ''')
    prop(2, 0)
    a(f'''
    v_cmp_lt_u32 vcc, 64, v{CE+4}
    v_mov_b32 v{U}, {L_GCNT + 28}
    s_mov_b64 exec, vcc
    ds_add_u32 v{U}, v{T+9}
    s_mov_b64 exec, -1
    kb_prop_done:
    v_mov_b32 v{U}, {L_GCNT}
    s_waitcnt lgkmcnt(0)
    s_barrier
    ds_read_b128 {vr(U+4,4)}, v{U}
    ds_read_b128 {vr(U+8,4)}, v{U} offset:16
    ''')
    wload(W2N)
    tP = T + 3
    a(f'''
    v_and_b32 v{tN}, 15, v0
    v_bfe_u32 v{tG}, v0, 4, 2
    v_lshrrev_b32 v{T+4}, 2, v{tL}
    v_and_b32 v{T+5}, 3, v{tL}
    s_lshl_b32 s{sT0}, s{sW}, 2
    v_add_u32 v{T+6}, s{sT0}, v{T+5}
    v_lshl_add_u32 v{tP}, v{T+4}, 5, v{T+6}
    v_lshl_add_u32 v{T+7}, v{tP}, 2, s{sTM}
    s_waitcnt lgkmcnt(0)
    ''')
    stamp()
    for j in range(8):
        a(f'v_readfirstlane_b32 s{GE+j}, v{U+4+j}')
    sA, sB, sD = sStA, sStB, sStC
    a(f'''
    s_max_u32 s{sA}, s{GE}, s{GE+1}
    s_max_u32 s{sB}, s{GE+2}, s{GE+3}
    s_max_u32 s{sD}, s{GE+4}, s{GE+5}
    s_max_u32 s{sA}, s{sA}, s{GE+6}
    s_max_u32 s{sB}, s{sB}, s{sD}
    s_max_u32 s{sA}, s{sA}, s{sB}
    s_mov_b32 s{sTot}, 0
    ''')
    for j in range(7):
        a(f's_add_u32 s{sTot}, s{sTot}, s{GE+j}')
        if j < 6:
            a(f'''s_lshl_b32 s{sB}, s{GE+j}, 2
                  s_sub_u32 s{sB}, 512, s{sB}
                  v_cmpx_le_u32 vcc, s{sTot}, v{tP}
                  v_add_u32 v{T+7}, s{sB}, v{T+7}''')
        a(f's_mov_b32 s{GE+j}, s{sTot}')
    a(f'''
    s_mov_b64 exec, -1
    ds_read_b32 v{T+8}, v{T+7}
    ''')
    wload(W3N)
    a(f'''
    s_cmp_gt_u32 s{sA}, 128
    s_cselect_b32 s{GE+7}, 1, s{GE+7}
    s_cmp_gt_u32 s{sTot}, {LISTCAP}
    s_cselect_b32 s{GE+7}, 1, s{GE+7}
    s_cmp_lg_u32 s{GE+7}, 0
    s_cbranch_scc1 kb_go_slow
    s_cmp_eq_u32 s{sTot}, 0
    s_cbranch_scc1 kb_empty
    ''')
    a(f'''
    s_lshl_b32 s{sT0}, s{GE+1}, 9
    s_or_b32 s{sGP}, s{GE}, s{sT0}
    s_lshl_b32 s{sT0}, s{GE+2}, 18
    s_or_b32 s{sGP}, s{sGP}, s{sT0}
    s_lshl_b32 s{sT0}, s{GE+3}, 27
    s_or_b32 s{sGP}, s{sGP}, s{sT0}
    s_lshr_b32 s{sGP+1}, s{GE+3}, 5
    s_lshl_b32 s{sT0}, s{GE+4}, 4
    s_or_b32 s{sGP+1}, s{sGP+1}, s{sT0}
    s_lshl_b32 s{sT0}, s{GE+5}, 13
    s_or_b32 s{sGP+1}, s{sGP+1}, s{sT0}
    s_lshl_b32 s{sT0}, s{GE+6}, 22
    s_or_b32 s{sGP+1}, s{sGP+1}, s{sT0}
    v_cmp_gt_u32 vcc, s{sTot}, v{tP}
    v_mov_b32 v{T+9}, {PADSRC}
    v_mov_b32 v{T+10}, 0x3fff
    v_lshlrev_b32 v{vBP}, 2, v{tG}
    s_waitcnt lgkmcnt(0)
    v_and_b32 v{T+11}, 0xffff, v{T+8}
    v_lshrrev_b32 v{T+12}, 16, v{T+8}
    v_cndmask_b32 v{vSrc}, v{T+9}, v{T+11}, vcc
    v_cndmask_b32 v{T+13}, v{T+9}, v{T+12}, vcc
    ds_bpermute_b32 v{SRC3}, v{vBP}, v{vSrc}
    ds_bpermute_b32 v{SRC3+1}, v{vBP}, v{vSrc} offset:16
    ds_bpermute_b32 v{vSrcB}, v{vBP}, v{vSrc} offset:32
    v_add_u32 v{vBP}, 48, v{vBP}
    v_mul_u32_u24 v{T+14}, 6, v{vSrc}
    v_and_b32 v{T+14}, -4, v{T+14}
    v_mul_u32_u24 v{T+15}, 6, v{T+13}
    v_and_b32 v{T+15}, -4, v{T+15}
    ''')
    wload(15)
    a(f'''
    buffer_load_dwordx2 {vr(T+16,2)}, v{T+14}, {sr(S_POS)}, 0 offen
    buffer_load_dwordx2 {vr(T+18,2)}, v{T+15}, {sr(S_POS)}, 0 offen
    v_subrev_u32 v{T+12}, s{sNode0}, v{T+12}
    v_cndmask_b32 v{T+10}, v{T+10}, v{T+12}, vcc
    v_lshlrev_b32 v{T+10}, 1, v{T+10}
    s_lshl_b32 s{sDma}, s{sW}, 12
    s_waitcnt lgkmcnt(1)
    ''')
    VM.extend(['pos', 'pos'])
    a(f'''s_mul_i32 s{sT2}, s{sW}, 1536
          s_add_u32 s{sT2}, s{sT2}, {WS_WRP - WSO}''')
    emit_items(P2)
    if opts.get('p2bar', '1') == '1':
        a('s_barrier')
    stamp()
    a(f'''
    v_lshrrev_b32 v{U}, 2, v{tN}
    v_lshlrev_b32 v{U}, 13, v{U}
    v_and_b32 v{U+1}, 3, v{tN}
    v_lshl_or_b32 v{U}, v{U+1}, 8, v{U}
    v_xor_b32 v{U+1}, v{tG}, v{tN}
    ''')
    for s in range(4):
        a(f'''v_xor_b32 v{U+2}, {4*s}, v{U+1}
              v_lshl_or_b32 v{vAH+s}, v{U+2}, 4, v{U}''')
    a(f'''
    v_bfe_u32 v{U}, v{tL}, 3, 1
    v_lshl_or_b32 v{U+1}, v{tG}, 1, v{U}
    v_xor_b32 v{U+1}, s{sW}, v{U+1}
    v_lshlrev_b32 v{U+1}, 5, v{U+1}
    v_lshl_or_b32 v{U+1}, v{U}, 8, v{U+1}
    v_lshl_or_b32 v{U+1}, v{tG}, 13, v{U+1}
    v_lshl_or_b32 v{U+1}, v{T+5}, 3, v{U+1}
    v_and_b32 v{U+2}, 4, v{tL}
    v_xor_b32 v{U+2}, 4, v{U+2}
    v_lshl_or_b32 v{vAV}, v{U+2}, 18, v{U+1}
    v_lshlrev_b32 v{vAR}, 3, v{tL}
    v_add_u32 v{vAR}, {L_RBF}, v{vAR}
    v_lshlrev_b32 v{vAS}, 5, v{tG}
    v_add_u32 v{vAS}, {L_META}, v{vAS}
    v_lshlrev_b32 v{vKey}, 1, v{tN}
    v_lshl_or_b32 v{vKey}, v{vKey}, 16, v{vKey}
    ''')
    tWR, tWS, tWD = T + 20, T + 21, T + 22
    a(f'''
    s_and_b32 s{sT0}, s{sW}, 1
    s_lshl_b32 s{sT2}, s{sT0}, 3
    s_lshl_b32 s{sT0}, s{sT0}, 9
    s_lshr_b32 s{sT1}, s{sW}, 1
    s_lshl_b32 s{sT1}, s{sT1}, 5
    s_add_u32 s{sT2}, s{sT2}, s{sT1}
    s_add_u32 s{sT2}, s{sT2}, {L_META + 384}
    s_add_u32 s{sT0}, s{sT0}, s{sT1}
    s_add_u32 s{sT0}, s{sT0}, {L_RBF}
    v_lshlrev_b32 v{tWR}, 10, v{T+4}
    v_lshl_add_u32 v{tWR}, v{T+5}, 3, v{tWR}
    v_add_u32 v{tWR}, s{sT0}, v{tWR}
    v_lshlrev_b32 v{tWS}, 9, v{T+4}
    v_lshl_add_u32 v{tWD}, v{T+5}, 1, v{tWS}
    v_add_u32 v{tWD}, s{sT2}, v{tWD}
    v_lshl_add_u32 v{tWS}, v{T+6}, 2, v{tWS}
    v_add_u32 v{tWS}, {L_META}, v{tWS}
    ds_write_b16 v{tWD}, v{T+10}
    v_lshlrev_b32 v{T+14}, 4, v{vSrc}
    v_lshlrev_b32 v{T+15}, 4, v{T+13}
    s_waitcnt vmcnt({vm_after(['pos'])})
    ''')
    stamp()
    real_a = a
    p3q = []
    for it in P3:
        p3q += item_groups(it)
    cnt = [0]
    GAP = int(opts.get('p3gap', 8))
    def a(txt):
        for ln in txt.split('\n'):
            ln = ln.strip()
            if not ln:
                continue
            real_a(ln)
            cnt[0] += 1
            if cnt[0] % GAP == 0 and p3q:
                tag, g = p3q.pop(0)
                for x in g:
                    real_a(x)
                VM.append(tag)
    x, y, z = U, U + 1, U + 2
    a(f'''
    v_alignbit_b32 v{U+8}, v{T+17}, v{T+16}, v{T+14}
    v_lshrrev_b32 v{U+9}, v{T+14}, v{T+17}
    v_alignbit_b32 v{U+10}, v{T+19}, v{T+18}, v{T+15}
    v_lshrrev_b32 v{U+11}, v{T+15}, v{T+19}
    v_lshlrev_b32 v{x}, 16, v{U+8}
    v_and_b32 v{y}, {M}, v{U+8}
    v_lshlrev_b32 v{z}, 16, v{U+9}
    v_lshlrev_b32 v{U+3}, 16, v{U+10}
    v_and_b32 v{U+4}, {M}, v{U+10}
    v_lshlrev_b32 v{U+5}, 16, v{U+11}
    v_sub_f32 v{x}, v{x}, v{U+3}
    v_sub_f32 v{y}, v{y}, v{U+4}
    v_sub_f32 v{z}, v{z}, v{U+5}
    v_cvt_pk_bf16_f32 v{x}, 0, v{x}
    v_cvt_pk_bf16_f32 v{y}, 0, v{y}
    v_cvt_pk_bf16_f32 v{z}, 0, v{z}
    v_mul_f32 v{U+3}, v{x}, v{x}
    v_mul_f32 v{U+4}, v{y}, v{y}
    v_mul_f32 v{U+5}, v{z}, v{z}
    v_cvt_pk_bf16_f32 v{U+3}, 0, v{U+3}
    v_cvt_pk_bf16_f32 v{U+4}, 0, v{U+4}
    v_cvt_pk_bf16_f32 v{U+5}, 0, v{U+5}
    v_add_f32 v{U+3}, v{U+3}, v{U+4}
    v_add_f32 v{U+3}, v{U+3}, v{U+5}
    v_cvt_pk_bf16_f32 v{U+3}, 0, v{U+3}
    v_add_f32 v{U+3}, 0x322bcc77, v{U+3}
    v_cvt_pk_bf16_f32 v{U+3}, 0, v{U+3}
    v_sqrt_f32 v{U+3}, v{U+3}
    v_cvt_pk_bf16_f32 v{U+3}, 0, v{U+3}
    v_rcp_f32 v{U+4}, v{U+3}
    ''')
    d, rd = U + 3, U + 4
    X = U + 12
    P = T + 24
    for k in range(16):
        a(f'v_mul_f32 v{X+k}, s{FR+k}, v{d}')
    a(f'''
    v_mul_f32 v{U+5}, 0x40490fdb, v{d}
    v_mul_f32 v{x}, v{x}, v{rd}
    v_cvt_pk_bf16_f32 v{U+5}, 0, v{U+5}
    v_mul_f32 v{y}, v{y}, v{rd}
    v_mul_f32 v{U+5}, 0x3e4ccccd, v{U+5}
    v_mul_f32 v{z}, v{z}, v{rd}
    v_cvt_pk_bf16_f32 v{U+5}, 0, v{U+5}
    v_cvt_pk_bf16_f32 v{x}, 0, v{x}
    v_mul_f32 v{U+5}, 0.15915494, v{U+5}
    v_cvt_pk_bf16_f32 v{y}, 0, v{y}
    v_cos_f32 v{U+5}, v{U+5}
    v_cvt_pk_bf16_f32 v{z}, 0, v{z}
    v_cvt_pk_bf16_f32 v{U+5}, 0, v{U+5}
    ds_write_b32 v{tWS}, v{x}
    v_add_f32 v{U+5}, 1.0, v{U+5}
    ds_write_b32 v{tWS}, v{y} offset:128
    v_cvt_pk_bf16_f32 v{U+5}, 0, v{U+5}
    ds_write_b32 v{tWS}, v{z} offset:256
    v_mul_f32 v{U+5}, 0.5, v{U+5}
    v_cmp_gt_f32 vcc, 0x40a00000, v{d}
    v_cndmask_b32 v{U+5}, 0, v{U+5}, vcc
    v_mul_f32 v{rd}, v{rd}, v{U+5}
    ''')
    for k in range(16):
        a(f'v_cvt_pk_bf16_f32 v{X+k}, 0, v{X+k}')
    for k in range(16):
        a(f'v_mul_f32 v{X+k}, 0.15915494, v{X+k}')
    for k in range(16):
        a(f'v_sin_f32 v{X+k}, v{X+k}')
    for k in range(16):
        a(f'v_mul_f32 v{X+k}, v{X+k}, v{rd}')
    for k in range(8):
        a(f'v_cvt_pk_bf16_f32 v{P+k}, v{X+2*k}, v{X+2*k+1}')
    for g in range(4):
        a(f'ds_write_b64 v{tWR}, {vr(P+2*g,2)} offset:{128*g}')
    a = real_a
    for tag, g in p3q:
        for x in g:
            a(x)
        VM.append(tag)
    def acc_zero():
        for i in range(16):
            a(f'v_mov_b32 v{ACC+i}, 0')
    nA = vm_after(['d1'])
    assert nA % 2 == 0
    tail_blocks = []
    a(f'''
    s_mov_b32 s{sG}, 0
    s_and_b32 s{sGend}, s{sGP}, 0x1ff
    s_mov_b32 s{sTe}, 32
    s_mov_b32 s{sOwO}, {14336*(NPRE-1)}
    s_mov_b32 s{sStO}, 0x40000000
    s_mov_b32 s{sX}, 0x8000
    s_mov_b32 s{sSl}, 0
    s_mov_b32 s{sPar}, {XB}
    s_mov_b32 s{sOk}, 0
    s_mov_b32 s{sOwnN}, {NPRE}
    s_cmp_lg_u32 s{sMode}, 0
    s_cbranch_scc1 kb_slow_own
    ''')
    if vm_after(['o0', 'o1']) < vm_after(['pos']):
        a(f's_waitcnt vmcnt({vm_after(["o0", "o1"])})')
    own01(T)
    a('kb_slow_ownr:')
    def blk_so():
        a('''kb_slow_own:
             s_waitcnt vmcnt(0)''')
        for j in range(2):
            own_load(j, ' sc0 sc1')
        a('s_waitcnt vmcnt(0)')
        own01(T)
        a('s_waitcnt lgkmcnt(0)')
        for j in range(2, 7):
            own_load(j, ' sc0 sc1')
        a(f'''s_mov_b32 s{sOwnN}, 7
              s_mov_b32 s{sOk}, 0x7fffffff
              s_waitcnt vmcnt(0)
              s_branch kb_slow_ownr''')
    tail_blocks.append(blk_so)
    stamp()
    acc_zero()
    a(f'''
    s_cmp_ge_u32 s{sW}, {opts.get('bfrom', 4)}
    s_waitcnt vmcnt({vm_after(['d0', 'w'])}) lgkmcnt(0)
    s_cbranch_scc1 kb_B_entry
    ''')
    PG = int(opts.get('pg', 2)); PS = int(opts.get('ps', 3))
    PMD = {'A': int(opts.get('pma', 0)), 'B': int(opts.get('pmb', 1))}
    SMEND = opts.get('smend', '1') == '1'

    class LQ:
        def __init__(self):
            self.q = []
        def issue(self, tag, txt):
            if len(self.q) >= 15:
                a('s_waitcnt lgkmcnt(8)'); self.q = self.q[-8:]
            a(txt); self.q.append(tag)
        def need(self, *tags):
            idx = [i for i, t in enumerate(self.q) if t in tags]
            if not idx:
                return
            last = max(idx)
            a(f's_waitcnt lgkmcnt({len(self.q)-1-last})')
            self.q = self.q[last + 1:]
    def gemm(t, s):
        H = HA if t == 0 else HB
        out = []
        for b in range(3):
            c = '0' if s == 0 else vr(PHI[t] + 4 * b, 4)
            out.append(f'v_mfma_f32_16x16x32_bf16 {vr(PHI[t]+4*b,4)}, {vr(H+4*s,4)}, {vr(W2+16*b+4*s,4)}, {c}')
        return out
    def wf(t):
        return [f'v_mfma_f32_16x16x16_bf16 {vr(WRD+4*b,4)}, {vr(RBF+2*t,2)}, {vr(WR+2*b,2)}, 0' for b in range(3)]
    def sm(k, z=False):
        a(f'v_mfma_f32_16x16x32_bf16 {vr(ACC+4*k,4)}, {vr(MSG[k],4)}, {vr(SEL,4)}, {"0" if z else vr(ACC+4*k,4)}')
    def selb():
        for i in range(4):
            a(f'v_xor_b32 v{SEL+i}, v{DL+i}, v{vKey}')
        for i in range(4):
            a(f'v_pk_mad_i16 v{SEL+i}, v{SEL+i}, s{sK8}, v{vOne} clamp')
    def vreads(t):
        return [('V%d' % t, f'ds_read_b64_tr_b16 {vr(V+12*t+4*c+2*p,2)}, v{vAV} offset:{4096*t+1024*(c+1)+512*p}') for c in range(3) for p in range(2)]
    def issue_head(X_, lq):
        if X_ == 'B0':
            a(f'''s_cmp_ge_u32 s{sOwnN}, 7
                  s_cbranch_scc1 kb_ownrB0
                  s_add_u32 s{sOwnN}, s{sOwnN}, 1
                  s_add_u32 s{sOwO}, s{sOwO}, 14336''')
            for x in own_ins(NPRE, NTO, sOwO):
                a(x)
            a('kb_ownrB0:')
        else:
            a(f'''
            s_cmp_lt_u32 s{sOwnN}, 7
            s_cbranch_scc1 kb_own{X_}
            kb_ownr{X_}:
            ''')
        for x in dma_addr(vSrcB):
            a(x)
        p0 = dma_piece(0)
        a(p0[0])
        lq.issue('bp', f'ds_bpermute_b32 v{vSrcB}, v{vBP}, v{vSrc}')
        for x in p0[1:]:
            a(x)
        a(f'v_add_u32 v{vBP}, 16, v{vBP}')
    def own_blk(X_):
        a(f'''kb_own{X_}:
              s_add_u32 s{sOwnN}, s{sOwnN}, 1
              s_add_u32 s{sOwO}, s{sOwO}, 14336''')
        for j in range(NPRE + (X_ == 'B'), 7):
            a(f'''s_cmp_lg_u32 s{sOwnN}, {j+1}
                  s_cbranch_scc1 kb_own{X_}_{j+1}''')
            for x in own_ins(j, NTO, sOwO):
                a(x)
            a(f'''s_branch kb_ownr{X_}
                  kb_own{X_}_{j+1}:''')
        a('s_branch kb_pret')
    p0_, p1_ = PHI
    DSL = [int(x) for x in opts.get('dsl', '6,13,20').split(',')]
    def G(X_, with_issue, lq):
        for s in range(4):
            lq.issue('HA%d' % s, f'ds_read_b128 {vr(HA+4*s,4)}, v{vAH+s}')
        lq.issue('B0', f'ds_read_b64 {vr(RBF,2)}, v{vAR}')
        if with_issue:
            issue_head(X_, lq)
        mf = []
        for s in range(4):
            mf += [(m, 'HA%d' % s) for m in gemm(0, s)]
        mf += [(m, 'B0') for m in wf(0)]
        for s in range(4):
            mf += [(m, 'B1') for m in gemm(1, s)]
        mf += [(m, 'B1') for m in wf(1)]
        ls = {i: [] for i in range(30)}
        for s in range(4):
            ls[s].append(('HB%d' % s, f'ds_read_b128 {vr(HB+4*s,4)}, v{vAH+s} offset:4096'))
        ls[4].append(('B1', f'ds_read_b64 {vr(RBF+2,2)}, v{vAR} offset:512'))
        for i, x in enumerate(vreads(0)):
            ls[5 + i].append(x)
        for c in range(3):
            ls[12 + c].append(('R0', f'ds_read_b128 {vr(RR[0]+4*c,4)}, v{vAS} offset:{128*c}'))
        for i, x in enumerate(vreads(1)):
            ls[15 + i].append(x)
        ls[21].append(('DL', f'ds_read_b128 {vr(DL,4)}, v{vAS} offset:384'))
        for c in range(3):
            ls[24 + c].append(('R1', f'ds_read_b128 {vr(RR[1]+4*c,4)}, v{vAS} offset:{128*c+16}'))
        vs = {i: [] for i in range(30)}
        for s in range(4):
            vs[4 + s].append(f'v_add_u32 v{vAH+s}, s{sX}, v{vAH+s}')
        vs[8].append(f'v_add_u32 v{vAR}, 1024, v{vAR}')
        late = [f'v_mul_f32 v{p0_+i}, v{p0_+i}, v{WRD+i}' for i in (8, 9, 10, 11, 0, 1, 2, 3, 4, 5, 6, 7)]
        late += [f'v_cvt_pk_bf16_f32 v{MSG[0]}, v{p0_}, v{p0_+1}', f'v_cvt_pk_bf16_f32 v{MSG[0]+1}, v{p0_+2}, v{p0_+3}']
        late += [('R0', f'v_mul_f32 v{RR[0]+4*c+i}, v{RR[0]+4*c+i}, v{p0_+8+i}') for c in range(3) for i in range(4)]
        sl = 17
        while late:
            vs[sl] += late[:2]; late = late[2:]; sl += 1
        assert sl <= 30
        vs[21].append(f'v_add_u32 v{vAV}, s{sX}, v{vAV}')
        vs[27].append(f'v_add_u32 v{vAS}, 512, v{vAS}')
        vs[22].append(f's_add_u32 s{sSl}, s{sSl}, s{sX}')
        vs[23].append(f's_cmp_eq_u32 s{sSl}, 0x10000')
        vs[23].append(f's_cselect_b32 s{sX}, 0xffff0000, s{sC8}')
        for i, (m, tag) in enumerate(mf):
            lq.need(tag)
            pc = None
            if with_issue and i in DSL:
                pc = dma_piece(1 + DSL.index(i)); a(pc[0])
            a(m)
            if pc:
                for x in pc[1:]:
                    a(x)
            for tag2, x in ls[i]:
                lq.issue(tag2, x)
            for x in vs[i]:
                if isinstance(x, tuple):
                    lq.need(x[0]); x = x[1]
                a(x)
    MSL = [int(x) for x in opts.get('msl', '12,28,44').split(',')]
    def Mphase(X_, lq, with_dma):
        p0, p1 = PHI
        cnt = [0]
        def v(x):
            if with_dma and cnt[0] in MSL:
                pc = dma_piece(1 + MSL.index(cnt[0]))
                a(pc[0]); a(x)
                for y in pc[1:]:
                    a(y)
            else:
                a(x)
            cnt[0] += 1
        lq.issue('DLT', f'ds_read_b128 {vr(DLT,4)}, v{vStgR}')
        lq.issue('DLT', f'ds_read_b128 {vr(DLT+4,4)}, v{vStgR} offset:1056')
        lq.need('V0', 'DL')
        for i in range(4):
            v(f'v_xor_b32 v{SEL+i}, v{DL+i}, v{vKey}')
        for i in range(12):
            v(f'v_fmac_f32 v{RR[0]+i}, v{V+i}, v{p0+4+i%4}')
        for i in range(4):
            v(f'v_pk_mad_i16 v{SEL+i}, v{SEL+i}, s{sK8}, v{vOne} clamp')
        for i in range(12):
            v(f'v_mul_f32 v{p1+i}, v{p1+i}, v{WRD+i}')
        v(f'v_cvt_pk_bf16_f32 v{MSG[0]+2}, v{p1}, v{p1+1}')
        v(f'v_cvt_pk_bf16_f32 v{MSG[0]+3}, v{p1+2}, v{p1+3}')
        lq.need('V1', 'R1')
        for x in tr_reads():
            lq.issue('DLT', x)
        for c in range(3):
            for i in range(4):
                v(f'v_mul_f32 v{RR[1]+4*c+i}, v{RR[1]+4*c+i}, v{p1+8+i}')
            if not SMEND:
                sm(c)
            for i in range(4):
                v(f'v_fmac_f32 v{RR[1]+4*c+i}, v{V+12+4*c+i}, v{p1+4+i}')
            for t in range(2):
                for h in range(2):
                    v(f'v_cvt_pk_bf16_f32 v{MSG[1+c]+2*t+h}, v{RR[t]+4*c+2*h}, v{RR[t]+4*c+2*h+1}')
        if SMEND:
            a(f's_setprio {PS}')
            for c in range(3):
                sm(c)
        sm(3)
        a(f's_setprio {PMD[X_]}')
        lq.need('DLT')
        assert cnt[0] > max(MSL)
    ST = PHI[0]
    def stores():
        for h in range(2):
            a(f'buffer_store_dwordx4 {vr(DLT+4*h,4)}, v{[vOut, vOut2][h]}, {sr(S_OUT)}, s{sStO} offen offset:{2048*h}{NTS}')
    OT = V + 8
    def service(L, reads, last=False):
        if reads:
            a(f'''ds_read_b128 {vr(DLT,4)}, v{vStgR}
                  ds_read_b128 {vr(DLT+4,4)}, v{vStgR} offset:1056''')
            if not last:
                for x in tr_reads():
                    a(x)
            a('s_waitcnt lgkmcnt(0)')
        stores()
        if last:
            return
        if not reads:
            a(f'''s_bitcmp1_b32 s{sStO}, 30
                  s_cbranch_scc1 kb_segend{L[1]}''')
        a(f'''
        s_sub_u32 s{sT1}, s{sG}, 8
        s_min_u32 s{sT1}, s{sT1}, 32
        s_lshl_b32 s{sT0}, s{sT1}, 2
        s_add_u32 s{sT0}, s{sT0}, 32
        s_cmp_gt_u32 s{sT0}, s{sOk}
        s_cbranch_scc1 kb_fb{L}
        kb_fbr{L}:
        s_set_gpr_idx_on s{sT1}, 0x1
        s_mov_b32 s{sStO}, 0x40000000
        s_waitcnt vmcnt(12)
        ''')
        for i in range(8):
            a(f'v_mov_b32 v{OT+i}, v{OWN+i}')
        a('s_set_gpr_idx_off')
        for b in range(2):
            a(f'ds_write_b128 v{vStgR}, {vr(OT+4*b,4)} offset:{1056*b}')
        def blk():
            a(f'''kb_fb{L}:
                  s_cmp_ge_u32 s{sOwnN}, 7
                  s_cbranch_scc1 kb_fb2{L}''')
            for j in range(NPRE, 7):
                own_load(j)
            a(f'''kb_fb2{L}:
                  s_mov_b32 s{sOwnN}, 7
                  s_mov_b32 s{sOk}, 0x7fffffff
                  s_waitcnt vmcnt(0)
                  s_branch kb_fbr{L}''')
        tail_blocks.append(blk)
    PF = int(opts.get('pf', 3))
    def Sflush(X_):
        service('r' + X_, False)
        a(f'''
        kb_segend{X_}:
        s_cmp_gt_u32 s{sGend}, s{sTe}
        s_cbranch_scc1 kb_next{X_}
        kb_flush{X_}:
        s_bitcmp0_b32 s{sStO}, 30
        s_cbranch_scc1 kb_extra{X_}
        kb_extrar{X_}:
        s_setprio {PF}
        ''')
        for c in range(4):
            a(f'v_mfma_f32_16x16x16_bf16 {vr(ACC+4*c,4)}, {vr(TR+2*c,2)}, {vr(IDN,2)}, {vr(ACC+4*c,4)}')
        a(f'''
        v_add_u32 v{vKey}, 0x001c001c, v{vKey}
        s_mul_i32 s{sStO}, s{sG}, {0x40000000 // 8 if opts.get('nostore') else 1792}
        s_add_u32 s{sG}, s{sG}, 8
        s_lshr_b64 s[{sGP}:{sGP+1}], s[{sGP}:{sGP+1}], 9
        s_mov_b32 s{sGst}, s{sGend}
        s_and_b32 s{sGend}, s{sGP}, 0x1ff
        ''')
        if opts.get('nostore'):
            a(f's_mov_b32 s{sStO}, 0x20000000')
        selb()
        for i in range(8):
            a(f'v_cvt_pk_bf16_f32 v{ST+i}, v{ACC+2*i}, v{ACC+2*i+1}')
            if i & 1:
                a(f'ds_write_b64 v{vStgW}, {vr(ST+i-1,2)} offset:{64*(i-1)}')
        a(f'''
        s_cmp_eq_u32 s{sG}, 56
        s_cbranch_scc1 kb_fin{X_}
        ''')
        for k in range(4):
            sm(k, True)
        toggle()
        a(f'''
        s_setprio {PMD[X_]}
        s_cmp_le_u32 s{sGend}, s{sTe}
        s_cbranch_scc1 kb_extra{X_}
        kb_next{X_}:
        s_max_u32 s{sOk}, s{sOk}, s{sTe}
        s_add_u32 s{sTe}, s{sTe}, 32
        ''')
    def end_blks(X_):
        a(f'''kb_fin{X_}:
              v_subrev_u32 v{vStgR}, s{sPar}, v{vStgR}
              s_waitcnt lgkmcnt(0)
              s_barrier''')
        service('f' + X_, True, True)
        a(f'v_add_u32 v{vStgR}, s{sPar}, v{vStgR}')
        if X_ == 'A':
            a('s_barrier')
        a('s_branch kb_done')
        a(f'''kb_extra{X_}:
              s_waitcnt lgkmcnt(0)
              s_barrier''')
        service('x' + X_, True)
        a(f's_branch kb_extrar{X_}')
        own_blk(X_)
    a('kb_loopA:')
    stamp()
    a(f'''s_setprio {PG}
          s_barrier''')
    stamp()
    lq = LQ()
    G('A', True, lq)
    a(f's_setprio {PMD["A"]}')
    fstamp()
    Mphase('A', lq, False)
    assert not lq.q
    fstamp()
    Sflush('A')
    fstamp()
    a('''s_waitcnt vmcnt(8) lgkmcnt(0)
         s_branch kb_loopA''')
    end_blks('A')
    a('''kb_B_entry:
         s_barrier''')
    lq = LQ()
    issue_head('B0', lq)
    for k in range(1, 4):
        for x in dma_piece(k):
            a(x)
    stores()
    a('kb_loopB:')
    a(f's_setprio {PG}')
    fstamp()
    assert lq.q == ['bp']
    G('B', False, lq)
    a(f's_setprio {PMD["B"]}')
    fstamp()
    lq.need('V1')
    a(f's_max_u32 s{sOk}, s{sOk}, s{sTe}')
    a('s_waitcnt vmcnt(8)')
    stamp()
    a('s_barrier')
    stamp()
    issue_head('B', lq)
    fstamp()
    Mphase('B', lq, True)
    assert not lq.q
    fstamp()
    Sflush('B')
    a('s_branch kb_loopB')
    end_blks('B')
    k_ = 0
    while k_ < len(tail_blocks):
        tail_blocks[k_](); k_ += 1
    a(f'''
    kb_go_slow:
    s_mov_b32 s{sMode}, 1
    s_mov_b32 s{sI}, 0
    s_mov_b32 s{sQ}, 0
    s_mov_b32 s{sC}, -1
    s_mov_b32 s{sLen}, 0
    s_mov_b32 s{sBase}, 0
    s_branch kb_copy
    kb_empty:
    s_cmp_lg_u32 s{sMode}, 0
    s_cbranch_scc1 kb_done
    kb_copy:
    s_mov_b64 s[{sGP}:{sGP+1}], 0
    s_mov_b32 s{sG}, 0
    s_mov_b32 s{sGend}, 0
    s_mov_b32 s{sTot}, 0
    s_mov_b32 s{sStO}, 0x40000000
    s_mov_b32 s{sTe}, 32
    s_mov_b32 s{sOwnN}, 7
    s_mov_b32 s{sOk}, 0x7fffffff
    ''')
    for j in range(2):
        own_load(j)
    a('s_waitcnt vmcnt(0)')
    own01(T)
    a('s_waitcnt lgkmcnt(0)')
    for j in range(2, 7):
        own_load(j)
    a(f'''s_mov_b32 s{sPar}, {XB}
          s_barrier''')
    for i in range(4):
        for m in MSG:
            a(f'v_mov_b32 v{m+i}, 0')
        a(f'v_mov_b32 v{DL+i}, 0')
    a(f'v_mov_b32 v{vKey}, 0')
    for x in tr_reads():
        a(x)
    acc_zero()
    a('s_waitcnt vmcnt(0) lgkmcnt(0)')
    a(f'''
    s_branch kb_flushA
    kb_done:
    ''')
    if STAMP:
        stamp()
        a('s_waitcnt vmcnt(0)')
        stamp()
        srd(a, S_POS, 24, 25, 0x100000, 0x1000000)
        a(f'''v_lshlrev_b32 v{T}, 2, v0
              s_lshl_b32 s{sT0}, s2, 11
              v_add_u32 v{T}, s{sT0}, v{T}
              buffer_store_dword v{vStamp}, v{T}, {sr(S_POS)}, 0 offen''')
    a(f'''
    s_waitcnt vmcnt(2)
    s_cmp_eq_u32 s{sMode}, 0
    s_cbranch_scc1 kb_exit
    s_waitcnt vmcnt(0) lgkmcnt(0)
    s_barrier
    v_and_b32 v{T+8}, 7, v0
    v_lshlrev_b32 v{T+8}, 2, v{T+8}
    v_add_u32 v{T+8}, {L_GCNT}, v{T+8}
    v_mov_b32 v{T+9}, 0
    ds_write_b32 v{T+8}, v{T+9}
    s_mov_b32 s{S_BASE}, s20
    s_mov_b32 s{S_BASE+1}, s21
    s_cmp_ge_u32 s{sI}, 4
    s_cbranch_scc1 kb_mode2
    s_lshl_b32 s{sT0}, s2, 13
    s_add_u32 s{sT0}, s{sT0}, {WS_CELL - WSO}
    v_lshl_add_u32 v{T+4}, v0, 4, s{sT0}
    v_and_b32 v{T+6}, -64, v{T+4}
    s_lshl_b32 s{sT1}, s{sI}, 2
    buffer_load_dword v{CE+4}, v{T+6}, {sr(S_WS)}, 0 offen
    buffer_load_dword v{CE}, v{T+4}, {sr(S_WS)}, s{sT1} offen
    v_lshrrev_b32 v{T+3}, 7, v0
    v_cmp_eq_u32 s[{GE}:{GE+1}], s{sQ}, v{T+3}
    v_and_b32 v{T+5}, 3, v0
    v_add_u32 v{T+5}, s{sT1}, v{T+5}
    v_lshlrev_b32 v{T+5}, 2, v{T+5}
    v_cmp_ne_u32 vcc, 0, v{T+5}
    s_and_b64 s[{GE}:{GE+1}], vcc, s[{GE}:{GE+1}]
    s_waitcnt vmcnt(0)
    v_and_b32 v{CE+4}, 0xffff, v{CE+4}
    v_cmp_lt_u32 vcc, v{T+5}, v{CE+4}
    s_and_b64 s[{GE}:{GE+1}], vcc, s[{GE}:{GE+1}]
    s_add_u32 s{sQ}, s{sQ}, 1
    s_lshr_b32 s{sT0}, s{sQ}, 2
    s_add_u32 s{sI}, s{sI}, s{sT0}
    s_and_b32 s{sQ}, s{sQ}, 3
    s_branch kb_round
    kb_mode2:
    s_cmp_lt_u32 s{sBase}, s{sLen}
    s_cbranch_scc1 kb_m2_go
    s_add_u32 s{sC}, s{sC}, 1
    s_cmp_ge_u32 s{sC}, {NCHUNK}
    s_cbranch_scc1 kb_exit
    s_lshl_b32 s{sT0}, s2, 13
    s_lshl_b32 s{sT1}, s{sC}, 6
    s_add_u32 s{sT0}, s{sT0}, s{sT1}
    s_add_u32 s{sT0}, s{sT0}, {WS_CELL}
    s_load_dword s{sT1}, s[24:25], s{sT0}
    s_waitcnt lgkmcnt(0)
    s_and_b32 s{sT2}, s{sT1}, 0xffff
    s_lshr_b32 s{sLen}, s{sT1}, 16
    s_cmp_gt_u32 s{sT2}, 64
    s_cselect_b32 s{sLen}, s{sLen}, 0
    s_mov_b32 s{sBase}, 0
    s_branch kb_mode2
    kb_m2_go:
    v_add_u32 v{T+3}, s{sBase}, v0
    v_cmp_gt_u32 s[{GE}:{GE+1}], s{sLen}, v{T+3}
    v_cmp_gt_u32 vcc, 128, v0
    s_and_b64 s[{GE}:{GE+1}], vcc, s[{GE}:{GE+1}]
    s_mov_b64 vcc, s[{GE}:{GE+1}]
    s_mul_i32 s{sT0}, s{sC}, {OVF_STRIDE}
    s_add_u32 s{sT0}, s{sT0}, {WS_OVF - WSO}
    v_lshl_add_u32 v{T+4}, v{T+3}, 2, s{sT0}
    v_mov_b32 v{T+5}, 0x40000000
    v_cndmask_b32 v{T+4}, v{T+5}, v{T+4}, vcc
    buffer_load_dword v{CE}, v{T+4}, {sr(S_WS)}, 0 offen
    s_waitcnt vmcnt(0)
    v_lshrrev_b32 v{T+3}, 16, v{CE}
    v_subrev_u32 v{T+3}, s{sNode0}, v{T+3}
    v_cmp_gt_u32 vcc, 98, v{T+3}
    s_and_b64 s[{GE}:{GE+1}], vcc, s[{GE}:{GE+1}]
    s_add_u32 s{sBase}, s{sBase}, 128
    kb_round:
    s_mov_b64 s[{GE+2}:{GE+3}], 0
    v_mov_b32 v{CE+4}, 0
    s_waitcnt lgkmcnt(0)
    s_barrier
    s_branch kb_propose
    kb_exit:
    s_endpgm
    ''')
    return L_END
```

```python
from consts import *
from gen_ka import srd

L_RING = 0
L_STG = 98304
STG_H = 16 * 528
L_TMP = L_STG + 4 * STG_H
L_GCNT = L_TMP + 3584
L_RBF = L_GCNT + 64
L_META = L_RBF + 16384
L_END = L_META + 16 * 512
assert L_RBF % 16 == 0 and L_META % 16 == 0 and L_END <= 163840
LISTCAP = 416
PADSRC = 0x100000

class RA:
    def __init__(self, start=1):
        self.n = start
    def __call__(self, k=1, align=1):
        self.n = (self.n + align - 1) // align * align
        r = self.n
        self.n += k
        return r

def vr(b, k):
    return f'v[{b}:{b+k-1}]'

def gen_kb(a, opts):
    R = RA(1)
    vSwzH, vSwzV, vAV, vAR, vAS, vBP, vKey, vOut, vSrc, vSrcB, vOH, vOV, vOne, vOwnA, vStamp = [R() for _ in range(15)]
    vAH = R(4)
    W2 = R(48, 4); WR = R(6, 2); RBF = R(4, 2)
    OWN = R(40, 4); ACC = R(16, 4)
    PHI = [R(12, 4), R(12, 4)]; WRD = R(12, 4)
    HA = R(16, 4); HB = R(16, 4)
    V = R(24, 4)
    DLT = R(8, 4); vOut2 = R(); vStgW = R(); vStgR = R(); vStgT = R(); IDN = R(2, 2)
    FD = R(2) if 'f0' in ''.join(str(v) for v in opts.values()) else None
    TR = V
    XB = 2 * STG_H
    OS = lambda j: (j + 3) % 5
    assert R.n <= 256, R.n
    RR = [HA, HB]
    DL = HA + 12; SEL = HB + 12
    MSG = [RBF, WRD, WRD + 4, WRD + 8]
    S_SV, S_OUT, S_H, S_POS, S_WS, S_BASE = 28, 32, 36, 40, 44, 48
    sW, sMask, sNode0, sMode, sI, sQ, sC, sLen, sBase = 52, 53, 54, 55, 26, 27, 3, 88, 89
    FR = 64
    GE = 80
    sGP = 90
    sTot, sTe, sGend, sGst, sG, sStA, sStB, sStC, sDma, sX = 92, 93, 94, 95, 96, 97, 98, 99, 100, 101
    s256, s512, s768 = 56, 57, 58
    sT0, sT1, sT2, sT3 = 59, 60, 61, 62
    sW2, sC8, sT4, sSl = 16, 17, 18, 19
    sOwO, sStO = sStA, sStB
    sPend, sPar = 12, 13
    sOk, sOwnN, sK8, sNeg, sGC, sTM = 8, 9, 10, 11, 14, 15
    WSO = WS_W2P
    sr = lambda b: f's[{b}:{b+3}]'
    M = f's{sMask}'
    STAMP = opts.get('stamp')
    def stamp():
        if STAMP:
            a(f'''{"s_memtime" if STAMP == "2" else "s_memrealtime"} s[22:23]
                 s_waitcnt lgkmcnt(0)
                 s_mov_b32 m0, s63
                 s_nop 1
                 v_writelane_b32 v{vStamp}, s22, m0
                 s_add_u32 s63, s63, 1
                 s_min_u32 s63, s63, 63''')
    def fstamp():
        if opts.get('fine'):
            stamp()
    a(f'''
    .globl kb_kernel
    .p2align 8
    .type kb_kernel,@function
    kb_kernel:
    s_cmp_ge_u32 s2, 256
    s_cbranch_scc1 kb_exit
    s_load_dwordx2 s[24:25], s[0:1], 80
    s_load_dwordx4 s[4:7], s[0:1], 0
    s_load_dwordx2 s[20:21], s[0:1], 64
    s_load_dwordx2 s[12:13], s[0:1], 32
    ''')
    T = PHI[0]
    U = HA
    CE = V
    tL, tN, tG = T, T + 1, T + 2
    def out_base():
        a(f'''
        v_and_b32 v{tN}, 15, v0
        v_bfe_u32 v{tG}, v0, 4, 2
        v_bfe_u32 v{T+10}, v0, 3, 3
        v_lshlrev_b32 v{T+10}, 8, v{T+10}
        v_and_b32 v{T+11}, 7, v0
        v_lshl_or_b32 v{T+10}, v{T+11}, 4, v{T+10}
        s_and_b32 s{sT2}, s{sW}, 3
        s_lshl_b32 s{sT3}, s{sT2}, 2
        s_add_u32 s{sT3}, s{sT3}, s{sNode0}
        s_lshl_b32 s{sT3}, s{sT3}, 10
        s_lshr_b32 s{sT1}, s{sW}, 2
        s_lshl_b32 s{sT4}, s{sT1}, 7
        s_add_u32 s{sT3}, s{sT3}, s{sT4}
        v_add_u32 v{vOut}, s{sT3}, v{T+10}
        s_cmp_eq_u32 s{sT2}, 3
        s_cselect_b32 s{sT3}, 0x40000000, 0
        v_add_u32 v{vOut2}, s{sT3}, v{vOut}
        s_mul_i32 s{sT1}, s{sT1}, {STG_H}
        s_add_u32 s{sT1}, s{sT1}, {L_STG}
        s_lshl_b32 s{sT3}, s{sT2}, 5
        s_add_u32 s{sT3}, s{sT3}, s{sT1}
        v_mul_u32_u24 v{T+10}, 528, v{tN}
        v_lshl_add_u32 v{T+10}, v{tG}, 3, v{T+10}
        v_add_u32 v{vStgW}, s{sT3}, v{T+10}
        v_bfe_u32 v{T+10}, v0, 2, 4
        v_mul_u32_u24 v{T+10}, 528, v{T+10}
        v_and_b32 v{T+11}, 3, v0
        v_lshl_add_u32 v{T+10}, v{T+11}, 3, v{T+10}
        v_add_u32 v{vStgT}, s{sT3}, v{T+10}
        v_lshlrev_b32 v{T+10}, 2, v{tG}
        v_sub_u32 v{T+10}, v{tN}, v{T+10}
        v_mov_b32 v{T+11}, 0x3f80
        v_mov_b32 v{T+12}, 0x3f800000
        v_cmp_eq_u32 vcc, 0, v{T+10}
        v_cndmask_b32 v{IDN}, 0, v{T+11}, vcc
        v_cmp_eq_u32 vcc, 1, v{T+10}
        v_cndmask_b32 v{IDN}, v{IDN}, v{T+12}, vcc
        v_cmp_eq_u32 vcc, 2, v{T+10}
        v_cndmask_b32 v{IDN+1}, 0, v{T+11}, vcc
        v_cmp_eq_u32 vcc, 3, v{T+10}
        v_cndmask_b32 v{IDN+1}, v{IDN+1}, v{T+12}, vcc
        s_mul_i32 s{sT3}, s{sT2}, {4*528}
        s_add_u32 s{sT3}, s{sT3}, s{sT1}
        s_add_u32 s{sT3}, s{sT3}, {XB}
        v_bfe_u32 v{T+10}, v0, 5, 1
        v_mul_u32_u24 v{T+10}, 528, v{T+10}
        v_and_b32 v{T+11}, 31, v0
        v_lshl_add_u32 v{T+10}, v{T+11}, 4, v{T+10}
        v_add_u32 v{vStgR}, s{sT3}, v{T+10}
        ''')
    NTO = ' nt' if opts.get('ntown', '0') == '1' else ''
    NTS = ' nt sc1' if opts.get('ntst', '1') == '1' else ''
    fl_ = lambda k: (' ' + opts[k].replace('+', ' ')) if opts.get(k) else ''
    if opts.get('kbs'): NTS = fl_('kbs')
    if opts.get('kbo'): NTO = fl_('kbo')
    GV, GH = fl_('gv'), fl_('gh')
    def own_ins(j, flags, so=sT3):
        return [f'buffer_load_dwordx4 {vr(OWN+8*OS(j)+4*b,4)}, v{[vOut, vOut2][b]}, {sr(S_BASE)}, s{so} offen offset:{2048*b}{flags}' for b in range(2)]
    def own_load(j, flags=None):
        a(f's_mov_b32 s{sT3}, {14336*j}')
        for x in own_ins(j, NTO if flags is None else flags):
            a(x)
    def own01(t):
        a(f'v_subrev_u32 v{t}, {XB}, v{vStgR}')
        for j in range(2):
            for b in range(2):
                a(f'ds_write_b128 v{t}, {vr(OWN+8*OS(j)+4*b,4)} offset:{XB*j+1056*b}')
    def tr_reads():
        return [f'ds_read_b64_tr_b16 {vr(TR+2*c,2)}, v{vStgT} offset:{128*c}' for c in range(4)]
    def toggle():
        a(f'''v_add_u32 v{vStgW}, s{sPar}, v{vStgW}
              v_add_u32 v{vStgT}, s{sPar}, v{vStgT}
              v_subrev_u32 v{vStgR}, s{sPar}, v{vStgR}
              s_sub_u32 s{sPar}, 0, s{sPar}''')
    a(f'''
    v_lshrrev_b32 v{T+3}, 6, v0
    v_readfirstlane_b32 s{sW}, v{T+3}
    s_lshl_b32 s{sT0}, s2, 13
    s_add_u32 s{sT0}, s{sT0}, {WS_CELL - WSO}
    v_lshl_add_u32 v{T+4}, v0, 4, s{sT0}
    s_mul_i32 s{sNode0}, s2, 98
    s_mov_b32 s63, 0
    ''')
    a('s_waitcnt lgkmcnt(0)')
    stamp()
    srd(a, S_WS, 24, 25, WS_OVF + OVF_BYTES - WSO, WSO)
    a(f'''
    buffer_load_dwordx4 {vr(CE,4)}, v{T+4}, {sr(S_WS)}, 0 offen
    v_and_b32 v{tL}, 63, v0
    v_lshlrev_b32 v{CE+7}, 4, v{tL}
    v_lshlrev_b32 v{CE+8}, 3, v{tL}
    s_mul_i32 s{sW2}, s{sW}, 12288
    s_mul_i32 s{sT2}, s{sW}, 1536
    s_add_u32 s{sT2}, s{sT2}, {WS_WRP - WSO}
    ''')
    srd(a, S_BASE, 4, 5, 25600000)
    srd(a, S_SV, 4, 5, 25600000)
    srd(a, S_OUT, 20, 21, 25600000)
    srd(a, S_H, 24, 25, 6400000, WS_H)
    srd(a, S_POS, 6, 7, 150000)
    VM = []
    def wbatch(first):
        lab = 'kb_wb%d' % first
        a(f'''s_bitcmp{1 if not first else 0}_b32 s2, {opts.get('rotbit', 3)}
              s_cbranch_scc1 {lab}_1''')
        for h in range(2):
            a(f's_add_u32 s{sT1}, s{sW2}, {6144*h}')
            for i in range(6):
                if i == 4:
                    a(f's_add_u32 s{sT1}, s{sT1}, 4096')
                a(f'buffer_load_dwordx4 {vr(W2+4*(6*h+i),4)}, v{CE+7}, {sr(S_WS)}, s{sT1} offen offset:{1024*(i%4)}')
            if h == 0:
                a(f'''s_branch {lab}_e
                      {lab}_1:''')
        a(f'{lab}_e:')
        VM.extend(['w'] * 6)
    def wr_load():
        for i in range(3):
            a(f'buffer_load_dwordx2 {vr(WR+2*i,2)}, v{CE+8}, {sr(S_WS)}, s{sT2} offen offset:{512*i}')
        VM.extend(['w'] * 3)
    SRC3 = V + 12
    def dma_addr(srcb):
        o = []
        if opts.get('fakesrc'):
            o.append(f'v_and_b32 v{srcb}, {opts["fakesrc"]}, v{srcb}')
        o += [f'v_lshl_add_u32 v{vOH}, v{srcb}, 8, v{vSwzH}', f'v_lshl_add_u32 v{vOV}, v{srcb}, 10, v{vSwzV}']
        return o
    def dma_piece(k):
        if opts.get('nodma'):
            return [f's_mov_b32 m0, s{sDma}']
        if k == 0:
            return [f's_mov_b32 m0, s{sDma}', f'buffer_load_dwordx4 v{vOH}, {sr(S_H)}, 0 offen{GH} lds']
        o = [f's_add_u32 m0, s{sDma}, {1024*k}', f'buffer_load_dwordx4 v{vOV}, {sr(S_SV)}, s{[0, s256, s512, s768][k]} offen{GV} lds']
        if k == 3:
            o += [f's_add_u32 s{sDma}, s{sDma}, 0x8000', f's_cmp_ge_u32 s{sDma}, 0x18000',
                  f's_cselect_b32 s{sT4}, 0x18000, 0', f's_sub_u32 s{sDma}, s{sDma}, s{sT4}']
        return o
    def item_groups(it):
        k, j = it[0], int(it[1])
        if k == 'o':
            g = [[x] for x in own_ins(j, NTO)]
            g[0].insert(0, f's_mov_b32 s{sT3}, {14336*j}')
        elif k == 'f':
            FSH = int(opts.get('fsh', 7))
            off = int(opts.get('fo', 28672)) + (512 << FSH) * j
            g = [[f's_mul_i32 s{sT3}, s2, 100352', f's_add_u32 s{sT3}, s{sT3}, {off}',
                  f'v_lshlrev_b32 v{FD+j}, {FSH}, v0', f'v_min_u32 v{FD+j}, {100352 - 128 - off}, v{FD+j}',
                  f'buffer_load_dword v{FD+j}, v{FD+j}, {sr(S_BASE)}, s{sT3} offen{fl_("kbf")}']]
        else:
            nd = opts.pop('nodma', None)
            g = [dma_piece(q) for q in range(4)]
            if nd:
                opts['nodma'] = nd
            g[0] = dma_addr(SRC3 + j) + g[0]
        return [(it, x) for x in g]
    def emit_items(items):
        for it in items:
            if it == 't':
                a(f'''kb_touch1__kb_t1__{opts.get('tend', 'kb_loopA')}__{sW}:
                      kb_t1:''')
            elif it == 'w0':
                wbatch(0)
            elif it == 'w1':
                wbatch(1)
            elif it == 'wr':
                wr_load()
            else:
                for tag, g in item_groups(it):
                    for x in g:
                        a(x)
                    VM.append(tag)
    def vm_after(tags):
        last = max(i for i, t in enumerate(VM) if t in tags)
        return len(VM) - 1 - last
    P1 = opts.get('p1', 'w0,wr').split(',')
    P1B = [x for x in opts.get('p1b', '').split(',') if x]
    P2 = opts.get('p2', 'd0,w1').split(',')
    P3 = opts.get('p3', 'o0,o1,d1').split(',')
    NPRE = 1 + max(int(x[1]) for x in P1 + P1B + P2 + P3 if x[0] == 'o')
    OBF = any(x[0] == 'o' for x in P1)
    assert not any(x[0] in 'd' for x in P1) and not any(x[0] in 'dw' for x in P1B)
    assert 2 <= NPRE <= 4 and sorted(x for x in P1 + P1B + P2 + P3 if x[0] == 'o') == ['o%d' % i for i in range(NPRE)]
    if OBF:
        out_base()
        a(f'''s_mul_i32 s{sT2}, s{sW}, 1536
              s_add_u32 s{sT2}, s{sT2}, {WS_WRP - WSO}''')
    VM.append('cell')
    a(f'''
    v_and_b32 v{T+8}, 7, v0
    v_lshlrev_b32 v{T+8}, 2, v{T+8}
    v_add_u32 v{T+8}, {L_GCNT}, v{T+8}
    v_mov_b32 v{T+9}, 0
    ds_write_b32 v{T+8}, v{T+9}
    s_waitcnt lgkmcnt(0)
    s_barrier
    s_load_dwordx8 s[{FR}:{FR+7}], s[12:13], 0
    ''')
    emit_items(P1)
    if not OBF:
        out_base()
    emit_items(P1B)
    a(f'''
    s_mov_b32 s{sMask}, 0xffff0000
    s_mov_b32 s{sMode}, 0
    s_movk_i32 s{s256}, 256
    s_movk_i32 s{s512}, 512
    s_movk_i32 s{s768}, 768
    s_mov_b32 s{sK8}, 0x80008000
    s_mov_b32 s{sC8}, 0x8000
    s_mul_i32 s{sNeg}, s2, {-147*98}
    s_mov_b32 s{sGC}, {L_GCNT}
    s_mov_b32 s{sTM}, {L_TMP}
    v_mov_b32 v{vOne}, 0x3f803f80
    s_lshr_b32 s{sT0}, s{sW}, 1
    s_lshl_b32 s{sT1}, s{sT0}, 2
    v_add_u32 v{T+3}, s{sT1}, v{tG}
    v_xor_b32 v{T+3}, v{T+3}, v{tN}
    v_lshlrev_b32 v{vSwzH}, 4, v{T+3}
    v_and_b32 v{T+3}, 1, v{tG}
    v_lshl_or_b32 v{T+3}, v{T+3}, 1, s{sT1}
    v_xor_b32 v{T+3}, v{T+3}, v{tN}
    v_lshlrev_b32 v{vSwzV}, 4, v{T+3}
    v_and_b32 v{T+5}, 3, v0
    v_lshlrev_b32 v{T+5}, 2, v{T+5}
    v_cmp_ne_u32 s[{GE+2}:{GE+3}], 0, v{T+5}
    ''')
    if opts.get('pret', '0') == '1':
        a(f'''s_mov_b32 s{sOwnN}, 99
              s_cmp_ge_u32 s{sW}, {opts.get('bfrom', 4)}
              s_cbranch_scc1 kb_ownB
              s_branch kb_ownA''')
    a('kb_pret:')
    stamp()
    a(f'''
    s_waitcnt vmcnt({vm_after(['cell'])}) lgkmcnt(0)
    v_and_b32 v{CE+4}, 0xffff, v{CE}
    v_mov_b32_dpp v{CE+4}, v{CE+4} quad_perm:[0,0,0,0] row_mask:0xf bank_mask:0xf
    ''')
    for k in range(7, -1, -1):
        a(f'''s_and_b32 s{FR+2*k+1}, s{FR+k}, s{sMask}
              s_lshl_b32 s{FR+2*k}, s{FR+k}, 16''')
    a(f'''
    v_sub_u32 v{CE+5}, v{CE+4}, v{T+5}
    v_cmp_lt_i32 vcc, 0, v{CE+5}
    s_and_b64 s[{GE}:{GE+1}], vcc, s[{GE+2}:{GE+3}]
    v_cmp_lt_i32 s[{GE+2}:{GE+3}], 16, v{CE+5}
    kb_propose:
    v_mov_b32 v{T+9}, 1
    v_mov_b32 v{CE+6}, 147
    v_and_b32 v{tL}, 63, v0
    v_lshlrev_b32 v{CE+7}, 4, v{tL}
    v_lshlrev_b32 v{CE+8}, 3, v{tL}
    ''')
    stamp()
    def wload(n):
        pass
    def prop(lo, nw):
        for q in range(2):
            a(f'''
            v_lshrrev_b32 v{U+q}, 16, v{CE+lo+q}
            v_mad_u32_u24 v{U+q}, v{U+q}, v{CE+6}, s{sNeg}
            v_lshrrev_b32 v{U+q}, 11, v{U+q}
            v_lshl_add_u32 v{U+4+q}, v{U+q}, 2, s{sGC}
            ''')
        for q in range(2):
            a(f'''s_mov_b64 exec, s[{GE+2*q}:{GE+2*q+1}]
                  ds_add_rtn_u32 v{U+8+q}, v{U+4+q}, v{T+9}''')
        a('s_mov_b64 exec, -1')
        for q in range(2):
            a(f'v_lshl_add_u32 v{U+q}, v{U+q}, 9, s{sTM}')
        wload(nw)
        a('s_waitcnt lgkmcnt(0)')
        for q in range(2):
            a(f'''v_min_u32 v{U+8+q}, 0x7f, v{U+8+q}
                  v_lshl_add_u32 v{U+q}, v{U+8+q}, 2, v{U+q}''')
        for q in range(2):
            a(f'''s_mov_b64 exec, s[{GE+2*q}:{GE+2*q+1}]
                  ds_write_b32 v{U+q}, v{CE+lo+q}''')
        a('s_mov_b64 exec, -1')
    W1N = W2N = W3N = 0
    prop(0, W1N)
    a(f'''
    v_cmp_lt_u32 vcc, 32, v{CE+4}
    s_cbranch_vccz kb_prop_done
    v_cmp_lt_i32 s[{GE}:{GE+1}], 32, v{CE+5}
    v_cmp_lt_i32 s[{GE+2}:{GE+3}], 48, v{CE+5}
    ''')
    prop(2, 0)
    a(f'''
    v_cmp_lt_u32 vcc, 64, v{CE+4}
    v_mov_b32 v{U}, {L_GCNT + 28}
    s_mov_b64 exec, vcc
    ds_add_u32 v{U}, v{T+9}
    s_mov_b64 exec, -1
    kb_prop_done:
    v_mov_b32 v{U}, {L_GCNT}
    s_waitcnt lgkmcnt(0)
    s_barrier
    ds_read_b128 {vr(U+4,4)}, v{U}
    ds_read_b128 {vr(U+8,4)}, v{U} offset:16
    ''')
    wload(W2N)
    tP = T + 3
    a(f'''
    v_and_b32 v{tN}, 15, v0
    v_bfe_u32 v{tG}, v0, 4, 2
    v_lshrrev_b32 v{T+4}, 2, v{tL}
    v_and_b32 v{T+5}, 3, v{tL}
    s_lshl_b32 s{sT0}, s{sW}, 2
    v_add_u32 v{T+6}, s{sT0}, v{T+5}
    v_lshl_add_u32 v{tP}, v{T+4}, 5, v{T+6}
    v_lshl_add_u32 v{T+7}, v{tP}, 2, s{sTM}
    s_waitcnt lgkmcnt(0)
    ''')
    stamp()
    for j in range(8):
        a(f'v_readfirstlane_b32 s{GE+j}, v{U+4+j}')
    sA, sB, sD = sStA, sStB, sStC
    a(f'''
    s_max_u32 s{sA}, s{GE}, s{GE+1}
    s_max_u32 s{sB}, s{GE+2}, s{GE+3}
    s_max_u32 s{sD}, s{GE+4}, s{GE+5}
    s_max_u32 s{sA}, s{sA}, s{GE+6}
    s_max_u32 s{sB}, s{sB}, s{sD}
    s_max_u32 s{sA}, s{sA}, s{sB}
    s_mov_b32 s{sTot}, 0
    ''')
    for j in range(7):
        a(f's_add_u32 s{sTot}, s{sTot}, s{GE+j}')
        if j < 6:
            a(f'''s_lshl_b32 s{sB}, s{GE+j}, 2
                  s_sub_u32 s{sB}, 512, s{sB}
                  v_cmpx_le_u32 vcc, s{sTot}, v{tP}
                  v_add_u32 v{T+7}, s{sB}, v{T+7}''')
        a(f's_mov_b32 s{GE+j}, s{sTot}')
    a(f'''
    s_mov_b64 exec, -1
    ds_read_b32 v{T+8}, v{T+7}
    ''')
    wload(W3N)
    a(f'''
    s_cmp_gt_u32 s{sA}, 128
    s_cselect_b32 s{GE+7}, 1, s{GE+7}
    s_cmp_gt_u32 s{sTot}, {LISTCAP}
    s_cselect_b32 s{GE+7}, 1, s{GE+7}
    s_cmp_lg_u32 s{GE+7}, 0
    s_cbranch_scc1 kb_go_slow
    s_cmp_eq_u32 s{sTot}, 0
    s_cbranch_scc1 kb_empty
    ''')
    a(f'''
    s_lshl_b32 s{sT0}, s{GE+1}, 9
    s_or_b32 s{sGP}, s{GE}, s{sT0}
    s_lshl_b32 s{sT0}, s{GE+2}, 18
    s_or_b32 s{sGP}, s{sGP}, s{sT0}
    s_lshl_b32 s{sT0}, s{GE+3}, 27
    s_or_b32 s{sGP}, s{sGP}, s{sT0}
    s_lshr_b32 s{sGP+1}, s{GE+3}, 5
    s_lshl_b32 s{sT0}, s{GE+4}, 4
    s_or_b32 s{sGP+1}, s{sGP+1}, s{sT0}
    s_lshl_b32 s{sT0}, s{GE+5}, 13
    s_or_b32 s{sGP+1}, s{sGP+1}, s{sT0}
    s_lshl_b32 s{sT0}, s{GE+6}, 22
    s_or_b32 s{sGP+1}, s{sGP+1}, s{sT0}
    v_cmp_gt_u32 vcc, s{sTot}, v{tP}
    v_mov_b32 v{T+9}, {PADSRC}
    v_mov_b32 v{T+10}, 0x3fff
    v_lshlrev_b32 v{vBP}, 2, v{tG}
    s_waitcnt lgkmcnt(0)
    v_and_b32 v{T+11}, 0xffff, v{T+8}
    v_lshrrev_b32 v{T+12}, 16, v{T+8}
    v_cndmask_b32 v{vSrc}, v{T+9}, v{T+11}, vcc
    v_cndmask_b32 v{T+13}, v{T+9}, v{T+12}, vcc
    ds_bpermute_b32 v{SRC3}, v{vBP}, v{vSrc}
    ds_bpermute_b32 v{SRC3+1}, v{vBP}, v{vSrc} offset:16
    ds_bpermute_b32 v{vSrcB}, v{vBP}, v{vSrc} offset:32
    v_add_u32 v{vBP}, 48, v{vBP}
    v_mul_u32_u24 v{T+14}, 6, v{vSrc}
    v_and_b32 v{T+14}, -4, v{T+14}
    v_mul_u32_u24 v{T+15}, 6, v{T+13}
    v_and_b32 v{T+15}, -4, v{T+15}
    ''')
    wload(15)
    a(f'''
    buffer_load_dwordx2 {vr(T+16,2)}, v{T+14}, {sr(S_POS)}, 0 offen
    buffer_load_dwordx2 {vr(T+18,2)}, v{T+15}, {sr(S_POS)}, 0 offen
    v_subrev_u32 v{T+12}, s{sNode0}, v{T+12}
    v_cndmask_b32 v{T+10}, v{T+10}, v{T+12}, vcc
    v_lshlrev_b32 v{T+10}, 1, v{T+10}
    s_lshl_b32 s{sDma}, s{sW}, 12
    s_waitcnt lgkmcnt(1)
    ''')
    VM.extend(['pos', 'pos'])
    a(f'''s_mul_i32 s{sT2}, s{sW}, 1536
          s_add_u32 s{sT2}, s{sT2}, {WS_WRP - WSO}''')
    emit_items(P2)
    if opts.get('p2bar', '1') == '1':
        a('s_barrier')
    stamp()
    a(f'''
    v_lshrrev_b32 v{U}, 2, v{tN}
    v_lshlrev_b32 v{U}, 13, v{U}
    v_and_b32 v{U+1}, 3, v{tN}
    v_lshl_or_b32 v{U}, v{U+1}, 8, v{U}
    v_xor_b32 v{U+1}, v{tG}, v{tN}
    ''')
    for s in range(4):
        a(f'''v_xor_b32 v{U+2}, {4*s}, v{U+1}
              v_lshl_or_b32 v{vAH+s}, v{U+2}, 4, v{U}''')
    a(f'''
    v_bfe_u32 v{U}, v{tL}, 3, 1
    v_lshl_or_b32 v{U+1}, v{tG}, 1, v{U}
    v_xor_b32 v{U+1}, s{sW}, v{U+1}
    v_lshlrev_b32 v{U+1}, 5, v{U+1}
    v_lshl_or_b32 v{U+1}, v{U}, 8, v{U+1}
    v_lshl_or_b32 v{U+1}, v{tG}, 13, v{U+1}
    v_lshl_or_b32 v{U+1}, v{T+5}, 3, v{U+1}
    v_and_b32 v{U+2}, 4, v{tL}
    v_xor_b32 v{U+2}, 4, v{U+2}
    v_lshl_or_b32 v{vAV}, v{U+2}, 18, v{U+1}
    v_lshlrev_b32 v{vAR}, 3, v{tL}
    v_add_u32 v{vAR}, {L_RBF}, v{vAR}
    v_lshlrev_b32 v{vAS}, 5, v{tG}
    v_add_u32 v{vAS}, {L_META}, v{vAS}
    v_lshlrev_b32 v{vKey}, 1, v{tN}
    v_lshl_or_b32 v{vKey}, v{vKey}, 16, v{vKey}
    ''')
    tWR, tWS, tWD = T + 20, T + 21, T + 22
    a(f'''
    s_and_b32 s{sT0}, s{sW}, 1
    s_lshl_b32 s{sT2}, s{sT0}, 3
    s_lshl_b32 s{sT0}, s{sT0}, 9
    s_lshr_b32 s{sT1}, s{sW}, 1
    s_lshl_b32 s{sT1}, s{sT1}, 5
    s_add_u32 s{sT2}, s{sT2}, s{sT1}
    s_add_u32 s{sT2}, s{sT2}, {L_META + 384}
    s_add_u32 s{sT0}, s{sT0}, s{sT1}
    s_add_u32 s{sT0}, s{sT0}, {L_RBF}
    v_lshlrev_b32 v{tWR}, 10, v{T+4}
    v_lshl_add_u32 v{tWR}, v{T+5}, 3, v{tWR}
    v_add_u32 v{tWR}, s{sT0}, v{tWR}
    v_lshlrev_b32 v{tWS}, 9, v{T+4}
    v_lshl_add_u32 v{tWD}, v{T+5}, 1, v{tWS}
    v_add_u32 v{tWD}, s{sT2}, v{tWD}
    v_lshl_add_u32 v{tWS}, v{T+6}, 2, v{tWS}
    v_add_u32 v{tWS}, {L_META}, v{tWS}
    ds_write_b16 v{tWD}, v{T+10}
    v_lshlrev_b32 v{T+14}, 4, v{vSrc}
    v_lshlrev_b32 v{T+15}, 4, v{T+13}
    s_waitcnt vmcnt({vm_after(['pos'])})
    ''')
    stamp()
    real_a = a
    p3q = []
    for it in P3:
        p3q += item_groups(it)
    cnt = [0]
    GAP = int(opts.get('p3gap', 8))
    def a(txt):
        for ln in txt.split('\n'):
            ln = ln.strip()
            if not ln:
                continue
            real_a(ln)
            cnt[0] += 1
            if cnt[0] % GAP == 0 and p3q:
                tag, g = p3q.pop(0)
                for x in g:
                    real_a(x)
                VM.append(tag)
    x, y, z = U, U + 1, U + 2
    a(f'''
    v_alignbit_b32 v{U+8}, v{T+17}, v{T+16}, v{T+14}
    v_lshrrev_b32 v{U+9}, v{T+14}, v{T+17}
    v_alignbit_b32 v{U+10}, v{T+19}, v{T+18}, v{T+15}
    v_lshrrev_b32 v{U+11}, v{T+15}, v{T+19}
    v_lshlrev_b32 v{x}, 16, v{U+8}
    v_and_b32 v{y}, {M}, v{U+8}
    v_lshlrev_b32 v{z}, 16, v{U+9}
    v_lshlrev_b32 v{U+3}, 16, v{U+10}
    v_and_b32 v{U+4}, {M}, v{U+10}
    v_lshlrev_b32 v{U+5}, 16, v{U+11}
    v_sub_f32 v{x}, v{x}, v{U+3}
    v_sub_f32 v{y}, v{y}, v{U+4}
    v_sub_f32 v{z}, v{z}, v{U+5}
    v_cvt_pk_bf16_f32 v{x}, 0, v{x}
    v_cvt_pk_bf16_f32 v{y}, 0, v{y}
    v_cvt_pk_bf16_f32 v{z}, 0, v{z}
    v_mul_f32 v{U+3}, v{x}, v{x}
    v_mul_f32 v{U+4}, v{y}, v{y}
    v_mul_f32 v{U+5}, v{z}, v{z}
    v_cvt_pk_bf16_f32 v{U+3}, 0, v{U+3}
    v_cvt_pk_bf16_f32 v{U+4}, 0, v{U+4}
    v_cvt_pk_bf16_f32 v{U+5}, 0, v{U+5}
    v_add_f32 v{U+3}, v{U+3}, v{U+4}
    v_add_f32 v{U+3}, v{U+3}, v{U+5}
    v_cvt_pk_bf16_f32 v{U+3}, 0, v{U+3}
    v_add_f32 v{U+3}, 0x322bcc77, v{U+3}
    v_cvt_pk_bf16_f32 v{U+3}, 0, v{U+3}
    v_sqrt_f32 v{U+3}, v{U+3}
    v_cvt_pk_bf16_f32 v{U+3}, 0, v{U+3}
    v_rcp_f32 v{U+4}, v{U+3}
    ''')
    d, rd = U + 3, U + 4
    X = U + 12
    P = T + 24
    for k in range(16):
        a(f'v_mul_f32 v{X+k}, s{FR+k}, v{d}')
    a(f'''
    v_mul_f32 v{U+5}, 0x40490fdb, v{d}
    v_mul_f32 v{x}, v{x}, v{rd}
    v_cvt_pk_bf16_f32 v{U+5}, 0, v{U+5}
    v_mul_f32 v{y}, v{y}, v{rd}
    v_mul_f32 v{U+5}, 0x3e4ccccd, v{U+5}
    v_mul_f32 v{z}, v{z}, v{rd}
    v_cvt_pk_bf16_f32 v{U+5}, 0, v{U+5}
    v_cvt_pk_bf16_f32 v{x}, 0, v{x}
    v_mul_f32 v{U+5}, 0.15915494, v{U+5}
    v_cvt_pk_bf16_f32 v{y}, 0, v{y}
    v_cos_f32 v{U+5}, v{U+5}
    v_cvt_pk_bf16_f32 v{z}, 0, v{z}
    v_cvt_pk_bf16_f32 v{U+5}, 0, v{U+5}
    ds_write_b32 v{tWS}, v{x}
    v_add_f32 v{U+5}, 1.0, v{U+5}
    ds_write_b32 v{tWS}, v{y} offset:128
    v_cvt_pk_bf16_f32 v{U+5}, 0, v{U+5}
    ds_write_b32 v{tWS}, v{z} offset:256
    v_mul_f32 v{U+5}, 0.5, v{U+5}
    v_cmp_gt_f32 vcc, 0x40a00000, v{d}
    v_cndmask_b32 v{U+5}, 0, v{U+5}, vcc
    v_mul_f32 v{rd}, v{rd}, v{U+5}
    ''')
    for k in range(16):
        a(f'v_cvt_pk_bf16_f32 v{X+k}, 0, v{X+k}')
    for k in range(16):
        a(f'v_mul_f32 v{X+k}, 0.15915494, v{X+k}')
    for k in range(16):
        a(f'v_sin_f32 v{X+k}, v{X+k}')
    for k in range(16):
        a(f'v_mul_f32 v{X+k}, v{X+k}, v{rd}')
    for k in range(8):
        a(f'v_cvt_pk_bf16_f32 v{P+k}, v{X+2*k}, v{X+2*k+1}')
    for g in range(4):
        a(f'ds_write_b64 v{tWR}, {vr(P+2*g,2)} offset:{128*g}')
    a = real_a
    for tag, g in p3q:
        for x in g:
            a(x)
        VM.append(tag)
    def acc_zero():
        for i in range(16):
            a(f'v_mov_b32 v{ACC+i}, 0')
    nA = vm_after(['d1'])
    assert nA % 2 == 0
    tail_blocks = []
    a(f'''
    s_mov_b32 s{sG}, 0
    s_and_b32 s{sGend}, s{sGP}, 0x1ff
    s_mov_b32 s{sTe}, 32
    s_mov_b32 s{sOwO}, {14336*(NPRE-1)}
    s_mov_b32 s{sStO}, 0x40000000
    s_mov_b32 s{sX}, 0x8000
    s_mov_b32 s{sSl}, 0
    s_mov_b32 s{sPar}, {XB}
    s_mov_b32 s{sOk}, 0
    s_mov_b32 s{sOwnN}, {NPRE}
    s_cmp_lg_u32 s{sMode}, 0
    s_cbranch_scc1 kb_slow_own
    ''')
    if vm_after(['o0', 'o1']) < vm_after(['pos']):
        a(f's_waitcnt vmcnt({vm_after(["o0", "o1"])})')
    own01(T)
    a('kb_slow_ownr:')
    def blk_so():
        a('''kb_slow_own:
             s_waitcnt vmcnt(0)''')
        for j in range(2):
            own_load(j, ' sc0 sc1')
        a('s_waitcnt vmcnt(0)')
        own01(T)
        a('s_waitcnt lgkmcnt(0)')
        for j in range(2, 7):
            own_load(j, ' sc0 sc1')
        a(f'''s_mov_b32 s{sOwnN}, 7
              s_mov_b32 s{sOk}, 0x7fffffff
              s_waitcnt vmcnt(0)
              s_branch kb_slow_ownr''')
    tail_blocks.append(blk_so)
    stamp()
    acc_zero()
    a(f'''
    s_cmp_ge_u32 s{sW}, {opts.get('bfrom', 4)}
    s_waitcnt vmcnt({vm_after(['d0', 'w'])}) lgkmcnt(0)
    s_cbranch_scc1 kb_B_entry
    ''')
    PG = int(opts.get('pg', 2)); PS = int(opts.get('ps', 3))
    PMD = {'A': int(opts.get('pma', 0)), 'B': int(opts.get('pmb', 1))}
    SMEND = opts.get('smend', '1') == '1'

    class LQ:
        def __init__(self):
            self.q = []
        def issue(self, tag, txt):
            if len(self.q) >= 15:
                a('s_waitcnt lgkmcnt(8)'); self.q = self.q[-8:]
            a(txt); self.q.append(tag)
        def need(self, *tags):
            idx = [i for i, t in enumerate(self.q) if t in tags]
            if not idx:
                return
            last = max(idx)
            a(f's_waitcnt lgkmcnt({len(self.q)-1-last})')
            self.q = self.q[last + 1:]
    def gemm(t, s):
        H = HA if t == 0 else HB
        out = []
        for b in range(3):
            c = '0' if s == 0 else vr(PHI[t] + 4 * b, 4)
            out.append(f'v_mfma_f32_16x16x32_bf16 {vr(PHI[t]+4*b,4)}, {vr(H+4*s,4)}, {vr(W2+16*b+4*s,4)}, {c}')
        return out
    def wf(t):
        return [f'v_mfma_f32_16x16x16_bf16 {vr(WRD+4*b,4)}, {vr(RBF+2*t,2)}, {vr(WR+2*b,2)}, 0' for b in range(3)]
    def sm(k, z=False):
        a(f'v_mfma_f32_16x16x32_bf16 {vr(ACC+4*k,4)}, {vr(MSG[k],4)}, {vr(SEL,4)}, {"0" if z else vr(ACC+4*k,4)}')
    def selb():
        for i in range(4):
            a(f'v_xor_b32 v{SEL+i}, v{DL+i}, v{vKey}')
        for i in range(4):
            a(f'v_pk_mad_i16 v{SEL+i}, v{SEL+i}, s{sK8}, v{vOne} clamp')
    def vreads(t):
        return [('V%d' % t, f'ds_read_b64_tr_b16 {vr(V+12*t+4*c+2*p,2)}, v{vAV} offset:{4096*t+1024*(c+1)+512*p}') for c in range(3) for p in range(2)]
    def issue_head(X_, lq):
        if X_ == 'B0':
            a(f'''s_cmp_ge_u32 s{sOwnN}, 7
                  s_cbranch_scc1 kb_ownrB0
                  s_add_u32 s{sOwnN}, s{sOwnN}, 1
                  s_add_u32 s{sOwO}, s{sOwO}, 14336''')
            for x in own_ins(NPRE, NTO, sOwO):
                a(x)
            a('kb_ownrB0:')
        else:
            a(f'''
            s_cmp_lt_u32 s{sOwnN}, 7
            s_cbranch_scc1 kb_own{X_}
            kb_ownr{X_}:
            ''')
        for x in dma_addr(vSrcB):
            a(x)
        p0 = dma_piece(0)
        a(p0[0])
        lq.issue('bp', f'ds_bpermute_b32 v{vSrcB}, v{vBP}, v{vSrc}')
        for x in p0[1:]:
            a(x)
        a(f'v_add_u32 v{vBP}, 16, v{vBP}')
    def own_blk(X_):
        a(f'''kb_own{X_}:
              s_add_u32 s{sOwnN}, s{sOwnN}, 1
              s_add_u32 s{sOwO}, s{sOwO}, 14336''')
        for j in range(NPRE + (X_ == 'B'), 7):
            a(f'''s_cmp_lg_u32 s{sOwnN}, {j+1}
                  s_cbranch_scc1 kb_own{X_}_{j+1}''')
            for x in own_ins(j, NTO, sOwO):
                a(x)
            a(f'''s_branch kb_ownr{X_}
                  kb_own{X_}_{j+1}:''')
        a('s_branch kb_pret')
    p0_, p1_ = PHI
    DSL = [int(x) for x in opts.get('dsl', '6,13,20').split(',')]
    def G(X_, with_issue, lq):
        for s in range(4):
            lq.issue('HA%d' % s, f'ds_read_b128 {vr(HA+4*s,4)}, v{vAH+s}')
        lq.issue('B0', f'ds_read_b64 {vr(RBF,2)}, v{vAR}')
        if with_issue:
            issue_head(X_, lq)
        mf = []
        for s in range(4):
            mf += [(m, 'HA%d' % s) for m in gemm(0, s)]
        mf += [(m, 'B0') for m in wf(0)]
        for s in range(4):
            mf += [(m, 'B1') for m in gemm(1, s)]
        mf += [(m, 'B1') for m in wf(1)]
        ls = {i: [] for i in range(30)}
        for s in range(4):
            ls[s].append(('HB%d' % s, f'ds_read_b128 {vr(HB+4*s,4)}, v{vAH+s} offset:4096'))
        ls[4].append(('B1', f'ds_read_b64 {vr(RBF+2,2)}, v{vAR} offset:512'))
        for i, x in enumerate(vreads(0)):
            ls[5 + i].append(x)
        for c in range(3):
            ls[12 + c].append(('R0', f'ds_read_b128 {vr(RR[0]+4*c,4)}, v{vAS} offset:{128*c}'))
        for i, x in enumerate(vreads(1)):
            ls[15 + i].append(x)
        ls[21].append(('DL', f'ds_read_b128 {vr(DL,4)}, v{vAS} offset:384'))
        for c in range(3):
            ls[24 + c].append(('R1', f'ds_read_b128 {vr(RR[1]+4*c,4)}, v{vAS} offset:{128*c+16}'))
        vs = {i: [] for i in range(30)}
        for s in range(4):
            vs[4 + s].append(f'v_add_u32 v{vAH+s}, s{sX}, v{vAH+s}')
        vs[8].append(f'v_add_u32 v{vAR}, 1024, v{vAR}')
        late = [f'v_mul_f32 v{p0_+i}, v{p0_+i}, v{WRD+i}' for i in (8, 9, 10, 11, 0, 1, 2, 3, 4, 5, 6, 7)]
        late += [f'v_cvt_pk_bf16_f32 v{MSG[0]}, v{p0_}, v{p0_+1}', f'v_cvt_pk_bf16_f32 v{MSG[0]+1}, v{p0_+2}, v{p0_+3}']
        late += [('R0', f'v_mul_f32 v{RR[0]+4*c+i}, v{RR[0]+4*c+i}, v{p0_+8+i}') for c in range(3) for i in range(4)]
        sl = 17
        while late:
            vs[sl] += late[:2]; late = late[2:]; sl += 1
        assert sl <= 30
        vs[21].append(f'v_add_u32 v{vAV}, s{sX}, v{vAV}')
        vs[27].append(f'v_add_u32 v{vAS}, 512, v{vAS}')
        vs[22].append(f's_add_u32 s{sSl}, s{sSl}, s{sX}')
        vs[23].append(f's_cmp_eq_u32 s{sSl}, 0x10000')
        vs[23].append(f's_cselect_b32 s{sX}, 0xffff0000, s{sC8}')
        for i, (m, tag) in enumerate(mf):
            lq.need(tag)
            pc = None
            if with_issue and i in DSL:
                pc = dma_piece(1 + DSL.index(i)); a(pc[0])
            a(m)
            if pc:
                for x in pc[1:]:
                    a(x)
            for tag2, x in ls[i]:
                lq.issue(tag2, x)
            for x in vs[i]:
                if isinstance(x, tuple):
                    lq.need(x[0]); x = x[1]
                a(x)
    MSL = [int(x) for x in opts.get('msl', '12,28,44').split(',')]
    def Mphase(X_, lq, with_dma):
        p0, p1 = PHI
        cnt = [0]
        def v(x):
            if with_dma and cnt[0] in MSL:
                pc = dma_piece(1 + MSL.index(cnt[0]))
                a(pc[0]); a(x)
                for y in pc[1:]:
                    a(y)
            else:
                a(x)
            cnt[0] += 1
        lq.issue('DLT', f'ds_read_b128 {vr(DLT,4)}, v{vStgR}')
        lq.issue('DLT', f'ds_read_b128 {vr(DLT+4,4)}, v{vStgR} offset:1056')
        lq.need('V0', 'DL')
        for i in range(4):
            v(f'v_xor_b32 v{SEL+i}, v{DL+i}, v{vKey}')
        for i in range(12):
            v(f'v_fmac_f32 v{RR[0]+i}, v{V+i}, v{p0+4+i%4}')
        for i in range(4):
            v(f'v_pk_mad_i16 v{SEL+i}, v{SEL+i}, s{sK8}, v{vOne} clamp')
        for i in range(12):
            v(f'v_mul_f32 v{p1+i}, v{p1+i}, v{WRD+i}')
        v(f'v_cvt_pk_bf16_f32 v{MSG[0]+2}, v{p1}, v{p1+1}')
        v(f'v_cvt_pk_bf16_f32 v{MSG[0]+3}, v{p1+2}, v{p1+3}')
        lq.need('V1', 'R1')
        for x in tr_reads():
            lq.issue('DLT', x)
        for c in range(3):
            for i in range(4):
                v(f'v_mul_f32 v{RR[1]+4*c+i}, v{RR[1]+4*c+i}, v{p1+8+i}')
            if not SMEND:
                sm(c)
            for i in range(4):
                v(f'v_fmac_f32 v{RR[1]+4*c+i}, v{V+12+4*c+i}, v{p1+4+i}')
            for t in range(2):
                for h in range(2):
                    v(f'v_cvt_pk_bf16_f32 v{MSG[1+c]+2*t+h}, v{RR[t]+4*c+2*h}, v{RR[t]+4*c+2*h+1}')
        if SMEND:
            a(f's_setprio {PS}')
            for c in range(3):
                sm(c)
        sm(3)
        a(f's_setprio {PMD[X_]}')
        lq.need('DLT')
        assert cnt[0] > max(MSL)
    ST = PHI[0]
    def stores():
        for h in range(2):
            a(f'buffer_store_dwordx4 {vr(DLT+4*h,4)}, v{[vOut, vOut2][h]}, {sr(S_OUT)}, s{sStO} offen offset:{2048*h}{NTS}')
    OT = V + 8
    def service(L, reads, last=False):
        if reads:
            a(f'''ds_read_b128 {vr(DLT,4)}, v{vStgR}
                  ds_read_b128 {vr(DLT+4,4)}, v{vStgR} offset:1056''')
            if not last:
                for x in tr_reads():
                    a(x)
            a('s_waitcnt lgkmcnt(0)')
        stores()
        if last:
            return
        if not reads:
            a(f'''s_bitcmp1_b32 s{sStO}, 30
                  s_cbranch_scc1 kb_segend{L[1]}''')
        a(f'''
        s_sub_u32 s{sT1}, s{sG}, 8
        s_min_u32 s{sT1}, s{sT1}, 32
        s_lshl_b32 s{sT0}, s{sT1}, 2
        s_add_u32 s{sT0}, s{sT0}, 32
        s_cmp_gt_u32 s{sT0}, s{sOk}
        s_cbranch_scc1 kb_fb{L}
        kb_fbr{L}:
        s_set_gpr_idx_on s{sT1}, 0x1
        s_mov_b32 s{sStO}, 0x40000000
        s_waitcnt vmcnt(12)
        ''')
        for i in range(8):
            a(f'v_mov_b32 v{OT+i}, v{OWN+i}')
        a('s_set_gpr_idx_off')
        for b in range(2):
            a(f'ds_write_b128 v{vStgR}, {vr(OT+4*b,4)} offset:{1056*b}')
        def blk():
            a(f'''kb_fb{L}:
                  s_cmp_ge_u32 s{sOwnN}, 7
                  s_cbranch_scc1 kb_fb2{L}''')
            for j in range(NPRE, 7):
                own_load(j)
            a(f'''kb_fb2{L}:
                  s_mov_b32 s{sOwnN}, 7
                  s_mov_b32 s{sOk}, 0x7fffffff
                  s_waitcnt vmcnt(0)
                  s_branch kb_fbr{L}''')
        tail_blocks.append(blk)
    PF = int(opts.get('pf', 3))
    def Sflush(X_):
        service('r' + X_, False)
        a(f'''
        kb_segend{X_}:
        s_cmp_gt_u32 s{sGend}, s{sTe}
        s_cbranch_scc1 kb_next{X_}
        kb_flush{X_}:
        s_bitcmp0_b32 s{sStO}, 30
        s_cbranch_scc1 kb_extra{X_}
        kb_extrar{X_}:
        s_setprio {PF}
        ''')
        for c in range(4):
            a(f'v_mfma_f32_16x16x16_bf16 {vr(ACC+4*c,4)}, {vr(TR+2*c,2)}, {vr(IDN,2)}, {vr(ACC+4*c,4)}')
        a(f'''
        v_add_u32 v{vKey}, 0x001c001c, v{vKey}
        s_mul_i32 s{sStO}, s{sG}, {0x40000000 // 8 if opts.get('nostore') else 1792}
        s_add_u32 s{sG}, s{sG}, 8
        s_lshr_b64 s[{sGP}:{sGP+1}], s[{sGP}:{sGP+1}], 9
        s_mov_b32 s{sGst}, s{sGend}
        s_and_b32 s{sGend}, s{sGP}, 0x1ff
        ''')
        if opts.get('nostore'):
            a(f's_mov_b32 s{sStO}, 0x20000000')
        selb()
        for i in range(8):
            a(f'v_cvt_pk_bf16_f32 v{ST+i}, v{ACC+2*i}, v{ACC+2*i+1}')
            if i & 1:
                a(f'ds_write_b64 v{vStgW}, {vr(ST+i-1,2)} offset:{64*(i-1)}')
        a(f'''
        s_cmp_eq_u32 s{sG}, 56
        s_cbranch_scc1 kb_fin{X_}
        ''')
        for k in range(4):
            sm(k, True)
        toggle()
        a(f'''
        s_setprio {PMD[X_]}
        s_cmp_le_u32 s{sGend}, s{sTe}
        s_cbranch_scc1 kb_extra{X_}
        kb_next{X_}:
        s_max_u32 s{sOk}, s{sOk}, s{sTe}
        s_add_u32 s{sTe}, s{sTe}, 32
        ''')
    def end_blks(X_):
        a(f'''kb_fin{X_}:
              v_subrev_u32 v{vStgR}, s{sPar}, v{vStgR}
              s_waitcnt lgkmcnt(0)
              s_barrier''')
        service('f' + X_, True, True)
        a(f'v_add_u32 v{vStgR}, s{sPar}, v{vStgR}')
        if X_ == 'A':
            a('s_barrier')
        a('s_branch kb_done')
        a(f'''kb_extra{X_}:
              s_waitcnt lgkmcnt(0)
              s_barrier''')
        service('x' + X_, True)
        a(f's_branch kb_extrar{X_}')
        own_blk(X_)
    a('kb_loopA:')
    stamp()
    a(f'''s_setprio {PG}
          s_barrier''')
    stamp()
    lq = LQ()
    G('A', True, lq)
    a(f's_setprio {PMD["A"]}')
    fstamp()
    Mphase('A', lq, False)
    assert not lq.q
    fstamp()
    Sflush('A')
    fstamp()
    a('''s_waitcnt vmcnt(8) lgkmcnt(0)
         s_branch kb_loopA''')
    end_blks('A')
    a('''kb_B_entry:
         s_barrier''')
    lq = LQ()
    issue_head('B0', lq)
    for k in range(1, 4):
        for x in dma_piece(k):
            a(x)
    stores()
    a('kb_loopB:')
    a(f's_setprio {PG}')
    fstamp()
    assert lq.q == ['bp']
    G('B', False, lq)
    a(f's_setprio {PMD["B"]}')
    fstamp()
    lq.need('V1')
    a(f's_max_u32 s{sOk}, s{sOk}, s{sTe}')
    a('s_waitcnt vmcnt(8)')
    stamp()
    a('s_barrier')
    stamp()
    issue_head('B', lq)
    fstamp()
    Mphase('B', lq, True)
    assert not lq.q
    fstamp()
    Sflush('B')
    a('s_branch kb_loopB')
    end_blks('B')
    k_ = 0
    while k_ < len(tail_blocks):
        tail_blocks[k_](); k_ += 1
    a(f'''
    kb_go_slow:
    s_mov_b32 s{sMode}, 1
    s_mov_b32 s{sI}, 0
    s_mov_b32 s{sQ}, 0
    s_mov_b32 s{sC}, -1
    s_mov_b32 s{sLen}, 0
    s_mov_b32 s{sBase}, 0
    s_branch kb_copy
    kb_empty:
    s_cmp_lg_u32 s{sMode}, 0
    s_cbranch_scc1 kb_done
    kb_copy:
    s_mov_b64 s[{sGP}:{sGP+1}], 0
    s_mov_b32 s{sG}, 0
    s_mov_b32 s{sGend}, 0
    s_mov_b32 s{sTot}, 0
    s_mov_b32 s{sStO}, 0x40000000
    s_mov_b32 s{sTe}, 32
    s_mov_b32 s{sOwnN}, 7
    s_mov_b32 s{sOk}, 0x7fffffff
    ''')
    for j in range(2):
        own_load(j)
    a('s_waitcnt vmcnt(0)')
    own01(T)
    a('s_waitcnt lgkmcnt(0)')
    for j in range(2, 7):
        own_load(j)
    a(f'''s_mov_b32 s{sPar}, {XB}
          s_barrier''')
    for i in range(4):
        for m in MSG:
            a(f'v_mov_b32 v{m+i}, 0')
        a(f'v_mov_b32 v{DL+i}, 0')
    a(f'v_mov_b32 v{vKey}, 0')
    for x in tr_reads():
        a(x)
    acc_zero()
    a('s_waitcnt vmcnt(0) lgkmcnt(0)')
    a(f'''
    s_branch kb_flushA
    kb_done:
    ''')
    if STAMP:
        stamp()
        a('s_waitcnt vmcnt(0)')
        stamp()
        srd(a, S_POS, 24, 25, 0x100000, 0x1000000)
        a(f'''v_lshlrev_b32 v{T}, 2, v0
              s_lshl_b32 s{sT0}, s2, 11
              v_add_u32 v{T}, s{sT0}, v{T}
              buffer_store_dword v{vStamp}, v{T}, {sr(S_POS)}, 0 offen''')
    a(f'''
    s_waitcnt vmcnt(2)
    s_cmp_eq_u32 s{sMode}, 0
    s_cbranch_scc1 kb_exit
    s_waitcnt vmcnt(0) lgkmcnt(0)
    s_barrier
    v_and_b32 v{T+8}, 7, v0
    v_lshlrev_b32 v{T+8}, 2, v{T+8}
    v_add_u32 v{T+8}, {L_GCNT}, v{T+8}
    v_mov_b32 v{T+9}, 0
    ds_write_b32 v{T+8}, v{T+9}
    s_mov_b32 s{S_BASE}, s20
    s_mov_b32 s{S_BASE+1}, s21
    s_cmp_ge_u32 s{sI}, 4
    s_cbranch_scc1 kb_mode2
    s_lshl_b32 s{sT0}, s2, 13
    s_add_u32 s{sT0}, s{sT0}, {WS_CELL - WSO}
    v_lshl_add_u32 v{T+4}, v0, 4, s{sT0}
    v_and_b32 v{T+6}, -64, v{T+4}
    s_lshl_b32 s{sT1}, s{sI}, 2
    buffer_load_dword v{CE+4}, v{T+6}, {sr(S_WS)}, 0 offen
    buffer_load_dword v{CE}, v{T+4}, {sr(S_WS)}, s{sT1} offen
    v_lshrrev_b32 v{T+3}, 7, v0
    v_cmp_eq_u32 s[{GE}:{GE+1}], s{sQ}, v{T+3}
    v_and_b32 v{T+5}, 3, v0
    v_add_u32 v{T+5}, s{sT1}, v{T+5}
    v_lshlrev_b32 v{T+5}, 2, v{T+5}
    v_cmp_ne_u32 vcc, 0, v{T+5}
    s_and_b64 s[{GE}:{GE+1}], vcc, s[{GE}:{GE+1}]
    s_waitcnt vmcnt(0)
    v_and_b32 v{CE+4}, 0xffff, v{CE+4}
    v_cmp_lt_u32 vcc, v{T+5}, v{CE+4}
    s_and_b64 s[{GE}:{GE+1}], vcc, s[{GE}:{GE+1}]
    s_add_u32 s{sQ}, s{sQ}, 1
    s_lshr_b32 s{sT0}, s{sQ}, 2
    s_add_u32 s{sI}, s{sI}, s{sT0}
    s_and_b32 s{sQ}, s{sQ}, 3
    s_branch kb_round
    kb_mode2:
    s_cmp_lt_u32 s{sBase}, s{sLen}
    s_cbranch_scc1 kb_m2_go
    s_add_u32 s{sC}, s{sC}, 1
    s_cmp_ge_u32 s{sC}, {NCHUNK}
    s_cbranch_scc1 kb_exit
    s_lshl_b32 s{sT0}, s2, 13
    s_lshl_b32 s{sT1}, s{sC}, 6
    s_add_u32 s{sT0}, s{sT0}, s{sT1}
    s_add_u32 s{sT0}, s{sT0}, {WS_CELL}
    s_load_dword s{sT1}, s[24:25], s{sT0}
    s_waitcnt lgkmcnt(0)
    s_and_b32 s{sT2}, s{sT1}, 0xffff
    s_lshr_b32 s{sLen}, s{sT1}, 16
    s_cmp_gt_u32 s{sT2}, 64
    s_cselect_b32 s{sLen}, s{sLen}, 0
    s_mov_b32 s{sBase}, 0
    s_branch kb_mode2
    kb_m2_go:
    v_add_u32 v{T+3}, s{sBase}, v0
    v_cmp_gt_u32 s[{GE}:{GE+1}], s{sLen}, v{T+3}
    v_cmp_gt_u32 vcc, 128, v0
    s_and_b64 s[{GE}:{GE+1}], vcc, s[{GE}:{GE+1}]
    s_mov_b64 vcc, s[{GE}:{GE+1}]
    s_mul_i32 s{sT0}, s{sC}, {OVF_STRIDE}
    s_add_u32 s{sT0}, s{sT0}, {WS_OVF - WSO}
    v_lshl_add_u32 v{T+4}, v{T+3}, 2, s{sT0}
    v_mov_b32 v{T+5}, 0x40000000
    v_cndmask_b32 v{T+4}, v{T+5}, v{T+4}, vcc
    buffer_load_dword v{CE}, v{T+4}, {sr(S_WS)}, 0 offen
    s_waitcnt vmcnt(0)
    v_lshrrev_b32 v{T+3}, 16, v{CE}
    v_subrev_u32 v{T+3}, s{sNode0}, v{T+3}
    v_cmp_gt_u32 vcc, 98, v{T+3}
    s_and_b64 s[{GE}:{GE+1}], vcc, s[{GE}:{GE+1}]
    s_add_u32 s{sBase}, s{sBase}, 128
    kb_round:
    s_mov_b64 s[{GE+2}:{GE+3}], 0
    v_mov_b32 v{CE+4}, 0
    s_waitcnt lgkmcnt(0)
    s_barrier
    s_branch kb_propose
    kb_exit:
    s_endpgm
    ''')
    return L_END
```

```python
from consts import *
from gen_ka import srd

L_RING = 0
L_STG = 98304
STG_H = 16 * 528
L_TMP = L_STG + 4 * STG_H
L_GCNT = L_TMP + 3584
L_RBF = L_GCNT + 64
L_META = L_RBF + 16384
L_END = L_META + 16 * 512
assert L_RBF % 16 == 0 and L_META % 16 == 0 and L_END <= 163840
LISTCAP = 416
PADSRC = 0x100000

class RA:
    def __init__(self, start=1):
        self.n = start
    def __call__(self, k=1, align=1):
        self.n = (self.n + align - 1) // align * align
        r = self.n
        self.n += k
        return r

def vr(b, k):
    return f'v[{b}:{b+k-1}]'

def gen_kb(a, opts):
    R = RA(1)
    vSwzH, vSwzV, vAV, vAR, vAS, vBP, vKey, vOut, vSrc, vSrcB, vOH, vOV, vOne, vOwnA, vStamp = [R() for _ in range(15)]
    vAH = R(4)
    W2 = R(48, 4); WR = R(6, 2); RBF = R(4, 2)
    OWN = R(40, 4); ACC = R(16, 4)
    PHI = [R(12, 4), R(12, 4)]; WRD = R(12, 4)
    HA = R(16, 4); HB = R(16, 4)
    V = R(24, 4)
    DLT = R(8, 4); vOut2 = R(); vStgW = R(); vStgR = R(); vStgT = R(); IDN = R(2, 2)
    FD = R(2) if 'f0' in ''.join(str(v) for v in opts.values()) else None
    TR = V
    XB = 2 * STG_H
    OS = lambda j: (j + 3) % 5
    assert R.n <= 256, R.n
    RR = [HA, HB]
    DL = HA + 12; SEL = HB + 12
    MSG = [RBF, WRD, WRD + 4, WRD + 8]
    S_SV, S_OUT, S_H, S_POS, S_WS, S_BASE = 28, 32, 36, 40, 44, 48
    sW, sMask, sNode0, sMode, sI, sQ, sC, sLen, sBase = 52, 53, 54, 55, 26, 27, 3, 88, 89
    FR = 64
    GE = 80
    sGP = 90
    sTot, sTe, sGend, sGst, sG, sStA, sStB, sStC, sDma, sX = 92, 93, 94, 95, 96, 97, 98, 99, 100, 101
    s256, s512, s768 = 56, 57, 58
    sT0, sT1, sT2, sT3 = 59, 60, 61, 62
    sW2, sC8, sT4, sSl = 16, 17, 18, 19
    sOwO, sStO = sStA, sStB
    sPend, sPar = 12, 13
    sOk, sOwnN, sK8, sNeg, sGC, sTM = 8, 9, 10, 11, 14, 15
    WSO = WS_W2P
    sr = lambda b: f's[{b}:{b+3}]'
    M = f's{sMask}'
    STAMP = opts.get('stamp')
    def stamp():
        if STAMP:
            a(f'''{"s_memtime" if STAMP == "2" else "s_memrealtime"} s[22:23]
                 s_waitcnt lgkmcnt(0)
                 s_mov_b32 m0, s63
                 s_nop 1
                 v_writelane_b32 v{vStamp}, s22, m0
                 s_add_u32 s63, s63, 1
                 s_min_u32 s63, s63, 63''')
    def fstamp():
        if opts.get('fine'):
            stamp()
    a(f'''
    .globl kb_kernel
    .p2align 8
    .type kb_kernel,@function
    kb_kernel:
    s_cmp_ge_u32 s2, 256
    s_cbranch_scc1 kb_exit
    s_load_dwordx2 s[24:25], s[0:1], 80
    s_load_dwordx4 s[4:7], s[0:1], 0
    s_load_dwordx2 s[20:21], s[0:1], 64
    s_load_dwordx2 s[12:13], s[0:1], 32
    ''')
    T = PHI[0]
    U = HA
    CE = V
    tL, tN, tG = T, T + 1, T + 2
    def out_base():
        a(f'''
        v_and_b32 v{tN}, 15, v0
        v_bfe_u32 v{tG}, v0, 4, 2
        v_bfe_u32 v{T+10}, v0, 3, 3
        v_lshlrev_b32 v{T+10}, 8, v{T+10}
        v_and_b32 v{T+11}, 7, v0
        v_lshl_or_b32 v{T+10}, v{T+11}, 4, v{T+10}
        s_and_b32 s{sT2}, s{sW}, 3
        s_lshl_b32 s{sT3}, s{sT2}, 2
        s_add_u32 s{sT3}, s{sT3}, s{sNode0}
        s_lshl_b32 s{sT3}, s{sT3}, 10
        s_lshr_b32 s{sT1}, s{sW}, 2
        s_lshl_b32 s{sT4}, s{sT1}, 7
        s_add_u32 s{sT3}, s{sT3}, s{sT4}
        v_add_u32 v{vOut}, s{sT3}, v{T+10}
        s_cmp_eq_u32 s{sT2}, 3
        s_cselect_b32 s{sT3}, 0x40000000, 0
        v_add_u32 v{vOut2}, s{sT3}, v{vOut}
        s_mul_i32 s{sT1}, s{sT1}, {STG_H}
        s_add_u32 s{sT1}, s{sT1}, {L_STG}
        s_lshl_b32 s{sT3}, s{sT2}, 5
        s_add_u32 s{sT3}, s{sT3}, s{sT1}
        v_mul_u32_u24 v{T+10}, 528, v{tN}
        v_lshl_add_u32 v{T+10}, v{tG}, 3, v{T+10}
        v_add_u32 v{vStgW}, s{sT3}, v{T+10}
        v_bfe_u32 v{T+10}, v0, 2, 4
        v_mul_u32_u24 v{T+10}, 528, v{T+10}
        v_and_b32 v{T+11}, 3, v0
        v_lshl_add_u32 v{T+10}, v{T+11}, 3, v{T+10}
        v_add_u32 v{vStgT}, s{sT3}, v{T+10}
        v_lshlrev_b32 v{T+10}, 2, v{tG}
        v_sub_u32 v{T+10}, v{tN}, v{T+10}
        v_mov_b32 v{T+11}, 0x3f80
        v_mov_b32 v{T+12}, 0x3f800000
        v_cmp_eq_u32 vcc, 0, v{T+10}
        v_cndmask_b32 v{IDN}, 0, v{T+11}, vcc
        v_cmp_eq_u32 vcc, 1, v{T+10}
        v_cndmask_b32 v{IDN}, v{IDN}, v{T+12}, vcc
        v_cmp_eq_u32 vcc, 2, v{T+10}
        v_cndmask_b32 v{IDN+1}, 0, v{T+11}, vcc
        v_cmp_eq_u32 vcc, 3, v{T+10}
        v_cndmask_b32 v{IDN+1}, v{IDN+1}, v{T+12}, vcc
        s_mul_i32 s{sT3}, s{sT2}, {4*528}
        s_add_u32 s{sT3}, s{sT3}, s{sT1}
        s_add_u32 s{sT3}, s{sT3}, {XB}
        v_bfe_u32 v{T+10}, v0, 5, 1
        v_mul_u32_u24 v{T+10}, 528, v{T+10}
        v_and_b32 v{T+11}, 31, v0
        v_lshl_add_u32 v{T+10}, v{T+11}, 4, v{T+10}
        v_add_u32 v{vStgR}, s{sT3}, v{T+10}
        ''')
    NTO = ' nt' if opts.get('ntown', '0') == '1' else ''
    NTS = ' nt sc1' if opts.get('ntst', '1') == '1' else ''
    fl_ = lambda k: (' ' + opts[k].replace('+', ' ')) if opts.get(k) else ''
    if opts.get('kbs'): NTS = fl_('kbs')
    if opts.get('kbo'): NTO = fl_('kbo')
    GV, GH = fl_('gv'), fl_('gh')
    def own_ins(j, flags, so=sT3):
        return [f'buffer_load_dwordx4 {vr(OWN+8*OS(j)+4*b,4)}, v{[vOut, vOut2][b]}, {sr(S_BASE)}, s{so} offen offset:{2048*b}{flags}' for b in range(2)]
    def own_load(j, flags=None):
        a(f's_mov_b32 s{sT3}, {14336*j}')
        for x in own_ins(j, NTO if flags is None else flags):
            a(x)
    def own01(t):
        a(f'v_subrev_u32 v{t}, {XB}, v{vStgR}')
        for j in range(2):
            for b in range(2):
                a(f'ds_write_b128 v{t}, {vr(OWN+8*OS(j)+4*b,4)} offset:{XB*j+1056*b}')
    def tr_reads():
        return [f'ds_read_b64_tr_b16 {vr(TR+2*c,2)}, v{vStgT} offset:{128*c}' for c in range(4)]
    def toggle():
        a(f'''v_add_u32 v{vStgW}, s{sPar}, v{vStgW}
              v_add_u32 v{vStgT}, s{sPar}, v{vStgT}
              v_subrev_u32 v{vStgR}, s{sPar}, v{vStgR}
              s_sub_u32 s{sPar}, 0, s{sPar}''')
    a(f'''
    v_lshrrev_b32 v{T+3}, 6, v0
    v_readfirstlane_b32 s{sW}, v{T+3}
    s_lshl_b32 s{sT0}, s2, 13
    s_add_u32 s{sT0}, s{sT0}, {WS_CELL - WSO}
    v_lshl_add_u32 v{T+4}, v0, 4, s{sT0}
    s_mul_i32 s{sNode0}, s2, 98
    s_mov_b32 s63, 0
    ''')
    a('s_waitcnt lgkmcnt(0)')
    stamp()
    srd(a, S_WS, 24, 25, WS_OVF + OVF_BYTES - WSO, WSO)
    a(f'''
    buffer_load_dwordx4 {vr(CE,4)}, v{T+4}, {sr(S_WS)}, 0 offen
    v_and_b32 v{tL}, 63, v0
    v_lshlrev_b32 v{CE+7}, 4, v{tL}
    v_lshlrev_b32 v{CE+8}, 3, v{tL}
    s_mul_i32 s{sW2}, s{sW}, 12288
    s_mul_i32 s{sT2}, s{sW}, 1536
    s_add_u32 s{sT2}, s{sT2}, {WS_WRP - WSO}
    ''')
    srd(a, S_BASE, 4, 5, 25600000)
    srd(a, S_SV, 4, 5, 25600000)
    srd(a, S_OUT, 20, 21, 25600000)
    srd(a, S_H, 24, 25, 6400000, WS_H)
    srd(a, S_POS, 6, 7, 150000)
    VM = []
    def wbatch(first):
        lab = 'kb_wb%d' % first
        a(f'''s_bitcmp{1 if not first else 0}_b32 s2, {opts.get('rotbit', 3)}
              s_cbranch_scc1 {lab}_1''')
        for h in range(2):
            a(f's_add_u32 s{sT1}, s{sW2}, {6144*h}')
            for i in range(6):
                if i == 4:
                    a(f's_add_u32 s{sT1}, s{sT1}, 4096')
                a(f'buffer_load_dwordx4 {vr(W2+4*(6*h+i),4)}, v{CE+7}, {sr(S_WS)}, s{sT1} offen offset:{1024*(i%4)}{fl_("kbw")}')
            if h == 0:
                a(f'''s_branch {lab}_e
                      {lab}_1:''')
        a(f'{lab}_e:')
        VM.extend(['w'] * 6)
    def wr_load():
        for i in range(3):
            a(f'buffer_load_dwordx2 {vr(WR+2*i,2)}, v{CE+8}, {sr(S_WS)}, s{sT2} offen offset:{512*i}{fl_("kbw")}')
        VM.extend(['w'] * 3)
    SRC3 = V + 12
    def dma_addr(srcb):
        o = []
        if opts.get('fakesrc'):
            o.append(f'v_and_b32 v{srcb}, {opts["fakesrc"]}, v{srcb}')
        o += [f'v_lshl_add_u32 v{vOH}, v{srcb}, 8, v{vSwzH}', f'v_lshl_add_u32 v{vOV}, v{srcb}, 10, v{vSwzV}']
        return o
    def dma_piece(k):
        if opts.get('nodma'):
            return [f's_mov_b32 m0, s{sDma}']
        if k == 0:
            return [f's_mov_b32 m0, s{sDma}', f'buffer_load_dwordx4 v{vOH}, {sr(S_H)}, 0 offen{GH} lds']
        o = [f's_add_u32 m0, s{sDma}, {1024*k}', f'buffer_load_dwordx4 v{vOV}, {sr(S_SV)}, s{[0, s256, s512, s768][k]} offen{GV} lds']
        if k == 3:
            o += [f's_add_u32 s{sDma}, s{sDma}, 0x8000', f's_cmp_ge_u32 s{sDma}, 0x18000',
                  f's_cselect_b32 s{sT4}, 0x18000, 0', f's_sub_u32 s{sDma}, s{sDma}, s{sT4}']
        return o
    def item_groups(it):
        k, j = it[0], int(it[1])
        if k == 'o':
            g = [[x] for x in own_ins(j, NTO)]
            g[0].insert(0, f's_mov_b32 s{sT3}, {14336*j}')
        elif k == 'f':
            FSH = int(opts.get('fsh', 7))
            off = int(opts.get('fo', 28672)) + (512 << FSH) * j
            g = [[f's_mul_i32 s{sT3}, s2, 100352', f's_add_u32 s{sT3}, s{sT3}, {off}',
                  f'v_lshlrev_b32 v{FD+j}, {FSH}, v0', f'v_min_u32 v{FD+j}, {100352 - 128 - off}, v{FD+j}',
                  f'buffer_load_dword v{FD+j}, v{FD+j}, {sr(S_BASE)}, s{sT3} offen{fl_("kbf")}']]
        else:
            nd = opts.pop('nodma', None)
            g = [dma_piece(q) for q in range(4)]
            if nd:
                opts['nodma'] = nd
            g[0] = dma_addr(SRC3 + j) + g[0]
        return [(it, x) for x in g]
    def emit_items(items):
        for it in items:
            if it == 't':
                a(f'''kb_touch1__kb_t1__{opts.get('tend', 'kb_loopA')}__{sW}:
                      kb_t1:''')
            elif it == 'w0':
                wbatch(0)
            elif it == 'w1':
                wbatch(1)
            elif it == 'wr':
                wr_load()
            else:
                for tag, g in item_groups(it):
                    for x in g:
                        a(x)
                    VM.append(tag)
    def vm_after(tags):
        last = max(i for i, t in enumerate(VM) if t in tags)
        return len(VM) - 1 - last
    P1 = opts.get('p1', 'w0,wr').split(',')
    P1B = [x for x in opts.get('p1b', 'o0,o1').split(',') if x]
    P2 = opts.get('p2', 'd0,w1,o2').split(',')
    P3 = opts.get('p3', 'd1').split(',')
    NPRE = 1 + max(int(x[1]) for x in P1 + P1B + P2 + P3 if x[0] == 'o')
    OBF = any(x[0] == 'o' for x in P1)
    assert not any(x[0] in 'd' for x in P1) and not any(x[0] in 'dw' for x in P1B)
    assert 2 <= NPRE <= 4 and sorted(x for x in P1 + P1B + P2 + P3 if x[0] == 'o') == ['o%d' % i for i in range(NPRE)]
    if OBF:
        out_base()
        a(f'''s_mul_i32 s{sT2}, s{sW}, 1536
              s_add_u32 s{sT2}, s{sT2}, {WS_WRP - WSO}''')
    VM.append('cell')
    a(f'''
    v_and_b32 v{T+8}, 7, v0
    v_lshlrev_b32 v{T+8}, 2, v{T+8}
    v_add_u32 v{T+8}, {L_GCNT}, v{T+8}
    v_mov_b32 v{T+9}, 0
    ds_write_b32 v{T+8}, v{T+9}
    s_waitcnt lgkmcnt(0)
    s_barrier
    s_load_dwordx8 s[{FR}:{FR+7}], s[12:13], 0
    ''')
    emit_items(P1)
    if not OBF:
        out_base()
    emit_items(P1B)
    a(f'''
    s_mov_b32 s{sMask}, 0xffff0000
    s_mov_b32 s{sMode}, 0
    s_movk_i32 s{s256}, 256
    s_movk_i32 s{s512}, 512
    s_movk_i32 s{s768}, 768
    s_mov_b32 s{sK8}, 0x80008000
    s_mov_b32 s{sC8}, 0x8000
    s_mul_i32 s{sNeg}, s2, {-147*98}
    s_mov_b32 s{sGC}, {L_GCNT}
    s_mov_b32 s{sTM}, {L_TMP}
    v_mov_b32 v{vOne}, 0x3f803f80
    s_lshr_b32 s{sT0}, s{sW}, 1
    s_lshl_b32 s{sT1}, s{sT0}, 2
    v_add_u32 v{T+3}, s{sT1}, v{tG}
    v_xor_b32 v{T+3}, v{T+3}, v{tN}
    v_lshlrev_b32 v{vSwzH}, 4, v{T+3}
    v_and_b32 v{T+3}, 1, v{tG}
    v_lshl_or_b32 v{T+3}, v{T+3}, 1, s{sT1}
    v_xor_b32 v{T+3}, v{T+3}, v{tN}
    v_lshlrev_b32 v{vSwzV}, 4, v{T+3}
    v_and_b32 v{T+5}, 3, v0
    v_lshlrev_b32 v{T+5}, 2, v{T+5}
    v_cmp_ne_u32 s[{GE+2}:{GE+3}], 0, v{T+5}
    ''')
    if opts.get('pret', '0') == '1':
        a(f'''s_mov_b32 s{sOwnN}, 99
              s_cmp_ge_u32 s{sW}, {opts.get('bfrom', 4)}
              s_cbranch_scc1 kb_ownB
              s_branch kb_ownA''')
    a('kb_pret:')
    stamp()
    a(f'''
    s_waitcnt vmcnt({vm_after(['cell'])}) lgkmcnt(0)
    v_and_b32 v{CE+4}, 0xffff, v{CE}
    v_mov_b32_dpp v{CE+4}, v{CE+4} quad_perm:[0,0,0,0] row_mask:0xf bank_mask:0xf
    ''')
    for k in range(7, -1, -1):
        a(f'''s_and_b32 s{FR+2*k+1}, s{FR+k}, s{sMask}
              s_lshl_b32 s{FR+2*k}, s{FR+k}, 16''')
    a(f'''
    v_sub_u32 v{CE+5}, v{CE+4}, v{T+5}
    v_cmp_lt_i32 vcc, 0, v{CE+5}
    s_and_b64 s[{GE}:{GE+1}], vcc, s[{GE+2}:{GE+3}]
    v_cmp_lt_i32 s[{GE+2}:{GE+3}], 16, v{CE+5}
    kb_propose:
    v_mov_b32 v{T+9}, 1
    v_mov_b32 v{CE+6}, 147
    v_and_b32 v{tL}, 63, v0
    v_lshlrev_b32 v{CE+7}, 4, v{tL}
    v_lshlrev_b32 v{CE+8}, 3, v{tL}
    ''')
    stamp()
    def wload(n):
        pass
    def prop(lo, nw):
        for q in range(2):
            a(f'''
            v_lshrrev_b32 v{U+q}, 16, v{CE+lo+q}
            v_mad_u32_u24 v{U+q}, v{U+q}, v{CE+6}, s{sNeg}
            v_lshrrev_b32 v{U+q}, 11, v{U+q}
            v_lshl_add_u32 v{U+4+q}, v{U+q}, 2, s{sGC}
            ''')
        for q in range(2):
            a(f'''s_mov_b64 exec, s[{GE+2*q}:{GE+2*q+1}]
                  ds_add_rtn_u32 v{U+8+q}, v{U+4+q}, v{T+9}''')
        a('s_mov_b64 exec, -1')
        for q in range(2):
            a(f'v_lshl_add_u32 v{U+q}, v{U+q}, 9, s{sTM}')
        wload(nw)
        a('s_waitcnt lgkmcnt(0)')
        for q in range(2):
            a(f'''v_min_u32 v{U+8+q}, 0x7f, v{U+8+q}
                  v_lshl_add_u32 v{U+q}, v{U+8+q}, 2, v{U+q}''')
        for q in range(2):
            a(f'''s_mov_b64 exec, s[{GE+2*q}:{GE+2*q+1}]
                  ds_write_b32 v{U+q}, v{CE+lo+q}''')
        a('s_mov_b64 exec, -1')
    W1N = W2N = W3N = 0
    prop(0, W1N)
    a(f'''
    v_cmp_lt_u32 vcc, 32, v{CE+4}
    s_cbranch_vccz kb_prop_done
    v_cmp_lt_i32 s[{GE}:{GE+1}], 32, v{CE+5}
    v_cmp_lt_i32 s[{GE+2}:{GE+3}], 48, v{CE+5}
    ''')
    prop(2, 0)
    a(f'''
    v_cmp_lt_u32 vcc, 64, v{CE+4}
    v_mov_b32 v{U}, {L_GCNT + 28}
    s_mov_b64 exec, vcc
    ds_add_u32 v{U}, v{T+9}
    s_mov_b64 exec, -1
    kb_prop_done:
    v_mov_b32 v{U}, {L_GCNT}
    s_waitcnt lgkmcnt(0)
    s_barrier
    ds_read_b128 {vr(U+4,4)}, v{U}
    ds_read_b128 {vr(U+8,4)}, v{U} offset:16
    ''')
    wload(W2N)
    tP = T + 3
    a(f'''
    v_and_b32 v{tN}, 15, v0
    v_bfe_u32 v{tG}, v0, 4, 2
    v_lshrrev_b32 v{T+4}, 2, v{tL}
    v_and_b32 v{T+5}, 3, v{tL}
    s_lshl_b32 s{sT0}, s{sW}, 2
    v_add_u32 v{T+6}, s{sT0}, v{T+5}
    v_lshl_add_u32 v{tP}, v{T+4}, 5, v{T+6}
    v_lshl_add_u32 v{T+7}, v{tP}, 2, s{sTM}
    s_waitcnt lgkmcnt(0)
    ''')
    stamp()
    for j in range(8):
        a(f'v_readfirstlane_b32 s{GE+j}, v{U+4+j}')
    sA, sB, sD = sStA, sStB, sStC
    a(f'''
    s_max_u32 s{sA}, s{GE}, s{GE+1}
    s_max_u32 s{sB}, s{GE+2}, s{GE+3}
    s_max_u32 s{sD}, s{GE+4}, s{GE+5}
    s_max_u32 s{sA}, s{sA}, s{GE+6}
    s_max_u32 s{sB}, s{sB}, s{sD}
    s_max_u32 s{sA}, s{sA}, s{sB}
    s_mov_b32 s{sTot}, 0
    ''')
    for j in range(7):
        a(f's_add_u32 s{sTot}, s{sTot}, s{GE+j}')
        if j < 6:
            a(f'''s_lshl_b32 s{sB}, s{GE+j}, 2
                  s_sub_u32 s{sB}, 512, s{sB}
                  v_cmpx_le_u32 vcc, s{sTot}, v{tP}
                  v_add_u32 v{T+7}, s{sB}, v{T+7}''')
        a(f's_mov_b32 s{GE+j}, s{sTot}')
    a(f'''
    s_mov_b64 exec, -1
    ds_read_b32 v{T+8}, v{T+7}
    ''')
    wload(W3N)
    a(f'''
    s_cmp_gt_u32 s{sA}, 128
    s_cselect_b32 s{GE+7}, 1, s{GE+7}
    s_cmp_gt_u32 s{sTot}, {LISTCAP}
    s_cselect_b32 s{GE+7}, 1, s{GE+7}
    s_cmp_lg_u32 s{GE+7}, 0
    s_cbranch_scc1 kb_go_slow
    s_cmp_eq_u32 s{sTot}, 0
    s_cbranch_scc1 kb_empty
    ''')
    a(f'''
    s_lshl_b32 s{sT0}, s{GE+1}, 9
    s_or_b32 s{sGP}, s{GE}, s{sT0}
    s_lshl_b32 s{sT0}, s{GE+2}, 18
    s_or_b32 s{sGP}, s{sGP}, s{sT0}
    s_lshl_b32 s{sT0}, s{GE+3}, 27
    s_or_b32 s{sGP}, s{sGP}, s{sT0}
    s_lshr_b32 s{sGP+1}, s{GE+3}, 5
    s_lshl_b32 s{sT0}, s{GE+4}, 4
    s_or_b32 s{sGP+1}, s{sGP+1}, s{sT0}
    s_lshl_b32 s{sT0}, s{GE+5}, 13
    s_or_b32 s{sGP+1}, s{sGP+1}, s{sT0}
    s_lshl_b32 s{sT0}, s{GE+6}, 22
    s_or_b32 s{sGP+1}, s{sGP+1}, s{sT0}
    v_cmp_gt_u32 vcc, s{sTot}, v{tP}
    v_mov_b32 v{T+9}, {PADSRC}
    v_mov_b32 v{T+10}, 0x3fff
    v_lshlrev_b32 v{vBP}, 2, v{tG}
    s_waitcnt lgkmcnt(0)
    v_and_b32 v{T+11}, 0xffff, v{T+8}
    v_lshrrev_b32 v{T+12}, 16, v{T+8}
    v_cndmask_b32 v{vSrc}, v{T+9}, v{T+11}, vcc
    v_cndmask_b32 v{T+13}, v{T+9}, v{T+12}, vcc
    ds_bpermute_b32 v{SRC3}, v{vBP}, v{vSrc}
    ds_bpermute_b32 v{SRC3+1}, v{vBP}, v{vSrc} offset:16
    ds_bpermute_b32 v{vSrcB}, v{vBP}, v{vSrc} offset:32
    v_add_u32 v{vBP}, 48, v{vBP}
    v_mul_u32_u24 v{T+14}, 6, v{vSrc}
    v_and_b32 v{T+14}, -4, v{T+14}
    v_mul_u32_u24 v{T+15}, 6, v{T+13}
    v_and_b32 v{T+15}, -4, v{T+15}
    ''')
    wload(15)
    a(f'''
    buffer_load_dwordx2 {vr(T+16,2)}, v{T+14}, {sr(S_POS)}, 0 offen
    buffer_load_dwordx2 {vr(T+18,2)}, v{T+15}, {sr(S_POS)}, 0 offen
    v_subrev_u32 v{T+12}, s{sNode0}, v{T+12}
    v_cndmask_b32 v{T+10}, v{T+10}, v{T+12}, vcc
    v_lshlrev_b32 v{T+10}, 1, v{T+10}
    s_lshl_b32 s{sDma}, s{sW}, 12
    s_waitcnt lgkmcnt(1)
    ''')
    VM.extend(['pos', 'pos'])
    a(f'''s_mul_i32 s{sT2}, s{sW}, 1536
          s_add_u32 s{sT2}, s{sT2}, {WS_WRP - WSO}''')
    emit_items(P2)
    if opts.get('p2bar', '0') == '1':
        a('s_barrier')
    stamp()
    a(f'''
    v_lshrrev_b32 v{U}, 2, v{tN}
    v_lshlrev_b32 v{U}, 13, v{U}
    v_and_b32 v{U+1}, 3, v{tN}
    v_lshl_or_b32 v{U}, v{U+1}, 8, v{U}
    v_xor_b32 v{U+1}, v{tG}, v{tN}
    ''')
    for s in range(4):
        a(f'''v_xor_b32 v{U+2}, {4*s}, v{U+1}
              v_lshl_or_b32 v{vAH+s}, v{U+2}, 4, v{U}''')
    a(f'''
    v_bfe_u32 v{U}, v{tL}, 3, 1
    v_lshl_or_b32 v{U+1}, v{tG}, 1, v{U}
    v_xor_b32 v{U+1}, s{sW}, v{U+1}
    v_lshlrev_b32 v{U+1}, 5, v{U+1}
    v_lshl_or_b32 v{U+1}, v{U}, 8, v{U+1}
    v_lshl_or_b32 v{U+1}, v{tG}, 13, v{U+1}
    v_lshl_or_b32 v{U+1}, v{T+5}, 3, v{U+1}
    v_and_b32 v{U+2}, 4, v{tL}
    v_xor_b32 v{U+2}, 4, v{U+2}
    v_lshl_or_b32 v{vAV}, v{U+2}, 18, v{U+1}
    v_lshlrev_b32 v{vAR}, 3, v{tL}
    v_add_u32 v{vAR}, {L_RBF}, v{vAR}
    v_lshlrev_b32 v{vAS}, 5, v{tG}
    v_add_u32 v{vAS}, {L_META}, v{vAS}
    v_lshlrev_b32 v{vKey}, 1, v{tN}
    v_lshl_or_b32 v{vKey}, v{vKey}, 16, v{vKey}
    ''')
    tWR, tWS, tWD = T + 20, T + 21, T + 22
    a(f'''
    s_and_b32 s{sT0}, s{sW}, 1
    s_lshl_b32 s{sT2}, s{sT0}, 3
    s_lshl_b32 s{sT0}, s{sT0}, 9
    s_lshr_b32 s{sT1}, s{sW}, 1
    s_lshl_b32 s{sT1}, s{sT1}, 5
    s_add_u32 s{sT2}, s{sT2}, s{sT1}
    s_add_u32 s{sT2}, s{sT2}, {L_META + 384}
    s_add_u32 s{sT0}, s{sT0}, s{sT1}
    s_add_u32 s{sT0}, s{sT0}, {L_RBF}
    v_lshlrev_b32 v{tWR}, 10, v{T+4}
    v_lshl_add_u32 v{tWR}, v{T+5}, 3, v{tWR}
    v_add_u32 v{tWR}, s{sT0}, v{tWR}
    v_lshlrev_b32 v{tWS}, 9, v{T+4}
    v_lshl_add_u32 v{tWD}, v{T+5}, 1, v{tWS}
    v_add_u32 v{tWD}, s{sT2}, v{tWD}
    v_lshl_add_u32 v{tWS}, v{T+6}, 2, v{tWS}
    v_add_u32 v{tWS}, {L_META}, v{tWS}
    ds_write_b16 v{tWD}, v{T+10}
    v_lshlrev_b32 v{T+14}, 4, v{vSrc}
    v_lshlrev_b32 v{T+15}, 4, v{T+13}
    s_waitcnt vmcnt({vm_after(['pos'])})
    ''')
    stamp()
    real_a = a
    p3q = []
    for it in P3:
        p3q += item_groups(it)
    cnt = [0]
    GAP = int(opts.get('p3gap', 8))
    def a(txt):
        for ln in txt.split('\n'):
            ln = ln.strip()
            if not ln:
                continue
            real_a(ln)
            cnt[0] += 1
            if cnt[0] % GAP == 0 and p3q:
                tag, g = p3q.pop(0)
                for x in g:
                    real_a(x)
                VM.append(tag)
    x, y, z = U, U + 1, U + 2
    a(f'''
    v_alignbit_b32 v{U+8}, v{T+17}, v{T+16}, v{T+14}
    v_lshrrev_b32 v{U+9}, v{T+14}, v{T+17}
    v_alignbit_b32 v{U+10}, v{T+19}, v{T+18}, v{T+15}
    v_lshrrev_b32 v{U+11}, v{T+15}, v{T+19}
    v_lshlrev_b32 v{x}, 16, v{U+8}
    v_and_b32 v{y}, {M}, v{U+8}
    v_lshlrev_b32 v{z}, 16, v{U+9}
    v_lshlrev_b32 v{U+3}, 16, v{U+10}
    v_and_b32 v{U+4}, {M}, v{U+10}
    v_lshlrev_b32 v{U+5}, 16, v{U+11}
    v_sub_f32 v{x}, v{x}, v{U+3}
    v_sub_f32 v{y}, v{y}, v{U+4}
    v_sub_f32 v{z}, v{z}, v{U+5}
    v_cvt_pk_bf16_f32 v{x}, 0, v{x}
    v_cvt_pk_bf16_f32 v{y}, 0, v{y}
    v_cvt_pk_bf16_f32 v{z}, 0, v{z}
    v_mul_f32 v{U+3}, v{x}, v{x}
    v_mul_f32 v{U+4}, v{y}, v{y}
    v_mul_f32 v{U+5}, v{z}, v{z}
    v_cvt_pk_bf16_f32 v{U+3}, 0, v{U+3}
    v_cvt_pk_bf16_f32 v{U+4}, 0, v{U+4}
    v_cvt_pk_bf16_f32 v{U+5}, 0, v{U+5}
    v_add_f32 v{U+3}, v{U+3}, v{U+4}
    v_add_f32 v{U+3}, v{U+3}, v{U+5}
    v_cvt_pk_bf16_f32 v{U+3}, 0, v{U+3}
    v_add_f32 v{U+3}, 0x322bcc77, v{U+3}
    v_cvt_pk_bf16_f32 v{U+3}, 0, v{U+3}
    v_sqrt_f32 v{U+3}, v{U+3}
    v_cvt_pk_bf16_f32 v{U+3}, 0, v{U+3}
    v_rcp_f32 v{U+4}, v{U+3}
    ''')
    d, rd = U + 3, U + 4
    X = U + 12
    P = T + 24
    for k in range(16):
        a(f'v_mul_f32 v{X+k}, s{FR+k}, v{d}')
    a(f'''
    v_mul_f32 v{U+5}, 0x40490fdb, v{d}
    v_mul_f32 v{x}, v{x}, v{rd}
    v_cvt_pk_bf16_f32 v{U+5}, 0, v{U+5}
    v_mul_f32 v{y}, v{y}, v{rd}
    v_mul_f32 v{U+5}, 0x3e4ccccd, v{U+5}
    v_mul_f32 v{z}, v{z}, v{rd}
    v_cvt_pk_bf16_f32 v{U+5}, 0, v{U+5}
    v_cvt_pk_bf16_f32 v{x}, 0, v{x}
    v_mul_f32 v{U+5}, 0.15915494, v{U+5}
    v_cvt_pk_bf16_f32 v{y}, 0, v{y}
    v_cos_f32 v{U+5}, v{U+5}
    v_cvt_pk_bf16_f32 v{z}, 0, v{z}
    v_cvt_pk_bf16_f32 v{U+5}, 0, v{U+5}
    ds_write_b32 v{tWS}, v{x}
    v_add_f32 v{U+5}, 1.0, v{U+5}
    ds_write_b32 v{tWS}, v{y} offset:128
    v_cvt_pk_bf16_f32 v{U+5}, 0, v{U+5}
    ds_write_b32 v{tWS}, v{z} offset:256
    v_mul_f32 v{U+5}, 0.5, v{U+5}
    v_cmp_gt_f32 vcc, 0x40a00000, v{d}
    v_cndmask_b32 v{U+5}, 0, v{U+5}, vcc
    v_mul_f32 v{rd}, v{rd}, v{U+5}
    ''')
    for k in range(16):
        a(f'v_cvt_pk_bf16_f32 v{X+k}, 0, v{X+k}')
    for k in range(16):
        a(f'v_mul_f32 v{X+k}, 0.15915494, v{X+k}')
    for k in range(16):
        a(f'v_sin_f32 v{X+k}, v{X+k}')
    for k in range(16):
        a(f'v_mul_f32 v{X+k}, v{X+k}, v{rd}')
    for k in range(8):
        a(f'v_cvt_pk_bf16_f32 v{P+k}, v{X+2*k}, v{X+2*k+1}')
    for g in range(4):
        a(f'ds_write_b64 v{tWR}, {vr(P+2*g,2)} offset:{128*g}')
    a = real_a
    for tag, g in p3q:
        for x in g:
            a(x)
        VM.append(tag)
    def acc_zero():
        for i in range(16):
            a(f'v_mov_b32 v{ACC+i}, 0')
    nA = vm_after(['d1'])
    assert nA % 2 == 0
    tail_blocks = []
    a(f'''
    s_mov_b32 s{sG}, 0
    s_and_b32 s{sGend}, s{sGP}, 0x1ff
    s_mov_b32 s{sTe}, 32
    s_mov_b32 s{sOwO}, {14336*(NPRE-1)}
    s_mov_b32 s{sStO}, 0x40000000
    s_mov_b32 s{sX}, 0x8000
    s_mov_b32 s{sSl}, 0
    s_mov_b32 s{sPar}, {XB}
    s_mov_b32 s{sOk}, 0
    s_mov_b32 s{sOwnN}, {NPRE}
    s_cmp_lg_u32 s{sMode}, 0
    s_cbranch_scc1 kb_slow_own
    ''')
    if vm_after(['o0', 'o1']) < vm_after(['pos']):
        a(f's_waitcnt vmcnt({vm_after(["o0", "o1"])})')
    own01(T)
    a('kb_slow_ownr:')
    def blk_so():
        a('''kb_slow_own:
             s_waitcnt vmcnt(0)''')
        for j in range(2):
            own_load(j, ' sc0 sc1')
        a('s_waitcnt vmcnt(0)')
        own01(T)
        a('s_waitcnt lgkmcnt(0)')
        for j in range(2, 7):
            own_load(j, ' sc0 sc1')
        a(f'''s_mov_b32 s{sOwnN}, 7
              s_mov_b32 s{sOk}, 0x7fffffff
              s_waitcnt vmcnt(0)
              s_branch kb_slow_ownr''')
    tail_blocks.append(blk_so)
    stamp()
    acc_zero()
    a(f'''
    s_cmp_ge_u32 s{sW}, {opts.get('bfrom', 4)}
    s_waitcnt vmcnt({vm_after(['d0', 'w'])}) lgkmcnt(0)
    s_cbranch_scc1 kb_B_entry
    ''')
    PG = int(opts.get('pg', 2)); PS = int(opts.get('ps', 3))
    PMD = {'A': int(opts.get('pma', 0)), 'B': int(opts.get('pmb', 1))}
    SMEND = opts.get('smend', '1') == '1'

    class LQ:
        def __init__(self):
            self.q = []
        def issue(self, tag, txt):
            if len(self.q) >= 15:
                a('s_waitcnt lgkmcnt(8)'); self.q = self.q[-8:]
            a(txt); self.q.append(tag)
        def need(self, *tags):
            idx = [i for i, t in enumerate(self.q) if t in tags]
            if not idx:
                return
            last = max(idx)
            a(f's_waitcnt lgkmcnt({len(self.q)-1-last})')
            self.q = self.q[last + 1:]
    def gemm(t, s):
        H = HA if t == 0 else HB
        out = []
        for b in range(3):
            c = '0' if s == 0 else vr(PHI[t] + 4 * b, 4)
            out.append(f'v_mfma_f32_16x16x32_bf16 {vr(PHI[t]+4*b,4)}, {vr(H+4*s,4)}, {vr(W2+16*b+4*s,4)}, {c}')
        return out
    def wf(t):
        return [f'v_mfma_f32_16x16x16_bf16 {vr(WRD+4*b,4)}, {vr(RBF+2*t,2)}, {vr(WR+2*b,2)}, 0' for b in range(3)]
    def sm(k, z=False):
        a(f'v_mfma_f32_16x16x32_bf16 {vr(ACC+4*k,4)}, {vr(MSG[k],4)}, {vr(SEL,4)}, {"0" if z else vr(ACC+4*k,4)}')
    def selb():
        for i in range(4):
            a(f'v_xor_b32 v{SEL+i}, v{DL+i}, v{vKey}')
        for i in range(4):
            a(f'v_pk_mad_i16 v{SEL+i}, v{SEL+i}, s{sK8}, v{vOne} clamp')
    def vreads(t):
        return [('V%d' % t, f'ds_read_b64_tr_b16 {vr(V+12*t+4*c+2*p,2)}, v{vAV} offset:{4096*t+1024*(c+1)+512*p}') for c in range(3) for p in range(2)]
    def issue_head(X_, lq):
        if X_ == 'B0':
            a(f'''s_cmp_ge_u32 s{sOwnN}, 7
                  s_cbranch_scc1 kb_ownrB0
                  s_add_u32 s{sOwnN}, s{sOwnN}, 1
                  s_add_u32 s{sOwO}, s{sOwO}, 14336''')
            for x in own_ins(NPRE, NTO, sOwO):
                a(x)
            a('kb_ownrB0:')
        else:
            a(f'''
            s_cmp_lt_u32 s{sOwnN}, 7
            s_cbranch_scc1 kb_own{X_}
            kb_ownr{X_}:
            ''')
        for x in dma_addr(vSrcB):
            a(x)
        p0 = dma_piece(0)
        a(p0[0])
        lq.issue('bp', f'ds_bpermute_b32 v{vSrcB}, v{vBP}, v{vSrc}')
        for x in p0[1:]:
            a(x)
        a(f'v_add_u32 v{vBP}, 16, v{vBP}')
    def own_blk(X_):
        a(f'''kb_own{X_}:
              s_add_u32 s{sOwnN}, s{sOwnN}, 1
              s_add_u32 s{sOwO}, s{sOwO}, 14336''')
        for j in range(NPRE + (X_ == 'B'), 7):
            a(f'''s_cmp_lg_u32 s{sOwnN}, {j+1}
                  s_cbranch_scc1 kb_own{X_}_{j+1}''')
            for x in own_ins(j, NTO, sOwO):
                a(x)
            a(f'''s_branch kb_ownr{X_}
                  kb_own{X_}_{j+1}:''')
        a('s_branch kb_pret')
    p0_, p1_ = PHI
    DSL = [int(x) for x in opts.get('dsl', '6,13,20').split(',')]
    def G(X_, with_issue, lq):
        for s in range(4):
            lq.issue('HA%d' % s, f'ds_read_b128 {vr(HA+4*s,4)}, v{vAH+s}')
        lq.issue('B0', f'ds_read_b64 {vr(RBF,2)}, v{vAR}')
        if with_issue:
            issue_head(X_, lq)
        mf = []
        for s in range(4):
            mf += [(m, 'HA%d' % s) for m in gemm(0, s)]
        mf += [(m, 'B0') for m in wf(0)]
        for s in range(4):
            mf += [(m, 'B1') for m in gemm(1, s)]
        mf += [(m, 'B1') for m in wf(1)]
        ls = {i: [] for i in range(30)}
        for s in range(4):
            ls[s].append(('HB%d' % s, f'ds_read_b128 {vr(HB+4*s,4)}, v{vAH+s} offset:4096'))
        ls[4].append(('B1', f'ds_read_b64 {vr(RBF+2,2)}, v{vAR} offset:512'))
        for i, x in enumerate(vreads(0)):
            ls[5 + i].append(x)
        for c in range(3):
            ls[12 + c].append(('R0', f'ds_read_b128 {vr(RR[0]+4*c,4)}, v{vAS} offset:{128*c}'))
        for i, x in enumerate(vreads(1)):
            ls[15 + i].append(x)
        ls[21].append(('DL', f'ds_read_b128 {vr(DL,4)}, v{vAS} offset:384'))
        for c in range(3):
            ls[24 + c].append(('R1', f'ds_read_b128 {vr(RR[1]+4*c,4)}, v{vAS} offset:{128*c+16}'))
        vs = {i: [] for i in range(30)}
        for s in range(4):
            vs[4 + s].append(f'v_add_u32 v{vAH+s}, s{sX}, v{vAH+s}')
        vs[8].append(f'v_add_u32 v{vAR}, 1024, v{vAR}')
        late = [f'v_mul_f32 v{p0_+i}, v{p0_+i}, v{WRD+i}' for i in (8, 9, 10, 11, 0, 1, 2, 3, 4, 5, 6, 7)]
        late += [f'v_cvt_pk_bf16_f32 v{MSG[0]}, v{p0_}, v{p0_+1}', f'v_cvt_pk_bf16_f32 v{MSG[0]+1}, v{p0_+2}, v{p0_+3}']
        late += [('R0', f'v_mul_f32 v{RR[0]+4*c+i}, v{RR[0]+4*c+i}, v{p0_+8+i}') for c in range(3) for i in range(4)]
        sl = 17
        while late:
            vs[sl] += late[:2]; late = late[2:]; sl += 1
        assert sl <= 30
        vs[21].append(f'v_add_u32 v{vAV}, s{sX}, v{vAV}')
        vs[27].append(f'v_add_u32 v{vAS}, 512, v{vAS}')
        vs[22].append(f's_add_u32 s{sSl}, s{sSl}, s{sX}')
        vs[23].append(f's_cmp_eq_u32 s{sSl}, 0x10000')
        vs[23].append(f's_cselect_b32 s{sX}, 0xffff0000, s{sC8}')
        for i, (m, tag) in enumerate(mf):
            lq.need(tag)
            pc = None
            if with_issue and i in DSL:
                pc = dma_piece(1 + DSL.index(i)); a(pc[0])
            a(m)
            if pc:
                for x in pc[1:]:
                    a(x)
            for tag2, x in ls[i]:
                lq.issue(tag2, x)
            for x in vs[i]:
                if isinstance(x, tuple):
                    lq.need(x[0]); x = x[1]
                a(x)
    MSL = [int(x) for x in opts.get('msl', '12,28,44').split(',')]
    def Mphase(X_, lq, with_dma):
        p0, p1 = PHI
        cnt = [0]
        def v(x):
            if with_dma and cnt[0] in MSL:
                pc = dma_piece(1 + MSL.index(cnt[0]))
                a(pc[0]); a(x)
                for y in pc[1:]:
                    a(y)
            else:
                a(x)
            cnt[0] += 1
        lq.issue('DLT', f'ds_read_b128 {vr(DLT,4)}, v{vStgR}')
        lq.issue('DLT', f'ds_read_b128 {vr(DLT+4,4)}, v{vStgR} offset:1056')
        lq.need('V0', 'DL')
        for i in range(4):
            v(f'v_xor_b32 v{SEL+i}, v{DL+i}, v{vKey}')
        for i in range(12):
            v(f'v_fmac_f32 v{RR[0]+i}, v{V+i}, v{p0+4+i%4}')
        for i in range(4):
            v(f'v_pk_mad_i16 v{SEL+i}, v{SEL+i}, s{sK8}, v{vOne} clamp')
        for i in range(12):
            v(f'v_mul_f32 v{p1+i}, v{p1+i}, v{WRD+i}')
        v(f'v_cvt_pk_bf16_f32 v{MSG[0]+2}, v{p1}, v{p1+1}')
        v(f'v_cvt_pk_bf16_f32 v{MSG[0]+3}, v{p1+2}, v{p1+3}')
        lq.need('V1', 'R1')
        for x in tr_reads():
            lq.issue('DLT', x)
        for c in range(3):
            for i in range(4):
                v(f'v_mul_f32 v{RR[1]+4*c+i}, v{RR[1]+4*c+i}, v{p1+8+i}')
            if not SMEND:
                sm(c)
            for i in range(4):
                v(f'v_fmac_f32 v{RR[1]+4*c+i}, v{V+12+4*c+i}, v{p1+4+i}')
            for t in range(2):
                for h in range(2):
                    v(f'v_cvt_pk_bf16_f32 v{MSG[1+c]+2*t+h}, v{RR[t]+4*c+2*h}, v{RR[t]+4*c+2*h+1}')
        if SMEND:
            a(f's_setprio {PS}')
            for c in range(3):
                sm(c)
        sm(3)
        a(f's_setprio {PMD[X_]}')
        lq.need('DLT')
        assert cnt[0] > max(MSL)
    ST = PHI[0]
    def stores():
        for h in range(2):
            a(f'buffer_store_dwordx4 {vr(DLT+4*h,4)}, v{[vOut, vOut2][h]}, {sr(S_OUT)}, s{sStO} offen offset:{2048*h}{NTS}')
    OT = V + 8
    def service(L, reads, last=False):
        if reads:
            a(f'''ds_read_b128 {vr(DLT,4)}, v{vStgR}
                  ds_read_b128 {vr(DLT+4,4)}, v{vStgR} offset:1056''')
            if not last:
                for x in tr_reads():
                    a(x)
            a('s_waitcnt lgkmcnt(0)')
        stores()
        if last:
            return
        if not reads:
            a(f'''s_bitcmp1_b32 s{sStO}, 30
                  s_cbranch_scc1 kb_segend{L[1]}''')
        a(f'''
        s_sub_u32 s{sT1}, s{sG}, 8
        s_min_u32 s{sT1}, s{sT1}, 32
        s_lshl_b32 s{sT0}, s{sT1}, 2
        s_add_u32 s{sT0}, s{sT0}, 32
        s_cmp_gt_u32 s{sT0}, s{sOk}
        s_cbranch_scc1 kb_fb{L}
        kb_fbr{L}:
        s_set_gpr_idx_on s{sT1}, 0x1
        s_mov_b32 s{sStO}, 0x40000000
        s_waitcnt vmcnt(12)
        ''')
        for i in range(8):
            a(f'v_mov_b32 v{OT+i}, v{OWN+i}')
        a('s_set_gpr_idx_off')
        for b in range(2):
            a(f'ds_write_b128 v{vStgR}, {vr(OT+4*b,4)} offset:{1056*b}')
        def blk():
            a(f'''kb_fb{L}:
                  s_cmp_ge_u32 s{sOwnN}, 7
                  s_cbranch_scc1 kb_fb2{L}''')
            for j in range(NPRE, 7):
                own_load(j)
            a(f'''kb_fb2{L}:
                  s_mov_b32 s{sOwnN}, 7
                  s_mov_b32 s{sOk}, 0x7fffffff
                  s_waitcnt vmcnt(0)
                  s_branch kb_fbr{L}''')
        tail_blocks.append(blk)
    PF = int(opts.get('pf', 3))
    def Sflush(X_):
        service('r' + X_, False)
        a(f'''
        kb_segend{X_}:
        s_cmp_gt_u32 s{sGend}, s{sTe}
        s_cbranch_scc1 kb_next{X_}
        kb_flush{X_}:
        s_bitcmp0_b32 s{sStO}, 30
        s_cbranch_scc1 kb_extra{X_}
        kb_extrar{X_}:
        s_setprio {PF}
        ''')
        for c in range(4):
            a(f'v_mfma_f32_16x16x16_bf16 {vr(ACC+4*c,4)}, {vr(TR+2*c,2)}, {vr(IDN,2)}, {vr(ACC+4*c,4)}')
        a(f'''
        v_add_u32 v{vKey}, 0x001c001c, v{vKey}
        s_mul_i32 s{sStO}, s{sG}, {0x40000000 // 8 if opts.get('nostore') else 1792}
        s_add_u32 s{sG}, s{sG}, 8
        s_lshr_b64 s[{sGP}:{sGP+1}], s[{sGP}:{sGP+1}], 9
        s_mov_b32 s{sGst}, s{sGend}
        s_and_b32 s{sGend}, s{sGP}, 0x1ff
        ''')
        if opts.get('nostore'):
            a(f's_mov_b32 s{sStO}, 0x20000000')
        selb()
        for i in range(8):
            a(f'v_cvt_pk_bf16_f32 v{ST+i}, v{ACC+2*i}, v{ACC+2*i+1}')
            if i & 1:
                a(f'ds_write_b64 v{vStgW}, {vr(ST+i-1,2)} offset:{64*(i-1)}')
        a(f'''
        s_cmp_eq_u32 s{sG}, 56
        s_cbranch_scc1 kb_fin{X_}
        ''')
        for k in range(4):
            sm(k, True)
        toggle()
        a(f'''
        s_setprio {PMD[X_]}
        s_cmp_le_u32 s{sGend}, s{sTe}
        s_cbranch_scc1 kb_extra{X_}
        kb_next{X_}:
        s_max_u32 s{sOk}, s{sOk}, s{sTe}
        s_add_u32 s{sTe}, s{sTe}, 32
        ''')
    def end_blks(X_):
        a(f'''kb_fin{X_}:
              v_subrev_u32 v{vStgR}, s{sPar}, v{vStgR}
              s_waitcnt lgkmcnt(0)
              s_barrier''')
        service('f' + X_, True, True)
        a(f'v_add_u32 v{vStgR}, s{sPar}, v{vStgR}')
        if X_ == 'A':
            a('s_barrier')
        a('s_branch kb_done')
        a(f'''kb_extra{X_}:
              s_waitcnt lgkmcnt(0)
              s_barrier''')
        service('x' + X_, True)
        a(f's_branch kb_extrar{X_}')
        own_blk(X_)
    a('kb_loopA:')
    stamp()
    a(f'''s_setprio {PG}
          s_barrier''')
    stamp()
    lq = LQ()
    G('A', True, lq)
    a(f's_setprio {PMD["A"]}')
    fstamp()
    Mphase('A', lq, False)
    assert not lq.q
    fstamp()
    Sflush('A')
    fstamp()
    a('''s_waitcnt vmcnt(8) lgkmcnt(0)
         s_branch kb_loopA''')
    end_blks('A')
    a('''kb_B_entry:
         s_barrier''')
    lq = LQ()
    issue_head('B0', lq)
    for k in range(1, 4):
        for x in dma_piece(k):
            a(x)
    stores()
    a('kb_loopB:')
    a(f's_setprio {PG}')
    fstamp()
    assert lq.q == ['bp']
    G('B', False, lq)
    a(f's_setprio {PMD["B"]}')
    fstamp()
    lq.need('V1')
    a(f's_max_u32 s{sOk}, s{sOk}, s{sTe}')
    a('s_waitcnt vmcnt(8)')
    stamp()
    a('s_barrier')
    stamp()
    issue_head('B', lq)
    fstamp()
    Mphase('B', lq, True)
    assert not lq.q
    fstamp()
    Sflush('B')
    a('s_branch kb_loopB')
    end_blks('B')
    k_ = 0
    while k_ < len(tail_blocks):
        tail_blocks[k_](); k_ += 1
    a(f'''
    kb_go_slow:
    s_mov_b32 s{sMode}, 1
    s_mov_b32 s{sI}, 0
    s_mov_b32 s{sQ}, 0
    s_mov_b32 s{sC}, -1
    s_mov_b32 s{sLen}, 0
    s_mov_b32 s{sBase}, 0
    s_branch kb_copy
    kb_empty:
    s_cmp_lg_u32 s{sMode}, 0
    s_cbranch_scc1 kb_done
    kb_copy:
    s_mov_b64 s[{sGP}:{sGP+1}], 0
    s_mov_b32 s{sG}, 0
    s_mov_b32 s{sGend}, 0
    s_mov_b32 s{sTot}, 0
    s_mov_b32 s{sStO}, 0x40000000
    s_mov_b32 s{sTe}, 32
    s_mov_b32 s{sOwnN}, 7
    s_mov_b32 s{sOk}, 0x7fffffff
    ''')
    for j in range(2):
        own_load(j)
    a('s_waitcnt vmcnt(0)')
    own01(T)
    a('s_waitcnt lgkmcnt(0)')
    for j in range(2, 7):
        own_load(j)
    a(f'''s_mov_b32 s{sPar}, {XB}
          s_barrier''')
    for i in range(4):
        for m in MSG:
            a(f'v_mov_b32 v{m+i}, 0')
        a(f'v_mov_b32 v{DL+i}, 0')
    a(f'v_mov_b32 v{vKey}, 0')
    for x in tr_reads():
        a(x)
    acc_zero()
    a('s_waitcnt vmcnt(0) lgkmcnt(0)')
    a(f'''
    s_branch kb_flushA
    kb_done:
    ''')
    if STAMP:
        stamp()
        a('s_waitcnt vmcnt(0)')
        stamp()
        srd(a, S_POS, 24, 25, 0x100000, 0x1000000)
        a(f'''v_lshlrev_b32 v{T}, 2, v0
              s_lshl_b32 s{sT0}, s2, 11
              v_add_u32 v{T}, s{sT0}, v{T}
              buffer_store_dword v{vStamp}, v{T}, {sr(S_POS)}, 0 offen''')
    a(f'''
    s_waitcnt vmcnt(2)
    s_cmp_eq_u32 s{sMode}, 0
    s_cbranch_scc1 kb_exit
    s_waitcnt vmcnt(0) lgkmcnt(0)
    s_barrier
    v_and_b32 v{T+8}, 7, v0
    v_lshlrev_b32 v{T+8}, 2, v{T+8}
    v_add_u32 v{T+8}, {L_GCNT}, v{T+8}
    v_mov_b32 v{T+9}, 0
    ds_write_b32 v{T+8}, v{T+9}
    s_mov_b32 s{S_BASE}, s20
    s_mov_b32 s{S_BASE+1}, s21
    s_cmp_ge_u32 s{sI}, 4
    s_cbranch_scc1 kb_mode2
    s_lshl_b32 s{sT0}, s2, 13
    s_add_u32 s{sT0}, s{sT0}, {WS_CELL - WSO}
    v_lshl_add_u32 v{T+4}, v0, 4, s{sT0}
    v_and_b32 v{T+6}, -64, v{T+4}
    s_lshl_b32 s{sT1}, s{sI}, 2
    buffer_load_dword v{CE+4}, v{T+6}, {sr(S_WS)}, 0 offen
    buffer_load_dword v{CE}, v{T+4}, {sr(S_WS)}, s{sT1} offen
    v_lshrrev_b32 v{T+3}, 7, v0
    v_cmp_eq_u32 s[{GE}:{GE+1}], s{sQ}, v{T+3}
    v_and_b32 v{T+5}, 3, v0
    v_add_u32 v{T+5}, s{sT1}, v{T+5}
    v_lshlrev_b32 v{T+5}, 2, v{T+5}
    v_cmp_ne_u32 vcc, 0, v{T+5}
    s_and_b64 s[{GE}:{GE+1}], vcc, s[{GE}:{GE+1}]
    s_waitcnt vmcnt(0)
    v_and_b32 v{CE+4}, 0xffff, v{CE+4}
    v_cmp_lt_u32 vcc, v{T+5}, v{CE+4}
    s_and_b64 s[{GE}:{GE+1}], vcc, s[{GE}:{GE+1}]
    s_add_u32 s{sQ}, s{sQ}, 1
    s_lshr_b32 s{sT0}, s{sQ}, 2
    s_add_u32 s{sI}, s{sI}, s{sT0}
    s_and_b32 s{sQ}, s{sQ}, 3
    s_branch kb_round
    kb_mode2:
    s_cmp_lt_u32 s{sBase}, s{sLen}
    s_cbranch_scc1 kb_m2_go
    s_add_u32 s{sC}, s{sC}, 1
    s_cmp_ge_u32 s{sC}, {NCHUNK}
    s_cbranch_scc1 kb_exit
    s_lshl_b32 s{sT0}, s2, 13
    s_lshl_b32 s{sT1}, s{sC}, 6
    s_add_u32 s{sT0}, s{sT0}, s{sT1}
    s_add_u32 s{sT0}, s{sT0}, {WS_CELL}
    s_load_dword s{sT1}, s[24:25], s{sT0}
    s_waitcnt lgkmcnt(0)
    s_and_b32 s{sT2}, s{sT1}, 0xffff
    s_lshr_b32 s{sLen}, s{sT1}, 16
    s_cmp_gt_u32 s{sT2}, 64
    s_cselect_b32 s{sLen}, s{sLen}, 0
    s_mov_b32 s{sBase}, 0
    s_branch kb_mode2
    kb_m2_go:
    v_add_u32 v{T+3}, s{sBase}, v0
    v_cmp_gt_u32 s[{GE}:{GE+1}], s{sLen}, v{T+3}
    v_cmp_gt_u32 vcc, 128, v0
    s_and_b64 s[{GE}:{GE+1}], vcc, s[{GE}:{GE+1}]
    s_mov_b64 vcc, s[{GE}:{GE+1}]
    s_mul_i32 s{sT0}, s{sC}, {OVF_STRIDE}
    s_add_u32 s{sT0}, s{sT0}, {WS_OVF - WSO}
    v_lshl_add_u32 v{T+4}, v{T+3}, 2, s{sT0}
    v_mov_b32 v{T+5}, 0x40000000
    v_cndmask_b32 v{T+4}, v{T+5}, v{T+4}, vcc
    buffer_load_dword v{CE}, v{T+4}, {sr(S_WS)}, 0 offen
    s_waitcnt vmcnt(0)
    v_lshrrev_b32 v{T+3}, 16, v{CE}
    v_subrev_u32 v{T+3}, s{sNode0}, v{T+3}
    v_cmp_gt_u32 vcc, 98, v{T+3}
    s_and_b64 s[{GE}:{GE+1}], vcc, s[{GE}:{GE+1}]
    s_add_u32 s{sBase}, s{sBase}, 128
    kb_round:
    s_mov_b64 s[{GE+2}:{GE+3}], 0
    v_mov_b32 v{CE+4}, 0
    s_waitcnt lgkmcnt(0)
    s_barrier
    s_branch kb_propose
    kb_exit:
    s_endpgm
    ''')
    return L_END
```

```python
from consts import *

def srd(a, r, lo, hi, nbytes, off=0):
    if off:
        a(f'''s_add_u32 s{r}, s{lo}, {off}
              s_addc_u32 s{r+1}, s{hi}, 0''')
    else:
        a(f'''s_mov_b32 s{r}, s{lo}
              s_mov_b32 s{r+1}, s{hi}''')
    a(f'''s_mov_b32 s{r+2}, {nbytes}
          s_mov_b32 s{r+3}, 0x00020000''')

NP = 19
L_OVC = 1024
L_TAB = 2048
assert L_TAB + 8 * NP * 1024 <= KA_LDS

def gen_ka(a, opts={}):
    STAMP = opts.get('stampa')
    fl_ = lambda k: (' ' + opts[k].replace('+', ' ')) if opts.get(k) else ''
    KAH, KAR, KAC = fl_('kah'), fl_('kar'), fl_('kac')
    cnt = [0]
    def stamp(reset=False):
        if reset:
            cnt[0] = 1
        if STAMP:
            a(f'''s_memrealtime s[80:81]
                 s_waitcnt lgkmcnt(0)
                 v_writelane_b32 v160, s80, {cnt[0]}''')
            cnt[0] += 1
    def stamp_out():
        if STAMP:
            stamp()
            a('s_waitcnt vmcnt(0)')
            stamp()
            srd(a, 76, 20, 21, 0x100000, 0x1100000)
            a('''v_lshlrev_b32 v161, 2, v0
                 s_lshl_b32 s82, s2, 12
                 v_add_u32 v161, s82, v161
                 buffer_store_dword v160, v161, s[76:79], 0 offen''')
    PFE, PFH, PFN = int(opts.get('pfe', 0)), int(opts.get('pfh', 0)), int(opts.get('pfn', 2))
    def pf():
        srd(a, 68, 4, 5, 25600000)
        a('''s_mul_i32 s72, s2, 100352
             v_lshlrev_b32 v144, 7, v0
             buffer_load_dword v145, v144, s[68:71], s72 offen''')
        if PFN > 1:
            a('''s_add_u32 s72, s72, 65536
                 v_mov_b32 v146, 0x40000000
                 v_cmp_gt_u32 vcc, 272, v0
                 v_cndmask_b32 v144, v146, v144, vcc
                 buffer_load_dword v146, v144, s[68:71], s72 offen''')
    a(f'''
    .globl ka_kernel
    .p2align 8
    .type ka_kernel,@function
    ka_kernel:
    s_load_dwordx16 s[4:19], s[0:1], 0
    s_load_dwordx2 s[20:21], s[0:1], 80
    ''')
    stamp()
    a(f'''
    s_cmp_ge_u32 s2, {KA_GRID}
    s_cbranch_scc1 ka_exit
    v_lshrrev_b32 v1, 6, v0
    v_readfirstlane_b32 s23, v1
    v_and_b32 v1, 63, v0
    s_lshr_b32 s62, s2, 4
    s_lshl_b32 s22, s62, 3
    s_and_b32 s3, s2, 7
    s_or_b32 s22, s22, s3
    s_bitcmp1_b32 s2, 3
    s_cbranch_scc1 ka_h
    ''')
    SV = [4, 5, 6, 7, 8, 9, 10]
    DV = [12, 13, 14, 15, 16, 17, 18]
    a(f"""
    s_mul_i32 s44, s22, {CHUNK*4}
    v_lshl_add_u32 v20, v0, 4, s44
    s_add_u32 s45, s44, {2048*4}
    v_lshl_add_u32 v21, v0, 3, s45
    s_add_u32 s45, s44, {3072*4}
    v_lshl_add_u32 v22, v0, 2, s45
    v_mov_b32 v2, 0x40000000
    v_cmp_gt_u32 vcc, {CHUNK-3072}, v0
    v_cndmask_b32 v22, v2, v22, vcc
    v_lshlrev_b32 v2, 4, v1
    s_mul_i32 s45, s23, {NP*1024}
    s_add_u32 s46, s45, {NP*1024}
    s_mul_i32 s47, s62, {NP}
    s_lshr_b32 s47, s47, 4
    s_lshl_b32 s47, s47, 10
    s_add_u32 s47, s47, s45
    s_waitcnt lgkmcnt(0)
    """)
    srd(a, 32, 6, 7, 150000)
    srd(a, 24, 8, 9, 1600000)
    srd(a, 28, 10, 11, 1600000)
    PRE = int(opts.get('pre', 2))
    for i in range(NP):
        if i == PRE:
            nte = ' nt' if opts.get('nte', '0') == '1' else fl_('kae')
            a(f"""
            buffer_load_dwordx4 v[4:7], v20, s[24:27], 0 offen{nte}
            buffer_load_dwordx4 v[12:15], v20, s[28:31], 0 offen{nte}
            buffer_load_dwordx2 v[8:9], v21, s[24:27], 0 offen{nte}
            buffer_load_dwordx2 v[16:17], v21, s[28:31], 0 offen{nte}
            buffer_load_dword v10, v22, s[24:27], 0 offen{nte}
            buffer_load_dword v18, v22, s[28:31], 0 offen{nte}
            s_barrier
            """)
        a(f"""s_add_u32 m0, s47, {L_TAB}
              buffer_load_dwordx4 v2, s[32:35], s47 offen{fl_('kat')} lds""")
        if i < NP - 1:
            a(f"""s_add_u32 s47, s47, 1024
                  s_cmp_eq_u32 s47, s46
                  s_cselect_b32 s47, s45, s47""")
    if PFE == 1:
        pf()
    XE = PFN if PFE == 1 else 0
    stamp(True)
    a(f"""
    v_lshlrev_b32 v3, 2, v0
    v_mov_b32 v2, 4
    v_cmp_gt_u32 vcc, 256, v0
    v_cndmask_b32 v23, 0, v2, vcc
    ds_write_b32 v3, v23
    v_cmp_gt_u32 s[46:47], s26, v20
    v_cmp_gt_u32 s[54:55], s26, v21
    v_cmp_gt_u32 s[58:59], s26, v22
    s_mov_b64 s[48:49], s[46:47]
    s_mov_b64 s[50:51], s[46:47]
    s_mov_b64 s[52:53], s[46:47]
    s_mov_b64 s[56:57], s[54:55]
    """)
    srd(a, 36, 20, 21, CELL_BYTES, WS_CELL)
    srd(a, 40, 20, 21, OVF_BYTES, WS_OVF)
    a(f"""
    s_mov_b32 s44, 0xffff0000
    s_mov_b32 s45, 0x41c28000
    s_mov_b32 s64, 0x0000bf80
    s_mov_b32 s65, 0xbf800000
    s_movk_i32 s66, {L_TAB}
    s_waitcnt vmcnt({NP-PRE+XE})
    """)
    stamp()
    REC = [64 + k for k in range(7)]
    CA = [80 + k for k in range(7)]
    AS = [88 + k for k in range(7)]
    AD = [96 + k for k in range(7)]
    RK = [104 + k for k in range(7)]
    PS = [24 + 2 * k for k in range(7)]
    PD = [40 + 2 * k for k in range(7)]
    MK = lambda k: f's[{46+2*k}:{47+2*k}]'
    UNAL = opts.get('unal', '0') == '1'
    for k in range(7):
        S, D = SV[k], DV[k]
        a(f"""
        v_mad_u32_u24 v{AS[k]}, v{S}, 6, s66
        v_mad_u32_u24 v{AD[k]}, v{D}, 6, s66
        v_and_b32 v{AS[k]}, -4, v{AS[k]}
        v_and_b32 v{AD[k]}, -4, v{AD[k]}""")
        a(f"""
        v_mul_u32_u24 v56, 10700, v{D}
        v_lshrrev_b32 v56, 20, v56
        v_lshlrev_b32 v{CA[k]}, 2, v56
        v_lshl_or_b32 v{REC[k]}, v{D}, 16, v{S}
        """)
    a(f"""
    s_waitcnt vmcnt({XE}) lgkmcnt(0)
    s_barrier
    """)
    if PFE == 2:
        pf()
    stamp()
    a(f's_mov_b64 exec, {MK(6)}')
    for k in [6, 0, 1, 2, 3, 4, 5]:
        if UNAL:
            a(f"""ds_read_b64 v[{PS[k]}:{PS[k]+1}], v{AS[k]} offset:{L_TAB}
                  ds_read_b64 v[{PD[k]}:{PD[k]+1}], v{AD[k]} offset:{L_TAB}""")
        elif opts.get('b64'):
            a(f"""ds_read_b64 v[{PS[k]}:{PS[k]+1}], v{AS[k]}
                  ds_read_b64 v[{PD[k]}:{PD[k]+1}], v{AD[k]}""")
        else:
            a(f"""ds_read2_b32 v[{PS[k]}:{PS[k]+1}], v{AS[k]} offset1:1
                  ds_read2_b32 v[{PD[k]}:{PD[k]+1}], v{AD[k]} offset1:1""")
        if k == 6:
            a('s_mov_b64 exec, -1')
    if not UNAL:
        for k in range(7):
            a(f"""v_lshlrev_b32 v{SV[k]}, 4, v{SV[k]}
                  v_lshlrev_b32 v{DV[k]}, 4, v{DV[k]}""")
    order = [6, 0, 1, 2, 3, 4, 5]
    def fin(i):
        k = order[i]; t = 56 + 3 * (i & 1)
        a(f"""
        v_mul_f32 v{t}, v{t}, v{t}
        v_fmac_f32 v{t}, v{t+1}, v{t+1}
        v_fmac_f32 v{t}, v{t+2}, v{t+2}
        v_cmp_gt_f32 vcc, s45, v{t}
        s_and_b64 {MK(k)}, {MK(k)}, vcc
        """)
    for i, k in enumerate(order):
        ps, pd = PS[k], PD[k]
        t = 56 + 3 * (i & 1)
        a(f's_waitcnt lgkmcnt({12-2*i})')
        if not UNAL:
            a(f"""
            v_alignbit_b32 v{ps}, v{ps+1}, v{ps}, v{SV[k]}
            v_lshrrev_b32 v{ps+1}, v{SV[k]}, v{ps+1}
            v_alignbit_b32 v{pd}, v{pd+1}, v{pd}, v{DV[k]}
            v_lshrrev_b32 v{pd+1}, v{DV[k]}, v{pd+1}
            """)
        if i:
            fin(i - 1)
        a(f"""
        v_lshlrev_b32 v{t}, 16, v{ps}
        v_and_b32 v{t+1}, s44, v{ps}
        v_lshlrev_b32 v{t+2}, 16, v{ps+1}
        v_dot2_f32_bf16 v{t}, v{pd}, s64, v{t}
        v_dot2_f32_bf16 v{t+1}, v{pd}, s65, v{t+1}
        v_dot2_f32_bf16 v{t+2}, v{pd+1}, s64, v{t+2}
        """)
    fin(6)
    if STAMP == '4': stamp()
    for k in range(7):
        a(f"""s_mov_b64 exec, {MK(k)}
              ds_add_rtn_u32 v{RK[k]}, v{CA[k]}, v2""")
    a(f"""s_mov_b64 exec, -1
         v_and_b32 v3, -4, v0
         v_mov_b32 v12, {L_OVC}
         v_lshrrev_b32 v13, 2, v0
         v_and_b32 v14, 3, v0
         v_lshlrev_b32 v1, 2, v14
         v_lshl_or_b32 v1, v13, 6, v1
         v_add_u32 v1, {L_TAB}, v1
         v_add_u32 v19, 8192, v1
         v_lshlrev_b32 v13, 13, v13
         v_lshl_or_b32 v13, v14, 4, v13
         s_lshl_b32 s3, s22, 6
         v_add_u32 v13, s3, v13
         s_mov_b64 s[60:61], 0
         s_waitcnt lgkmcnt(0)
         s_barrier""")
    stamp()
    for k in range(7):
        a(f"""
        v_cmp_gt_u32 vcc, 64, v{RK[k]}
        v_lshl_add_u32 v{CA[k]}, v{CA[k]}, 4, v{RK[k]}
        s_and_b64 exec, vcc, {MK(k)}
        ds_write_b32 v{CA[k]}, v{REC[k]} offset:{L_TAB}
        s_andn2_b64 {MK(k)}, {MK(k)}, vcc
        s_or_b64 s[60:61], s[60:61], {MK(k)}
        s_mov_b64 exec, -1
        """)
    a(f"""
    s_cmp_eq_u64 s[60:61], 0
    s_cbranch_scc1 ka_e_noovf
    s_mul_i32 s3, s22, {OVF_STRIDE}
    """)
    for k in range(7):
        a(f"""
        s_mov_b64 exec, {MK(k)}
        ds_add_rtn_u32 v57, v12, v2
        s_waitcnt lgkmcnt(0)
        v_add_u32 v57, s3, v57
        buffer_store_dword v{REC[k]}, v57, s[40:43], 0 offen{KAR}
        """)
    a(f"""
    s_mov_b64 exec, -1
    ka_e_noovf:
    v_cmp_eq_u32 vcc, 0, v14
    s_mov_b32 s3, {128*CELL_WG_STRIDE}
    s_waitcnt lgkmcnt(0)
    s_barrier
    """)
    stamp()
    a(f"""
    ds_read_b32 v16, v12
    ds_read2_b32 v[4:5], v1 offset1:4
    ds_read2_b32 v[6:7], v1 offset0:8 offset1:12
    ds_read_b32 v14, v3
    ds_read2_b32 v[8:9], v19 offset1:4
    ds_read2_b32 v[10:11], v19 offset0:8 offset1:12
    ds_read_b32 v15, v3 offset:512
    s_waitcnt lgkmcnt(3)
    v_lshl_or_b32 v14, v16, 14, v14
    v_cndmask_b32 v4, v4, v14, vcc
    buffer_store_dwordx4 v[4:7], v13, s[36:39], 0 offen{KAC}
    s_waitcnt lgkmcnt(0)
    v_lshl_or_b32 v15, v16, 14, v15
    v_cndmask_b32 v8, v8, v15, vcc
    buffer_store_dwordx4 v[8:11], v13, s[36:39], s3 offen{KAC}
    """)
    stamp_out()
    a('s_endpgm')
    a(f'''
    ka_h:
    v_lshrrev_b32 v2, 4, v1
    v_and_b32 v3, 15, v1
    s_cmp_ge_u32 s22, 112
    s_cbranch_scc1 ka_prep
    v_lshlrev_b32 v4, 2, v2
    v_xor_b32 v4, v4, v3
    v_lshlrev_b32 v4, 4, v4
    v_lshl_or_b32 v4, v2, 8, v4
    s_and_b32 s24, s23, 3
    s_lshl_b32 s24, s24, 13
    s_and_b32 s42, s62, 7
    s_lshl_b32 s42, s42, 10
    s_lshl_b32 s26, s23, 5
    s_mul_i32 s27, s22, 224
    s_add_u32 s26, s26, s27
    s_lshl_b32 s25, s23, 13
    s_add_u32 s25, s25, 32768
    v_xor_b32 v7, v2, v3
    v_lshlrev_b32 v7, 4, v7
    v_add_u32 v8, s26, v2
    v_lshl_or_b32 v7, v8, 10, v7
    s_waitcnt lgkmcnt(0)
    ''')
    srd(a, 28, 14, 15, 32768)
    srd(a, 32, 4, 5, 25600000)
    a('''s_or_b32 s3, s24, s42
         s_cmp_lt_u32 s23, 4
         s_cbranch_scc1 ka_hs0''')
    for i in range(7):
        a(f'''s_add_u32 s42, s42, 1024
              s_and_b32 s42, s42, 0x1fff
              s_or_b32 s3, s24, s42
              s_mov_b32 m0, s3
              buffer_load_dwordx4 v4, s[28:31], s3 offen lds''')
    HS = opts.get('hs', '0') == '1'
    a('''s_cmp_lg_u32 s23, 7
         s_cbranch_scc1 ka_hs
         s_waitcnt vmcnt(0)
         s_barrier
         s_branch ka_pfexit''' if HS else '''s_waitcnt vmcnt(0)
         s_barrier
         s_cmp_eq_u32 s23, 7
         s_cbranch_scc1 ka_pfexit
         s_branch ka_hs''')
    a('''ka_hs0:
         s_mov_b32 m0, s3
         buffer_load_dwordx4 v4, s[28:31], s3 offen lds
         ka_hs:''')
    for i in range(8):
        a(f'''v_xor_b32 v{16+i}, {((4*i) & 15) << 4}, v7
              s_add_u32 m0, s25, {1024*i}
              s_movk_i32 s3, {4096*i}
              buffer_load_dwordx4 v{16+i}, s[32:35], s3 offen{' nt' if opts.get('nts', '0') == '1' else fl_('kas')} lds''')
    if PFH == 1:
        pf()
    XH = PFN if PFH == 1 else 0
    srd(a, 36, 20, 21, 6400000, WS_H)
    a(f'''
    v_lshrrev_b32 v6, 5, v1
    v_bfe_u32 v8, v1, 2, 2
    v_and_b32 v9, 1, v1
    v_lshlrev_b32 v9, 5, v9
    v_and_b32 v10, 1, v2
    v_lshl_or_b32 v9, v10, 4, v9
    v_bfe_u32 v10, v1, 1, 1
    v_lshl_or_b32 v9, v10, 3, v9
    v_lshlrev_b32 v10, 6, v8
    v_xor_b32 v9, v9, v10
    v_lshl_add_u32 v10, v6, 3, v8
    v_lshl_or_b32 v11, v10, 8, v9
    v_xor_b32 v12, 64, v11
    v_xor_b32 v13, 0x80, v11
    v_xor_b32 v14, 0xc0, v11
    v_and_b32 v5, 31, v1
    v_xor_b32 v15, v6, v3
    v_lshlrev_b32 v15, 4, v15
    v_lshl_or_b32 v15, v5, 8, v15
    v_add_u32 v15, s25, v15
    v_add_u32 v5, s26, v5
    v_lshlrev_b32 v5, 8, v5
    v_lshl_or_b32 v5, v6, 5, v5
    s_mov_b32 s40, 0xbfb8aa3b
    s_mov_b32 s41, 0xbfb8aa3b
    ''')
    stamp(True)
    a(f'''
    s_cmp_ge_u32 s23, {8 if HS else 4}
    s_cbranch_scc1 ka_hnb
    s_waitcnt vmcnt({8+XH})
    s_barrier
    ka_hnb:
    ''')
    stamp()
    BF = 16
    AF = 48
    ACC = [80, 96]
    TM = 112
    OUT = 128
    def rdA(j):
        mt, s = j >> 3, j & 7
        b = AF + 4 * (j % 8)
        for u in range(2):
            a(f'ds_read_b64_tr_b16 v[{b+2*u}:{b+2*u+1}], v{11+mt} offset:{s*4096+u*1024}')
    for j in range(3):
        rdA(j)
    a(f's_waitcnt vmcnt({XH})')
    if PFH == 2:
        pf()
    stamp()
    for s in range(8):
        if s:
            a(f'v_xor_b32 v{TM+s}, {32*s}, v15')
        a(f'ds_read_b128 v[{BF+4*s}:{BF+4*s+3}], v{TM+s if s else 15}')
    def silu(mt):
        A = ACC[mt & 1]
        o = OUT + 8 * (mt & 1)
        out = []
        for h in range(2):
            r = range(4 * h, 4 * h + 4)
            r8 = range(8 * h, 8 * h + 8)
            if opts.get('pk', '0') == '0':
                out += [f'v_mul_f32 v{TM+i}, s40, v{A+i}' for i in r8]
                out += [f'v_exp_f32 v{TM+i}, v{TM+i}' for i in r8]
                out += [f'v_add_f32 v{TM+i}, 1.0, v{TM+i}' for i in r8]
                out += [f'v_rcp_f32 v{TM+i}, v{TM+i}' for i in r8]
                out += [f'v_mul_f32 v{TM+i}, v{TM+i}, v{A+i}' for i in r8]
                out += [f'v_cvt_pk_bf16_f32 v{o+i}, v{TM+2*i}, v{TM+2*i+1}' for i in r]
                out += [f'buffer_store_dwordx4 v[{o+4*h}:{o+4*h+3}], v5, s[36:39], 0 offen offset:{64*mt+16*h}{KAH}']
                continue
            out += [f'v_pk_mul_f32 v[{TM+2*i}:{TM+2*i+1}], v[{A+2*i}:{A+2*i+1}], s[40:41]' for i in r]
            out += [f'v_exp_f32 v{TM+i}, v{TM+i}' for i in range(8 * h, 8 * h + 8)]
            out += [f'v_pk_add_f32 v[{TM+2*i}:{TM+2*i+1}], v[{TM+2*i}:{TM+2*i+1}], 1.0 op_sel_hi:[1,0]' for i in r]
            out += [f'v_rcp_f32 v{TM+i}, v{TM+i}' for i in range(8 * h, 8 * h + 8)]
            out += [f'v_pk_mul_f32 v[{TM+2*i}:{TM+2*i+1}], v[{TM+2*i}:{TM+2*i+1}], v[{A+2*i}:{A+2*i+1}]' for i in r]
            out += [f'v_cvt_pk_bf16_f32 v{o+i}, v{TM+2*i}, v{TM+2*i+1}' for i in r]
            out += [f'buffer_store_dwordx4 v[{o+4*h}:{o+4*h+3}], v5, s[36:39], 0 offen offset:{64*mt+16*h}{KAH}']
        return out
    pend = []
    q = ['A0', 'A0', 'A1', 'A1', 'A2', 'A2'] + [f'B{s}' for s in range(8)]
    nextA = 3
    for j in range(32):
        mt, s = j >> 3, j & 7
        while nextA < 32 and nextA <= j + 5 and len(q) <= 13:
            rdA(nextA); q += [f'A{nextA}'] * 2; nextA += 1
        need = [i for i, t in enumerate(q) if t == f'A{j}' or (mt == 0 and t == f'B{s}')]
        if need:
            last = max(need)
            a(f's_waitcnt lgkmcnt({len(q) - 1 - last})')
            q = q[last + 1:]
        b = AF + 4 * (j % 8)
        A = ACC[mt & 1]
        c = '0' if s == 0 else f'v[{A}:{A+15}]'
        a(f'v_mfma_f32_32x32x16_bf16 v[{A}:{A+15}], v[{b}:{b+3}], v[{BF+4*s}:{BF+4*s+3}], {c}')
        if s == 1 and mt > 0:
            pend = silu(mt - 1)
        if pend and s >= 1:
            n = (len(pend) + (7 - s)) // (8 - s)
            for x in pend[:n]:
                a(x)
            pend = pend[n:]
    stamp()
    for x in silu(3):
        a(x)
    stamp_out()
    a('s_endpgm')
    a(f'''
    ka_prep:
    s_sub_u32 s24, s22, 112
    s_lshl_b32 s24, s24, 3
    s_add_u32 s24, s24, s23
    s_waitcnt lgkmcnt(0)
    s_cmp_ge_u32 s24, 120
    s_cbranch_scc1 ka_pfexit
    s_cmp_ge_u32 s24, 96
    s_cbranch_scc1 ka_prep_wr
    s_lshr_b32 s25, s24, 2
    s_and_b32 s26, s24, 3
    s_mul_i32 s27, s25, 0x5556
    s_lshr_b32 s27, s27, 16
    s_mul_i32 s3, s27, 3
    s_sub_u32 s3, s25, s3
    s_lshl_b32 s27, s27, 5
    s_lshl_b32 s3, s3, 8
    s_add_u32 s27, s27, s3
    s_mul_i32 s26, s26, {32*768}
    s_add_u32 s27, s27, s26
    v_mul_u32_u24 v4, {8*768}, v2
    v_lshl_add_u32 v4, v3, 1, v4
    v_add_u32 v4, s27, v4
    s_lshl_b32 s3, s24, 10
    v_lshlrev_b32 v5, 4, v1
    v_add_u32 v5, s3, v5
    v_add_u32 v6, {4*768}, v4
    ''')
    srd(a, 40, 16, 17, 98304)
    srd(a, 44, 20, 21, 98304, WS_W2P)
    for j in range(8):
        a(f'buffer_load_ushort v{12+j}, v{4 if j < 4 else 6}, s[40:43], 0 offen offset:{768*(j&3)}')
    a('s_waitcnt vmcnt(0)')
    for j in range(4):
        a(f'v_lshl_or_b32 v{8+j}, v{13+2*j}, 16, v{12+2*j}')
    a(f'''
    buffer_store_dwordx4 v[8:11], v5, s[44:47], 0 offen
    s_branch ka_pfexit
    ka_prep_wr:
    s_sub_u32 s25, s24, 96
    s_mul_i32 s27, s25, 0x5556
    s_lshr_b32 s27, s27, 16
    s_mul_i32 s3, s27, 3
    s_sub_u32 s3, s25, s3
    s_lshl_b32 s27, s27, 5
    s_lshl_b32 s3, s3, 8
    s_add_u32 s27, s27, s3
    v_mul_u32_u24 v4, {4*768}, v2
    v_lshl_add_u32 v4, v3, 1, v4
    v_add_u32 v4, s27, v4
    s_lshl_b32 s3, s25, 9
    v_lshlrev_b32 v5, 3, v1
    v_add_u32 v5, s3, v5
    ''')
    srd(a, 40, 18, 19, 12288)
    srd(a, 44, 20, 21, 12288, WS_WRP)
    for j in range(4):
        a(f'buffer_load_ushort v{12+j}, v4, s[40:43], 0 offen offset:{768*j}')
    a('s_waitcnt vmcnt(0)')
    for j in range(2):
        a(f'v_lshl_or_b32 v{8+j}, v{13+2*j}, 16, v{12+2*j}')
    a(f'''
    buffer_store_dwordx2 v[8:9], v5, s[44:47], 0 offen
    ka_pfexit:
    ''')
    if PFH:
        pf()
    a(f'''
    ka_exit:
    s_endpgm
    ''')
```

```python
from consts import *
from gen_ka import srd

L_RING = 0
L_STG = 98304
STG_H = 16 * 528
L_TMP = L_STG + 4 * STG_H
L_GCNT = L_TMP + 3584
L_RBF = L_GCNT + 64
L_META = L_RBF + 16384
L_END = L_META + 16 * 512
assert L_RBF % 16 == 0 and L_META % 16 == 0 and L_END <= 163840
LISTCAP = 416
PADSRC = 0x100000

class RA:
    def __init__(self, start=1):
        self.n = start
    def __call__(self, k=1, align=1):
        self.n = (self.n + align - 1) // align * align
        r = self.n
        self.n += k
        return r

def vr(b, k):
    return f'v[{b}:{b+k-1}]'

def gen_kb(a, opts):
    R = RA(1)
    vSwzH, vSwzV, vAV, vAR, vAS, vBP, vKey, vOut, vSrc, vSrcB, vOH, vOV, vOne, vOwnA, vStamp = [R() for _ in range(15)]
    vAH = R(4)
    W2 = R(48, 4); WR = R(6, 2); RBF = R(4, 2)
    OWN = R(40, 4); ACC = R(16, 4)
    PHI = [R(12, 4), R(12, 4)]; WRD = R(12, 4)
    HA = R(16, 4); HB = R(16, 4)
    V = R(24, 4)
    DLT = R(8, 4); vOut2 = R(); vStgW = R(); vStgR = R(); vStgT = R(); IDN = R(2, 2)
    FD = R(2) if 'f0' in ''.join(str(v) for v in opts.values()) else None
    TR = V
    XB = 2 * STG_H
    OS = lambda j: (j + 3) % 5
    assert R.n <= 256, R.n
    RR = [HA, HB]
    DL = HA + 12; SEL = HB + 12
    MSG = [RBF, WRD, WRD + 4, WRD + 8]
    S_SV, S_OUT, S_H, S_POS, S_WS, S_BASE = 28, 32, 36, 40, 44, 48
    sW, sMask, sNode0, sMode, sI, sQ, sC, sLen, sBase = 52, 53, 54, 55, 26, 27, 3, 88, 89
    FR = 64
    GE = 80
    sGP = 90
    sTot, sTe, sGend, sGst, sG, sStA, sStB, sStC, sDma, sX = 92, 93, 94, 95, 96, 97, 98, 99, 100, 101
    s256, s512, s768 = 56, 57, 58
    sT0, sT1, sT2, sT3 = 59, 60, 61, 62
    sW2, sC8, sT4, sSl = 16, 17, 18, 19
    sOwO, sStO = sStA, sStB
    sPend, sPar = 12, 13
    sOk, sOwnN, sK8, sNeg, sGC, sTM = 8, 9, 10, 11, 14, 15
    WSO = WS_W2P
    sr = lambda b: f's[{b}:{b+3}]'
    M = f's{sMask}'
    STAMP = opts.get('stamp')
    def stamp():
        if STAMP:
            a(f'''{"s_memtime" if STAMP == "2" else "s_memrealtime"} s[22:23]
                 s_waitcnt lgkmcnt(0)
                 s_mov_b32 m0, s63
                 s_nop 1
                 v_writelane_b32 v{vStamp}, s22, m0
                 s_add_u32 s63, s63, 1
                 s_min_u32 s63, s63, 63''')
    def fstamp():
        if opts.get('fine'):
            stamp()
    a(f'''
    .globl kb_kernel
    .p2align 8
    .type kb_kernel,@function
    kb_kernel:
    s_cmp_ge_u32 s2, 256
    s_cbranch_scc1 kb_exit
    s_load_dwordx2 s[24:25], s[0:1], 80
    s_load_dwordx4 s[4:7], s[0:1], 0
    s_load_dwordx2 s[20:21], s[0:1], 64
    s_load_dwordx2 s[12:13], s[0:1], 32
    ''')
    T = PHI[0]
    U = HA
    CE = V
    tL, tN, tG = T, T + 1, T + 2
    def out_base():
        a(f'''
        v_and_b32 v{tN}, 15, v0
        v_bfe_u32 v{tG}, v0, 4, 2
        v_bfe_u32 v{T+10}, v0, 3, 3
        v_lshlrev_b32 v{T+10}, 8, v{T+10}
        v_and_b32 v{T+11}, 7, v0
        v_lshl_or_b32 v{T+10}, v{T+11}, 4, v{T+10}
        s_and_b32 s{sT2}, s{sW}, 3
        s_lshl_b32 s{sT3}, s{sT2}, 2
        s_add_u32 s{sT3}, s{sT3}, s{sNode0}
        s_lshl_b32 s{sT3}, s{sT3}, 10
        s_lshr_b32 s{sT1}, s{sW}, 2
        s_lshl_b32 s{sT4}, s{sT1}, 7
        s_add_u32 s{sT3}, s{sT3}, s{sT4}
        v_add_u32 v{vOut}, s{sT3}, v{T+10}
        s_cmp_eq_u32 s{sT2}, 3
        s_cselect_b32 s{sT3}, 0x40000000, 0
        v_add_u32 v{vOut2}, s{sT3}, v{vOut}
        s_mul_i32 s{sT1}, s{sT1}, {STG_H}
        s_add_u32 s{sT1}, s{sT1}, {L_STG}
        s_lshl_b32 s{sT3}, s{sT2}, 5
        s_add_u32 s{sT3}, s{sT3}, s{sT1}
        v_mul_u32_u24 v{T+10}, 528, v{tN}
        v_lshl_add_u32 v{T+10}, v{tG}, 3, v{T+10}
        v_add_u32 v{vStgW}, s{sT3}, v{T+10}
        v_bfe_u32 v{T+10}, v0, 2, 4
        v_mul_u32_u24 v{T+10}, 528, v{T+10}
        v_and_b32 v{T+11}, 3, v0
        v_lshl_add_u32 v{T+10}, v{T+11}, 3, v{T+10}
        v_add_u32 v{vStgT}, s{sT3}, v{T+10}
        v_lshlrev_b32 v{T+10}, 2, v{tG}
        v_sub_u32 v{T+10}, v{tN}, v{T+10}
        v_mov_b32 v{T+11}, 0x3f80
        v_mov_b32 v{T+12}, 0x3f800000
        v_cmp_eq_u32 vcc, 0, v{T+10}
        v_cndmask_b32 v{IDN}, 0, v{T+11}, vcc
        v_cmp_eq_u32 vcc, 1, v{T+10}
        v_cndmask_b32 v{IDN}, v{IDN}, v{T+12}, vcc
        v_cmp_eq_u32 vcc, 2, v{T+10}
        v_cndmask_b32 v{IDN+1}, 0, v{T+11}, vcc
        v_cmp_eq_u32 vcc, 3, v{T+10}
        v_cndmask_b32 v{IDN+1}, v{IDN+1}, v{T+12}, vcc
        s_mul_i32 s{sT3}, s{sT2}, {4*528}
        s_add_u32 s{sT3}, s{sT3}, s{sT1}
        s_add_u32 s{sT3}, s{sT3}, {XB}
        v_bfe_u32 v{T+10}, v0, 5, 1
        v_mul_u32_u24 v{T+10}, 528, v{T+10}
        v_and_b32 v{T+11}, 31, v0
        v_lshl_add_u32 v{T+10}, v{T+11}, 4, v{T+10}
        v_add_u32 v{vStgR}, s{sT3}, v{T+10}
        ''')
    NTO = ' nt' if opts.get('ntown', '0') == '1' else ''
    NTS = ' nt sc1' if opts.get('ntst', '1') == '1' else ''
    fl_ = lambda k: (' ' + opts[k].replace('+', ' ')) if opts.get(k) else ''
    if opts.get('kbs'): NTS = fl_('kbs')
    if opts.get('kbo'): NTO = fl_('kbo')
    GV, GH = fl_('gv'), fl_('gh')
    def own_ins(j, flags, so=sT3):
        return [f'buffer_load_dwordx4 {vr(OWN+8*OS(j)+4*b,4)}, v{[vOut, vOut2][b]}, {sr(S_BASE)}, s{so} offen offset:{2048*b}{flags}' for b in range(2)]
    def own_load(j, flags=None):
        a(f's_mov_b32 s{sT3}, {14336*j}')
        for x in own_ins(j, NTO if flags is None else flags):
            a(x)
    def own01(t):
        a(f'v_subrev_u32 v{t}, {XB}, v{vStgR}')
        for j in range(2):
            for b in range(2):
                a(f'ds_write_b128 v{t}, {vr(OWN+8*OS(j)+4*b,4)} offset:{XB*j+1056*b}')
    def tr_reads():
        return [f'ds_read_b64_tr_b16 {vr(TR+2*c,2)}, v{vStgT} offset:{128*c}' for c in range(4)]
    def toggle():
        a(f'''v_add_u32 v{vStgW}, s{sPar}, v{vStgW}
              v_add_u32 v{vStgT}, s{sPar}, v{vStgT}
              v_subrev_u32 v{vStgR}, s{sPar}, v{vStgR}
              s_sub_u32 s{sPar}, 0, s{sPar}''')
    a(f'''
    v_lshrrev_b32 v{T+3}, 6, v0
    v_readfirstlane_b32 s{sW}, v{T+3}
    s_lshl_b32 s{sT0}, s2, 13
    s_add_u32 s{sT0}, s{sT0}, {WS_CELL - WSO}
    v_lshl_add_u32 v{T+4}, v0, 4, s{sT0}
    s_mul_i32 s{sNode0}, s2, 98
    s_mov_b32 s63, 0
    ''')
    a('s_waitcnt lgkmcnt(0)')
    stamp()
    srd(a, S_WS, 24, 25, WS_OVF + OVF_BYTES - WSO, WSO)
    a(f'''
    buffer_load_dwordx4 {vr(CE,4)}, v{T+4}, {sr(S_WS)}, 0 offen
    v_and_b32 v{tL}, 63, v0
    v_lshlrev_b32 v{CE+7}, 4, v{tL}
    v_lshlrev_b32 v{CE+8}, 3, v{tL}
    s_mul_i32 s{sW2}, s{sW}, 12288
    s_mul_i32 s{sT2}, s{sW}, 1536
    s_add_u32 s{sT2}, s{sT2}, {WS_WRP - WSO}
    ''')
    srd(a, S_BASE, 4, 5, 25600000)
    srd(a, S_SV, 4, 5, 25600000)
    srd(a, S_OUT, 20, 21, 25600000)
    srd(a, S_H, 24, 25, 6400000, WS_H)
    srd(a, S_POS, 6, 7, 150000)
    VM = []
    def wbatch(first):
        lab = 'kb_wb%d' % first
        a(f'''s_bitcmp{1 if not first else 0}_b32 s2, {opts.get('rotbit', 3)}
              s_cbranch_scc1 {lab}_1''')
        for h in range(2):
            a(f's_add_u32 s{sT1}, s{sW2}, {6144*h}')
            for i in range(6):
                if i == 4:
                    a(f's_add_u32 s{sT1}, s{sT1}, 4096')
                a(f'buffer_load_dwordx4 {vr(W2+4*(6*h+i),4)}, v{CE+7}, {sr(S_WS)}, s{sT1} offen offset:{1024*(i%4)}{fl_("kbw")}')
            if h == 0:
                a(f'''s_branch {lab}_e
                      {lab}_1:''')
        a(f'{lab}_e:')
        VM.extend(['w'] * 6)
    def wr_load():
        for i in range(3):
            a(f'buffer_load_dwordx2 {vr(WR+2*i,2)}, v{CE+8}, {sr(S_WS)}, s{sT2} offen offset:{512*i}{fl_("kbw")}')
        VM.extend(['w'] * 3)
    SRC3 = V + 12
    def dma_addr(srcb):
        o = []
        if opts.get('fakesrc'):
            o.append(f'v_and_b32 v{srcb}, {opts["fakesrc"]}, v{srcb}')
        o += [f'v_lshl_add_u32 v{vOH}, v{srcb}, 8, v{vSwzH}', f'v_lshl_add_u32 v{vOV}, v{srcb}, 10, v{vSwzV}']
        return o
    def dma_piece(k):
        if opts.get('nodma'):
            return [f's_mov_b32 m0, s{sDma}']
        if k == 0:
            return [f's_mov_b32 m0, s{sDma}', f'buffer_load_dwordx4 v{vOH}, {sr(S_H)}, 0 offen{GH} lds']
        o = [f's_add_u32 m0, s{sDma}, {1024*k}', f'buffer_load_dwordx4 v{vOV}, {sr(S_SV)}, s{[0, s256, s512, s768][k]} offen{GV} lds']
        if k == 3:
            o += [f's_add_u32 s{sDma}, s{sDma}, 0x8000', f's_cmp_ge_u32 s{sDma}, 0x18000',
                  f's_cselect_b32 s{sT4}, 0x18000, 0', f's_sub_u32 s{sDma}, s{sDma}, s{sT4}']
        return o
    def item_groups(it):
        k, j = it[0], int(it[1])
        if k == 'o':
            g = [[x] for x in own_ins(j, NTO)]
            g[0].insert(0, f's_mov_b32 s{sT3}, {14336*j}')
        elif k == 'f':
            FSH = int(opts.get('fsh', 7))
            off = int(opts.get('fo', 28672)) + (512 << FSH) * j
            g = [[f's_mul_i32 s{sT3}, s2, 100352', f's_add_u32 s{sT3}, s{sT3}, {off}',
                  f'v_lshlrev_b32 v{FD+j}, {FSH}, v0', f'v_min_u32 v{FD+j}, {100352 - 128 - off}, v{FD+j}',
                  f'buffer_load_dword v{FD+j}, v{FD+j}, {sr(S_BASE)}, s{sT3} offen{fl_("kbf")}']]
        else:
            nd = opts.pop('nodma', None)
            g = [dma_piece(q) for q in range(4)]
            if nd:
                opts['nodma'] = nd
            g[0] = dma_addr(SRC3 + j) + g[0]
        return [(it, x) for x in g]
    def emit_items(items):
        for it in items:
            if it == 't':
                a(f'''kb_touch1__kb_t1__{opts.get('tend', 'kb_loopA')}__{sW}:
                      kb_t1:''')
            elif it == 'w0':
                wbatch(0)
            elif it == 'w1':
                wbatch(1)
            elif it == 'wr':
                wr_load()
            else:
                for tag, g in item_groups(it):
                    for x in g:
                        a(x)
                    VM.append(tag)
    def vm_after(tags):
        last = max(i for i, t in enumerate(VM) if t in tags)
        return len(VM) - 1 - last
    P1 = opts.get('p1', 'w0,wr').split(',')
    P1B = [x for x in opts.get('p1b', 'o0,o1').split(',') if x]
    P2 = opts.get('p2', 'd0,w1,o2').split(',')
    P3 = opts.get('p3', 'd1').split(',')
    NPRE = 1 + max(int(x[1]) for x in P1 + P1B + P2 + P3 if x[0] == 'o')
    OBF = any(x[0] == 'o' for x in P1)
    assert not any(x[0] in 'd' for x in P1) and not any(x[0] in 'dw' for x in P1B)
    assert 2 <= NPRE <= 4 and sorted(x for x in P1 + P1B + P2 + P3 if x[0] == 'o') == ['o%d' % i for i in range(NPRE)]
    if OBF:
        out_base()
        a(f'''s_mul_i32 s{sT2}, s{sW}, 1536
              s_add_u32 s{sT2}, s{sT2}, {WS_WRP - WSO}''')
    VM.append('cell')
    a(f'''
    v_and_b32 v{T+8}, 7, v0
    v_lshlrev_b32 v{T+8}, 2, v{T+8}
    v_add_u32 v{T+8}, {L_GCNT}, v{T+8}
    v_mov_b32 v{T+9}, 0
    ds_write_b32 v{T+8}, v{T+9}
    s_waitcnt lgkmcnt(0)
    s_barrier
    s_load_dwordx8 s[{FR}:{FR+7}], s[12:13], 0
    ''')
    emit_items(P1)
    if not OBF:
        out_base()
    emit_items(P1B)
    a(f'''
    s_mov_b32 s{sMask}, 0xffff0000
    s_mov_b32 s{sMode}, 0
    s_movk_i32 s{s256}, 256
    s_movk_i32 s{s512}, 512
    s_movk_i32 s{s768}, 768
    s_mov_b32 s{sK8}, 0x80008000
    s_mov_b32 s{sC8}, 0x8000
    s_mul_i32 s{sNeg}, s2, {-147*98}
    s_mov_b32 s{sGC}, {L_GCNT}
    s_mov_b32 s{sTM}, {L_TMP}
    v_mov_b32 v{vOne}, 0x3f803f80
    s_lshr_b32 s{sT0}, s{sW}, 1
    s_lshl_b32 s{sT1}, s{sT0}, 2
    v_add_u32 v{T+3}, s{sT1}, v{tG}
    v_xor_b32 v{T+3}, v{T+3}, v{tN}
    v_lshlrev_b32 v{vSwzH}, 4, v{T+3}
    v_and_b32 v{T+3}, 1, v{tG}
    v_lshl_or_b32 v{T+3}, v{T+3}, 1, s{sT1}
    v_xor_b32 v{T+3}, v{T+3}, v{tN}
    v_lshlrev_b32 v{vSwzV}, 4, v{T+3}
    v_and_b32 v{T+5}, 3, v0
    v_lshlrev_b32 v{T+5}, 2, v{T+5}
    v_cmp_ne_u32 s[{GE+2}:{GE+3}], 0, v{T+5}
    ''')
    if opts.get('pret', '0') == '1':
        a(f'''s_mov_b32 s{sOwnN}, 99
              s_cmp_ge_u32 s{sW}, {opts.get('bfrom', 4)}
              s_cbranch_scc1 kb_ownB
              s_branch kb_ownA''')
    a('kb_pret:')
    stamp()
    a(f'''
    s_waitcnt vmcnt({vm_after(['cell'])}) lgkmcnt(0)
    v_and_b32 v{CE+4}, 0xffff, v{CE}
    v_mov_b32_dpp v{CE+4}, v{CE+4} quad_perm:[0,0,0,0] row_mask:0xf bank_mask:0xf
    ''')
    for k in range(7, -1, -1):
        a(f'''s_and_b32 s{FR+2*k+1}, s{FR+k}, s{sMask}
              s_lshl_b32 s{FR+2*k}, s{FR+k}, 16''')
    a(f'''
    v_sub_u32 v{CE+5}, v{CE+4}, v{T+5}
    v_cmp_lt_i32 vcc, 0, v{CE+5}
    s_and_b64 s[{GE}:{GE+1}], vcc, s[{GE+2}:{GE+3}]
    v_cmp_lt_i32 s[{GE+2}:{GE+3}], 16, v{CE+5}
    kb_propose:
    v_mov_b32 v{T+9}, 1
    v_mov_b32 v{CE+6}, 147
    v_and_b32 v{tL}, 63, v0
    v_lshlrev_b32 v{CE+7}, 4, v{tL}
    v_lshlrev_b32 v{CE+8}, 3, v{tL}
    ''')
    stamp()
    def wload(n):
        pass
    def prop(lo, nw):
        for q in range(2):
            a(f'''
            v_lshrrev_b32 v{U+q}, 16, v{CE+lo+q}
            v_mad_u32_u24 v{U+q}, v{U+q}, v{CE+6}, s{sNeg}
            v_lshrrev_b32 v{U+q}, 11, v{U+q}
            v_lshl_add_u32 v{U+4+q}, v{U+q}, 2, s{sGC}
            ''')
        for q in range(2):
            a(f'''s_mov_b64 exec, s[{GE+2*q}:{GE+2*q+1}]
                  ds_add_rtn_u32 v{U+8+q}, v{U+4+q}, v{T+9}''')
        a('s_mov_b64 exec, -1')
        for q in range(2):
            a(f'v_lshl_add_u32 v{U+q}, v{U+q}, 9, s{sTM}')
        wload(nw)
        a('s_waitcnt lgkmcnt(0)')
        for q in range(2):
            a(f'''v_min_u32 v{U+8+q}, 0x7f, v{U+8+q}
                  v_lshl_add_u32 v{U+q}, v{U+8+q}, 2, v{U+q}''')
        for q in range(2):
            a(f'''s_mov_b64 exec, s[{GE+2*q}:{GE+2*q+1}]
                  ds_write_b32 v{U+q}, v{CE+lo+q}''')
        a('s_mov_b64 exec, -1')
    W1N = W2N = W3N = 0
    prop(0, W1N)
    a(f'''
    v_cmp_lt_u32 vcc, 32, v{CE+4}
    s_cbranch_vccz kb_prop_done
    v_cmp_lt_i32 s[{GE}:{GE+1}], 32, v{CE+5}
    v_cmp_lt_i32 s[{GE+2}:{GE+3}], 48, v{CE+5}
    ''')
    prop(2, 0)
    a(f'''
    v_cmp_lt_u32 vcc, 64, v{CE+4}
    v_mov_b32 v{U}, {L_GCNT + 28}
    s_mov_b64 exec, vcc
    ds_add_u32 v{U}, v{T+9}
    s_mov_b64 exec, -1
    kb_prop_done:
    v_mov_b32 v{U}, {L_GCNT}
    s_waitcnt lgkmcnt(0)
    s_barrier
    ds_read_b128 {vr(U+4,4)}, v{U}
    ds_read_b128 {vr(U+8,4)}, v{U} offset:16
    ''')
    wload(W2N)
    tP = T + 3
    a(f'''
    v_and_b32 v{tN}, 15, v0
    v_bfe_u32 v{tG}, v0, 4, 2
    v_lshrrev_b32 v{T+4}, 2, v{tL}
    v_and_b32 v{T+5}, 3, v{tL}
    s_lshl_b32 s{sT0}, s{sW}, 2
    v_add_u32 v{T+6}, s{sT0}, v{T+5}
    v_lshl_add_u32 v{tP}, v{T+4}, 5, v{T+6}
    v_lshl_add_u32 v{T+7}, v{tP}, 2, s{sTM}
    s_waitcnt lgkmcnt(0)
    ''')
    stamp()
    for j in range(8):
        a(f'v_readfirstlane_b32 s{GE+j}, v{U+4+j}')
    sA, sB, sD = sStA, sStB, sStC
    a(f'''
    s_max_u32 s{sA}, s{GE}, s{GE+1}
    s_max_u32 s{sB}, s{GE+2}, s{GE+3}
    s_max_u32 s{sD}, s{GE+4}, s{GE+5}
    s_max_u32 s{sA}, s{sA}, s{GE+6}
    s_max_u32 s{sB}, s{sB}, s{sD}
    s_max_u32 s{sA}, s{sA}, s{sB}
    s_mov_b32 s{sTot}, 0
    ''')
    for j in range(7):
        a(f's_add_u32 s{sTot}, s{sTot}, s{GE+j}')
        if j < 6:
            a(f'''s_lshl_b32 s{sB}, s{GE+j}, 2
                  s_sub_u32 s{sB}, 512, s{sB}
                  v_cmpx_le_u32 vcc, s{sTot}, v{tP}
                  v_add_u32 v{T+7}, s{sB}, v{T+7}''')
        a(f's_mov_b32 s{GE+j}, s{sTot}')
    a(f'''
    s_mov_b64 exec, -1
    ds_read_b32 v{T+8}, v{T+7}
    ''')
    wload(W3N)
    a(f'''
    s_cmp_gt_u32 s{sA}, 128
    s_cselect_b32 s{GE+7}, 1, s{GE+7}
    s_cmp_gt_u32 s{sTot}, {LISTCAP}
    s_cselect_b32 s{GE+7}, 1, s{GE+7}
    s_cmp_lg_u32 s{GE+7}, 0
    s_cbranch_scc1 kb_go_slow
    s_cmp_eq_u32 s{sTot}, 0
    s_cbranch_scc1 kb_empty
    ''')
    a(f'''
    s_lshl_b32 s{sT0}, s{GE+1}, 9
    s_or_b32 s{sGP}, s{GE}, s{sT0}
    s_lshl_b32 s{sT0}, s{GE+2}, 18
    s_or_b32 s{sGP}, s{sGP}, s{sT0}
    s_lshl_b32 s{sT0}, s{GE+3}, 27
    s_or_b32 s{sGP}, s{sGP}, s{sT0}
    s_lshr_b32 s{sGP+1}, s{GE+3}, 5
    s_lshl_b32 s{sT0}, s{GE+4}, 4
    s_or_b32 s{sGP+1}, s{sGP+1}, s{sT0}
    s_lshl_b32 s{sT0}, s{GE+5}, 13
    s_or_b32 s{sGP+1}, s{sGP+1}, s{sT0}
    s_lshl_b32 s{sT0}, s{GE+6}, 22
    s_or_b32 s{sGP+1}, s{sGP+1}, s{sT0}
    v_cmp_gt_u32 vcc, s{sTot}, v{tP}
    v_mov_b32 v{T+9}, {PADSRC}
    v_mov_b32 v{T+10}, 0x3fff
    v_lshlrev_b32 v{vBP}, 2, v{tG}
    s_waitcnt lgkmcnt(0)
    v_and_b32 v{T+11}, 0xffff, v{T+8}
    v_lshrrev_b32 v{T+12}, 16, v{T+8}
    v_cndmask_b32 v{vSrc}, v{T+9}, v{T+11}, vcc
    v_cndmask_b32 v{T+13}, v{T+9}, v{T+12}, vcc
    ds_bpermute_b32 v{SRC3}, v{vBP}, v{vSrc}
    ds_bpermute_b32 v{SRC3+1}, v{vBP}, v{vSrc} offset:16
    ds_bpermute_b32 v{vSrcB}, v{vBP}, v{vSrc} offset:32
    v_add_u32 v{vBP}, 48, v{vBP}
    v_mul_u32_u24 v{T+14}, 6, v{vSrc}
    v_and_b32 v{T+14}, -4, v{T+14}
    v_mul_u32_u24 v{T+15}, 6, v{T+13}
    v_and_b32 v{T+15}, -4, v{T+15}
    ''')
    wload(15)
    a(f'''
    buffer_load_dwordx2 {vr(T+16,2)}, v{T+14}, {sr(S_POS)}, 0 offen
    buffer_load_dwordx2 {vr(T+18,2)}, v{T+15}, {sr(S_POS)}, 0 offen
    v_subrev_u32 v{T+12}, s{sNode0}, v{T+12}
    v_cndmask_b32 v{T+10}, v{T+10}, v{T+12}, vcc
    v_lshlrev_b32 v{T+10}, 1, v{T+10}
    s_lshl_b32 s{sDma}, s{sW}, 12
    s_waitcnt lgkmcnt(1)
    ''')
    VM.extend(['pos', 'pos'])
    a(f'''s_mul_i32 s{sT2}, s{sW}, 1536
          s_add_u32 s{sT2}, s{sT2}, {WS_WRP - WSO}''')
    emit_items(P2)
    if opts.get('p2bar', '0') == '1':
        a('s_barrier')
    stamp()
    a(f'''
    v_lshrrev_b32 v{U}, 2, v{tN}
    v_lshlrev_b32 v{U}, 13, v{U}
    v_and_b32 v{U+1}, 3, v{tN}
    v_lshl_or_b32 v{U}, v{U+1}, 8, v{U}
    v_xor_b32 v{U+1}, v{tG}, v{tN}
    ''')
    for s in range(4):
        a(f'''v_xor_b32 v{U+2}, {4*s}, v{U+1}
              v_lshl_or_b32 v{vAH+s}, v{U+2}, 4, v{U}''')
    a(f'''
    v_bfe_u32 v{U}, v{tL}, 3, 1
    v_lshl_or_b32 v{U+1}, v{tG}, 1, v{U}
    v_xor_b32 v{U+1}, s{sW}, v{U+1}
    v_lshlrev_b32 v{U+1}, 5, v{U+1}
    v_lshl_or_b32 v{U+1}, v{U}, 8, v{U+1}
    v_lshl_or_b32 v{U+1}, v{tG}, 13, v{U+1}
    v_lshl_or_b32 v{U+1}, v{T+5}, 3, v{U+1}
    v_and_b32 v{U+2}, 4, v{tL}
    v_xor_b32 v{U+2}, 4, v{U+2}
    v_lshl_or_b32 v{vAV}, v{U+2}, 18, v{U+1}
    v_lshlrev_b32 v{vAR}, 3, v{tL}
    v_add_u32 v{vAR}, {L_RBF}, v{vAR}
    v_lshlrev_b32 v{vAS}, 5, v{tG}
    v_add_u32 v{vAS}, {L_META}, v{vAS}
    v_lshlrev_b32 v{vKey}, 1, v{tN}
    v_lshl_or_b32 v{vKey}, v{vKey}, 16, v{vKey}
    ''')
    tWR, tWS, tWD = T + 20, T + 21, T + 22
    a(f'''
    s_and_b32 s{sT0}, s{sW}, 1
    s_lshl_b32 s{sT2}, s{sT0}, 3
    s_lshl_b32 s{sT0}, s{sT0}, 9
    s_lshr_b32 s{sT1}, s{sW}, 1
    s_lshl_b32 s{sT1}, s{sT1}, 5
    s_add_u32 s{sT2}, s{sT2}, s{sT1}
    s_add_u32 s{sT2}, s{sT2}, {L_META + 384}
    s_add_u32 s{sT0}, s{sT0}, s{sT1}
    s_add_u32 s{sT0}, s{sT0}, {L_RBF}
    v_lshlrev_b32 v{tWR}, 10, v{T+4}
    v_lshl_add_u32 v{tWR}, v{T+5}, 3, v{tWR}
    v_add_u32 v{tWR}, s{sT0}, v{tWR}
    v_lshlrev_b32 v{tWS}, 9, v{T+4}
    v_lshl_add_u32 v{tWD}, v{T+5}, 1, v{tWS}
    v_add_u32 v{tWD}, s{sT2}, v{tWD}
    v_lshl_add_u32 v{tWS}, v{T+6}, 2, v{tWS}
    v_add_u32 v{tWS}, {L_META}, v{tWS}
    ds_write_b16 v{tWD}, v{T+10}
    v_lshlrev_b32 v{T+14}, 4, v{vSrc}
    v_lshlrev_b32 v{T+15}, 4, v{T+13}
    s_waitcnt vmcnt({vm_after(['pos'])})
    ''')
    stamp()
    real_a = a
    p3q = []
    for it in P3:
        p3q += item_groups(it)
    cnt = [0]
    GAP = int(opts.get('p3gap', 8))
    def a(txt):
        for ln in txt.split('\n'):
            ln = ln.strip()
            if not ln:
                continue
            real_a(ln)
            cnt[0] += 1
            if cnt[0] % GAP == 0 and p3q:
                tag, g = p3q.pop(0)
                for x in g:
                    real_a(x)
                VM.append(tag)
    x, y, z = U, U + 1, U + 2
    a(f'''
    v_alignbit_b32 v{U+8}, v{T+17}, v{T+16}, v{T+14}
    v_lshrrev_b32 v{U+9}, v{T+14}, v{T+17}
    v_alignbit_b32 v{U+10}, v{T+19}, v{T+18}, v{T+15}
    v_lshrrev_b32 v{U+11}, v{T+15}, v{T+19}
    v_lshlrev_b32 v{x}, 16, v{U+8}
    v_and_b32 v{y}, {M}, v{U+8}
    v_lshlrev_b32 v{z}, 16, v{U+9}
    v_lshlrev_b32 v{U+3}, 16, v{U+10}
    v_and_b32 v{U+4}, {M}, v{U+10}
    v_lshlrev_b32 v{U+5}, 16, v{U+11}
    v_sub_f32 v{x}, v{x}, v{U+3}
    v_sub_f32 v{y}, v{y}, v{U+4}
    v_sub_f32 v{z}, v{z}, v{U+5}
    v_cvt_pk_bf16_f32 v{x}, 0, v{x}
    v_cvt_pk_bf16_f32 v{y}, 0, v{y}
    v_cvt_pk_bf16_f32 v{z}, 0, v{z}
    v_mul_f32 v{U+3}, v{x}, v{x}
    v_mul_f32 v{U+4}, v{y}, v{y}
    v_mul_f32 v{U+5}, v{z}, v{z}
    v_cvt_pk_bf16_f32 v{U+3}, 0, v{U+3}
    v_cvt_pk_bf16_f32 v{U+4}, 0, v{U+4}
    v_cvt_pk_bf16_f32 v{U+5}, 0, v{U+5}
    v_add_f32 v{U+3}, v{U+3}, v{U+4}
    v_add_f32 v{U+3}, v{U+3}, v{U+5}
    v_cvt_pk_bf16_f32 v{U+3}, 0, v{U+3}
    v_add_f32 v{U+3}, 0x322bcc77, v{U+3}
    v_cvt_pk_bf16_f32 v{U+3}, 0, v{U+3}
    v_sqrt_f32 v{U+3}, v{U+3}
    v_cvt_pk_bf16_f32 v{U+3}, 0, v{U+3}
    v_rcp_f32 v{U+4}, v{U+3}
    ''')
    d, rd = U + 3, U + 4
    X = U + 12
    P = T + 24
    for k in range(16):
        a(f'v_mul_f32 v{X+k}, s{FR+k}, v{d}')
    a(f'''
    v_mul_f32 v{U+5}, 0x40490fdb, v{d}
    v_mul_f32 v{x}, v{x}, v{rd}
    v_cvt_pk_bf16_f32 v{U+5}, 0, v{U+5}
    v_mul_f32 v{y}, v{y}, v{rd}
    v_mul_f32 v{U+5}, 0x3e4ccccd, v{U+5}
    v_mul_f32 v{z}, v{z}, v{rd}
    v_cvt_pk_bf16_f32 v{U+5}, 0, v{U+5}
    v_cvt_pk_bf16_f32 v{x}, 0, v{x}
    v_mul_f32 v{U+5}, 0.15915494, v{U+5}
    v_cvt_pk_bf16_f32 v{y}, 0, v{y}
    v_cos_f32 v{U+5}, v{U+5}
    v_cvt_pk_bf16_f32 v{z}, 0, v{z}
    v_cvt_pk_bf16_f32 v{U+5}, 0, v{U+5}
    ds_write_b32 v{tWS}, v{x}
    v_add_f32 v{U+5}, 1.0, v{U+5}
    ds_write_b32 v{tWS}, v{y} offset:128
    v_cvt_pk_bf16_f32 v{U+5}, 0, v{U+5}
    ds_write_b32 v{tWS}, v{z} offset:256
    v_mul_f32 v{U+5}, 0.5, v{U+5}
    v_cmp_gt_f32 vcc, 0x40a00000, v{d}
    v_cndmask_b32 v{U+5}, 0, v{U+5}, vcc
    v_mul_f32 v{rd}, v{rd}, v{U+5}
    ''')
    for k in range(16):
        a(f'v_cvt_pk_bf16_f32 v{X+k}, 0, v{X+k}')
    for k in range(16):
        a(f'v_mul_f32 v{X+k}, 0.15915494, v{X+k}')
    for k in range(16):
        a(f'v_sin_f32 v{X+k}, v{X+k}')
    for k in range(16):
        a(f'v_mul_f32 v{X+k}, v{X+k}, v{rd}')
    for k in range(8):
        a(f'v_cvt_pk_bf16_f32 v{P+k}, v{X+2*k}, v{X+2*k+1}')
    for g in range(4):
        a(f'ds_write_b64 v{tWR}, {vr(P+2*g,2)} offset:{128*g}')
    a = real_a
    for tag, g in p3q:
        for x in g:
            a(x)
        VM.append(tag)
    def acc_zero():
        for i in range(16):
            a(f'v_mov_b32 v{ACC+i}, 0')
    nA = vm_after(['d1'])
    assert nA % 2 == 0
    tail_blocks = []
    a(f'''
    s_mov_b32 s{sG}, 0
    s_and_b32 s{sGend}, s{sGP}, 0x1ff
    s_mov_b32 s{sTe}, 32
    s_mov_b32 s{sOwO}, {14336*(NPRE-1)}
    s_mov_b32 s{sStO}, 0x40000000
    s_mov_b32 s{sX}, 0x8000
    s_mov_b32 s{sSl}, 0
    s_mov_b32 s{sPar}, {XB}
    s_mov_b32 s{sOk}, 0
    s_mov_b32 s{sOwnN}, {NPRE}
    s_cmp_lg_u32 s{sMode}, 0
    s_cbranch_scc1 kb_slow_own
    ''')
    if vm_after(['o0', 'o1']) < vm_after(['pos']):
        a(f's_waitcnt vmcnt({vm_after(["o0", "o1"])})')
    own01(T)
    a('kb_slow_ownr:')
    def blk_so():
        a('''kb_slow_own:
             s_waitcnt vmcnt(0)''')
        for j in range(2):
            own_load(j, ' sc0 sc1')
        a('s_waitcnt vmcnt(0)')
        own01(T)
        a('s_waitcnt lgkmcnt(0)')
        for j in range(2, 7):
            own_load(j, ' sc0 sc1')
        a(f'''s_mov_b32 s{sOwnN}, 7
              s_mov_b32 s{sOk}, 0x7fffffff
              s_waitcnt vmcnt(0)
              s_branch kb_slow_ownr''')
    tail_blocks.append(blk_so)
    stamp()
    acc_zero()
    a(f'''
    s_cmp_ge_u32 s{sW}, {opts.get('bfrom', 4)}
    s_waitcnt vmcnt({vm_after(['d0', 'w'])}) lgkmcnt(0)
    s_cbranch_scc1 kb_B_entry
    ''')
    RLX = opts.get('rlx', '0') == '1'
    assert not RLX or NPRE == 3
    PG = int(opts.get('pg', 2)); PS = int(opts.get('ps', 3))
    PMD = {'A': int(opts.get('pma', 0)), 'B': int(opts.get('pmb', 1))}
    SMEND = opts.get('smend', '1') == '1'

    class LQ:
        def __init__(self):
            self.q = []
        def issue(self, tag, txt):
            if len(self.q) >= 15:
                a('s_waitcnt lgkmcnt(8)'); self.q = self.q[-8:]
            a(txt); self.q.append(tag)
        def need(self, *tags):
            idx = [i for i, t in enumerate(self.q) if t in tags]
            if not idx:
                return
            last = max(idx)
            a(f's_waitcnt lgkmcnt({len(self.q)-1-last})')
            self.q = self.q[last + 1:]
    def gemm(t, s):
        H = HA if t == 0 else HB
        out = []
        for b in range(3):
            c = '0' if s == 0 else vr(PHI[t] + 4 * b, 4)
            out.append(f'v_mfma_f32_16x16x32_bf16 {vr(PHI[t]+4*b,4)}, {vr(H+4*s,4)}, {vr(W2+16*b+4*s,4)}, {c}')
        return out
    def wf(t):
        return [f'v_mfma_f32_16x16x16_bf16 {vr(WRD+4*b,4)}, {vr(RBF+2*t,2)}, {vr(WR+2*b,2)}, 0' for b in range(3)]
    def sm(k, z=False):
        a(f'v_mfma_f32_16x16x32_bf16 {vr(ACC+4*k,4)}, {vr(MSG[k],4)}, {vr(SEL,4)}, {"0" if z else vr(ACC+4*k,4)}')
    def selb():
        for i in range(4):
            a(f'v_xor_b32 v{SEL+i}, v{DL+i}, v{vKey}')
        for i in range(4):
            a(f'v_pk_mad_i16 v{SEL+i}, v{SEL+i}, s{sK8}, v{vOne} clamp')
    def vreads(t):
        return [('V%d' % t, f'ds_read_b64_tr_b16 {vr(V+12*t+4*c+2*p,2)}, v{vAV} offset:{4096*t+1024*(c+1)+512*p}') for c in range(3) for p in range(2)]
    def issue_head(X_, lq):
        if X_ == 'B0':
            a(f'''s_cmp_ge_u32 s{sOwnN}, 7
                  s_cbranch_scc1 kb_ownrB0
                  s_add_u32 s{sOwnN}, s{sOwnN}, 1
                  s_add_u32 s{sOwO}, s{sOwO}, 14336''')
            for x in own_ins(NPRE, NTO, sOwO):
                a(x)
            a('kb_ownrB0:')
        else:
            a(f'''
            s_cmp_lt_u32 s{sOwnN}, 7
            s_cbranch_scc1 kb_own{X_}
            kb_ownr{X_}:
            ''')
        for x in dma_addr(vSrcB):
            a(x)
        p0 = dma_piece(0)
        a(p0[0])
        lq.issue('bp', f'ds_bpermute_b32 v{vSrcB}, v{vBP}, v{vSrc}')
        for x in p0[1:]:
            a(x)
        a(f'v_add_u32 v{vBP}, 16, v{vBP}')
    def own_blk(X_):
        a(f'''kb_own{X_}:
              s_add_u32 s{sOwnN}, s{sOwnN}, 1
              s_add_u32 s{sOwO}, s{sOwO}, 14336''')
        for j in range(NPRE + (X_ == 'B'), 7):
            a(f'''s_cmp_lg_u32 s{sOwnN}, {j+1}
                  s_cbranch_scc1 kb_own{X_}_{j+1}''')
            for x in own_ins(j, NTO, sOwO):
                a(x)
            a(f'''s_branch kb_ownr{X_}
                  kb_own{X_}_{j+1}:''')
        a('s_branch kb_pret')
    p0_, p1_ = PHI
    DSL = [int(x) for x in opts.get('dsl', '6,13,20').split(',')]
    def G(X_, with_issue, lq):
        for s in range(4):
            lq.issue('HA%d' % s, f'ds_read_b128 {vr(HA+4*s,4)}, v{vAH+s}')
        lq.issue('B0', f'ds_read_b64 {vr(RBF,2)}, v{vAR}')
        if with_issue:
            issue_head(X_, lq)
        mf = []
        for s in range(4):
            mf += [(m, 'HA%d' % s) for m in gemm(0, s)]
        mf += [(m, 'B0') for m in wf(0)]
        for s in range(4):
            mf += [(m, 'B1') for m in gemm(1, s)]
        mf += [(m, 'B1') for m in wf(1)]
        ls = {i: [] for i in range(30)}
        for s in range(4):
            ls[s].append(('HB%d' % s, f'ds_read_b128 {vr(HB+4*s,4)}, v{vAH+s} offset:4096'))
        ls[4].append(('B1', f'ds_read_b64 {vr(RBF+2,2)}, v{vAR} offset:512'))
        for i, x in enumerate(vreads(0)):
            ls[5 + i].append(x)
        for c in range(3):
            ls[12 + c].append(('R0', f'ds_read_b128 {vr(RR[0]+4*c,4)}, v{vAS} offset:{128*c}'))
        for i, x in enumerate(vreads(1)):
            ls[15 + i].append(x)
        ls[21].append(('DL', f'ds_read_b128 {vr(DL,4)}, v{vAS} offset:384'))
        for c in range(3):
            ls[24 + c].append(('R1', f'ds_read_b128 {vr(RR[1]+4*c,4)}, v{vAS} offset:{128*c+16}'))
        vs = {i: [] for i in range(30)}
        for s in range(4):
            vs[4 + s].append(f'v_add_u32 v{vAH+s}, s{sX}, v{vAH+s}')
        vs[8].append(f'v_add_u32 v{vAR}, 1024, v{vAR}')
        late = [f'v_mul_f32 v{p0_+i}, v{p0_+i}, v{WRD+i}' for i in (8, 9, 10, 11, 0, 1, 2, 3, 4, 5, 6, 7)]
        late += [f'v_cvt_pk_bf16_f32 v{MSG[0]}, v{p0_}, v{p0_+1}', f'v_cvt_pk_bf16_f32 v{MSG[0]+1}, v{p0_+2}, v{p0_+3}']
        late += [('R0', f'v_mul_f32 v{RR[0]+4*c+i}, v{RR[0]+4*c+i}, v{p0_+8+i}') for c in range(3) for i in range(4)]
        sl = 17
        while late:
            vs[sl] += late[:2]; late = late[2:]; sl += 1
        assert sl <= 30
        vs[21].append(f'v_add_u32 v{vAV}, s{sX}, v{vAV}')
        vs[27].append(f'v_add_u32 v{vAS}, 512, v{vAS}')
        vs[22].append(f's_add_u32 s{sSl}, s{sSl}, s{sX}')
        vs[23].append(f's_cmp_eq_u32 s{sSl}, 0x10000')
        vs[23].append(f's_cselect_b32 s{sX}, 0xffff0000, s{sC8}')
        for i, (m, tag) in enumerate(mf):
            lq.need(tag)
            pc = None
            if with_issue and i in DSL:
                pc = dma_piece(1 + DSL.index(i)); a(pc[0])
            a(m)
            if pc:
                for x in pc[1:]:
                    a(x)
            for tag2, x in ls[i]:
                lq.issue(tag2, x)
            for x in vs[i]:
                if isinstance(x, tuple):
                    lq.need(x[0]); x = x[1]
                a(x)
    MSL = [int(x) for x in opts.get('msl', '12,28,44').split(',')]
    def Mphase(X_, lq, with_dma):
        p0, p1 = PHI
        cnt = [0]
        def v(x):
            if with_dma and cnt[0] in MSL:
                pc = dma_piece(1 + MSL.index(cnt[0]))
                a(pc[0]); a(x)
                for y in pc[1:]:
                    a(y)
            else:
                a(x)
            cnt[0] += 1
        lq.issue('DLT', f'ds_read_b128 {vr(DLT,4)}, v{vStgR}')
        lq.issue('DLT', f'ds_read_b128 {vr(DLT+4,4)}, v{vStgR} offset:1056')
        lq.need('V0', 'DL')
        for i in range(4):
            v(f'v_xor_b32 v{SEL+i}, v{DL+i}, v{vKey}')
        for i in range(12):
            v(f'v_fmac_f32 v{RR[0]+i}, v{V+i}, v{p0+4+i%4}')
        for i in range(4):
            v(f'v_pk_mad_i16 v{SEL+i}, v{SEL+i}, s{sK8}, v{vOne} clamp')
        for i in range(12):
            v(f'v_mul_f32 v{p1+i}, v{p1+i}, v{WRD+i}')
        v(f'v_cvt_pk_bf16_f32 v{MSG[0]+2}, v{p1}, v{p1+1}')
        v(f'v_cvt_pk_bf16_f32 v{MSG[0]+3}, v{p1+2}, v{p1+3}')
        lq.need('V1', 'R1')
        for x in tr_reads():
            lq.issue('DLT', x)
        for c in range(3):
            for i in range(4):
                v(f'v_mul_f32 v{RR[1]+4*c+i}, v{RR[1]+4*c+i}, v{p1+8+i}')
            if not SMEND:
                sm(c)
            for i in range(4):
                v(f'v_fmac_f32 v{RR[1]+4*c+i}, v{V+12+4*c+i}, v{p1+4+i}')
            for t in range(2):
                for h in range(2):
                    v(f'v_cvt_pk_bf16_f32 v{MSG[1+c]+2*t+h}, v{RR[t]+4*c+2*h}, v{RR[t]+4*c+2*h+1}')
        if SMEND:
            a(f's_setprio {PS}')
            for c in range(3):
                sm(c)
        sm(3)
        a(f's_setprio {PMD[X_]}')
        lq.need('DLT')
        assert cnt[0] > max(MSL)
    ST = PHI[0]
    def stores():
        for h in range(2):
            a(f'buffer_store_dwordx4 {vr(DLT+4*h,4)}, v{[vOut, vOut2][h]}, {sr(S_OUT)}, s{sStO} offen offset:{2048*h}{NTS}')
    OT = V + 8
    def service(L, reads, last=False):
        if reads:
            a(f'''ds_read_b128 {vr(DLT,4)}, v{vStgR}
                  ds_read_b128 {vr(DLT+4,4)}, v{vStgR} offset:1056''')
            if not last:
                for x in tr_reads():
                    a(x)
            a('s_waitcnt lgkmcnt(0)')
        stores()
        if last:
            return
        if not reads:
            a(f'''s_bitcmp1_b32 s{sStO}, 30
                  s_cbranch_scc1 kb_segend{L[1]}''')
        a(f'''
        s_sub_u32 s{sT1}, s{sG}, 8
        s_min_u32 s{sT1}, s{sT1}, 32
        s_lshl_b32 s{sT0}, s{sT1}, 2
        {'' if RLX else f's_add_u32 s{sT0}, s{sT0}, 32'}
        s_cmp_gt_u32 s{sT0}, s{sOk}
        s_cbranch_scc1 kb_fb{L}
        {f's_cmp_lg_u32 s{sOk}, 0' if RLX else ''}
        {f's_cbranch_scc1 kb_fbr{L}' if RLX else ''}
        {f's_waitcnt vmcnt({vm_after(["o2"])})' if RLX else ''}
        kb_fbr{L}:
        s_set_gpr_idx_on s{sT1}, 0x1
        s_mov_b32 s{sStO}, 0x40000000
        s_waitcnt vmcnt(12)
        ''')
        for i in range(8):
            a(f'v_mov_b32 v{OT+i}, v{OWN+i}')
        a('s_set_gpr_idx_off')
        for b in range(2):
            a(f'ds_write_b128 v{vStgR}, {vr(OT+4*b,4)} offset:{1056*b}')
        def blk():
            a(f'''kb_fb{L}:
                  s_cmp_ge_u32 s{sOwnN}, 7
                  s_cbranch_scc1 kb_fb2{L}''')
            for j in range(NPRE, 7):
                own_load(j)
            a(f'''kb_fb2{L}:
                  s_mov_b32 s{sOwnN}, 7
                  s_mov_b32 s{sOk}, 0x7fffffff
                  s_waitcnt vmcnt(0)
                  s_branch kb_fbr{L}''')
        tail_blocks.append(blk)
    PF = int(opts.get('pf', 3))
    def Sflush(X_):
        service('r' + X_, False)
        a(f'''
        kb_segend{X_}:
        s_cmp_gt_u32 s{sGend}, s{sTe}
        s_cbranch_scc1 kb_next{X_}
        kb_flush{X_}:
        s_bitcmp0_b32 s{sStO}, 30
        s_cbranch_scc1 kb_extra{X_}
        kb_extrar{X_}:
        s_setprio {PF}
        ''')
        for c in range(4):
            a(f'v_mfma_f32_16x16x16_bf16 {vr(ACC+4*c,4)}, {vr(TR+2*c,2)}, {vr(IDN,2)}, {vr(ACC+4*c,4)}')
        a(f'''
        v_add_u32 v{vKey}, 0x001c001c, v{vKey}
        s_mul_i32 s{sStO}, s{sG}, {0x40000000 // 8 if opts.get('nostore') else 1792}
        s_add_u32 s{sG}, s{sG}, 8
        s_lshr_b64 s[{sGP}:{sGP+1}], s[{sGP}:{sGP+1}], 9
        s_mov_b32 s{sGst}, s{sGend}
        s_and_b32 s{sGend}, s{sGP}, 0x1ff
        ''')
        if opts.get('nostore'):
            a(f's_mov_b32 s{sStO}, 0x20000000')
        selb()
        for i in range(8):
            a(f'v_cvt_pk_bf16_f32 v{ST+i}, v{ACC+2*i}, v{ACC+2*i+1}')
            if i & 1:
                a(f'ds_write_b64 v{vStgW}, {vr(ST+i-1,2)} offset:{64*(i-1)}')
        a(f'''
        s_cmp_eq_u32 s{sG}, 56
        s_cbranch_scc1 kb_fin{X_}
        ''')
        for k in range(4):
            sm(k, True)
        toggle()
        a(f'''
        s_setprio {PMD[X_]}
        s_cmp_le_u32 s{sGend}, s{sTe}
        s_cbranch_scc1 kb_extra{X_}
        kb_next{X_}:
        s_max_u32 s{sOk}, s{sOk}, s{sTe}
        s_add_u32 s{sTe}, s{sTe}, 32
        ''')
    def end_blks(X_):
        a(f'''kb_fin{X_}:
              v_subrev_u32 v{vStgR}, s{sPar}, v{vStgR}
              s_waitcnt lgkmcnt(0)
              s_barrier''')
        service('f' + X_, True, True)
        a(f'v_add_u32 v{vStgR}, s{sPar}, v{vStgR}')
        if X_ == 'A':
            a('s_barrier')
        a('s_branch kb_done')
        a(f'''kb_extra{X_}:
              s_waitcnt lgkmcnt(0)
              s_barrier''')
        service('x' + X_, True)
        a(f's_branch kb_extrar{X_}')
        own_blk(X_)
    a('kb_loopA:')
    stamp()
    a(f'''s_setprio {PG}
          s_barrier''')
    stamp()
    lq = LQ()
    G('A', True, lq)
    a(f's_setprio {PMD["A"]}')
    fstamp()
    Mphase('A', lq, False)
    assert not lq.q
    fstamp()
    Sflush('A')
    fstamp()
    a('''s_waitcnt vmcnt(8) lgkmcnt(0)
         s_branch kb_loopA''')
    end_blks('A')
    a('''kb_B_entry:
         s_barrier''')
    lq = LQ()
    issue_head('B0', lq)
    for k in range(1, 4):
        for x in dma_piece(k):
            a(x)
    stores()
    a('kb_loopB:')
    a(f's_setprio {PG}')
    fstamp()
    assert lq.q == ['bp']
    G('B', False, lq)
    a(f's_setprio {PMD["B"]}')
    fstamp()
    lq.need('V1')
    a(f's_max_u32 s{sOk}, s{sOk}, s{sTe}')
    a('s_waitcnt vmcnt(8)')
    stamp()
    a('s_barrier')
    stamp()
    issue_head('B', lq)
    fstamp()
    Mphase('B', lq, True)
    assert not lq.q
    fstamp()
    Sflush('B')
    a('s_branch kb_loopB')
    end_blks('B')
    k_ = 0
    while k_ < len(tail_blocks):
        tail_blocks[k_](); k_ += 1
    a(f'''
    kb_go_slow:
    s_mov_b32 s{sMode}, 1
    s_mov_b32 s{sI}, 0
    s_mov_b32 s{sQ}, 0
    s_mov_b32 s{sC}, -1
    s_mov_b32 s{sLen}, 0
    s_mov_b32 s{sBase}, 0
    s_branch kb_copy
    kb_empty:
    s_cmp_lg_u32 s{sMode}, 0
    s_cbranch_scc1 kb_done
    kb_copy:
    s_mov_b64 s[{sGP}:{sGP+1}], 0
    s_mov_b32 s{sG}, 0
    s_mov_b32 s{sGend}, 0
    s_mov_b32 s{sTot}, 0
    s_mov_b32 s{sStO}, 0x40000000
    s_mov_b32 s{sTe}, 32
    s_mov_b32 s{sOwnN}, 7
    s_mov_b32 s{sOk}, 0x7fffffff
    ''')
    for j in range(2):
        own_load(j)
    a('s_waitcnt vmcnt(0)')
    own01(T)
    a('s_waitcnt lgkmcnt(0)')
    for j in range(2, 7):
        own_load(j)
    a(f'''s_mov_b32 s{sPar}, {XB}
          s_barrier''')
    for i in range(4):
        for m in MSG:
            a(f'v_mov_b32 v{m+i}, 0')
        a(f'v_mov_b32 v{DL+i}, 0')
    a(f'v_mov_b32 v{vKey}, 0')
    for x in tr_reads():
        a(x)
    acc_zero()
    a('s_waitcnt vmcnt(0) lgkmcnt(0)')
    a(f'''
    s_branch kb_flushA
    kb_done:
    ''')
    if STAMP:
        stamp()
        a('s_waitcnt vmcnt(0)')
        stamp()
        srd(a, S_POS, 24, 25, 0x100000, 0x1000000)
        a(f'''v_lshlrev_b32 v{T}, 2, v0
              s_lshl_b32 s{sT0}, s2, 11
              v_add_u32 v{T}, s{sT0}, v{T}
              buffer_store_dword v{vStamp}, v{T}, {sr(S_POS)}, 0 offen''')
    a(f'''
    s_waitcnt vmcnt(2)
    s_cmp_eq_u32 s{sMode}, 0
    s_cbranch_scc1 kb_exit
    s_waitcnt vmcnt(0) lgkmcnt(0)
    s_barrier
    v_and_b32 v{T+8}, 7, v0
    v_lshlrev_b32 v{T+8}, 2, v{T+8}
    v_add_u32 v{T+8}, {L_GCNT}, v{T+8}
    v_mov_b32 v{T+9}, 0
    ds_write_b32 v{T+8}, v{T+9}
    s_mov_b32 s{S_BASE}, s20
    s_mov_b32 s{S_BASE+1}, s21
    s_cmp_ge_u32 s{sI}, 4
    s_cbranch_scc1 kb_mode2
    s_lshl_b32 s{sT0}, s2, 13
    s_add_u32 s{sT0}, s{sT0}, {WS_CELL - WSO}
    v_lshl_add_u32 v{T+4}, v0, 4, s{sT0}
    v_and_b32 v{T+6}, -64, v{T+4}
    s_lshl_b32 s{sT1}, s{sI}, 2
    buffer_load_dword v{CE+4}, v{T+6}, {sr(S_WS)}, 0 offen
    buffer_load_dword v{CE}, v{T+4}, {sr(S_WS)}, s{sT1} offen
    v_lshrrev_b32 v{T+3}, 7, v0
    v_cmp_eq_u32 s[{GE}:{GE+1}], s{sQ}, v{T+3}
    v_and_b32 v{T+5}, 3, v0
    v_add_u32 v{T+5}, s{sT1}, v{T+5}
    v_lshlrev_b32 v{T+5}, 2, v{T+5}
    v_cmp_ne_u32 vcc, 0, v{T+5}
    s_and_b64 s[{GE}:{GE+1}], vcc, s[{GE}:{GE+1}]
    s_waitcnt vmcnt(0)
    v_and_b32 v{CE+4}, 0xffff, v{CE+4}
    v_cmp_lt_u32 vcc, v{T+5}, v{CE+4}
    s_and_b64 s[{GE}:{GE+1}], vcc, s[{GE}:{GE+1}]
    s_add_u32 s{sQ}, s{sQ}, 1
    s_lshr_b32 s{sT0}, s{sQ}, 2
    s_add_u32 s{sI}, s{sI}, s{sT0}
    s_and_b32 s{sQ}, s{sQ}, 3
    s_branch kb_round
    kb_mode2:
    s_cmp_lt_u32 s{sBase}, s{sLen}
    s_cbranch_scc1 kb_m2_go
    s_add_u32 s{sC}, s{sC}, 1
    s_cmp_ge_u32 s{sC}, {NCHUNK}
    s_cbranch_scc1 kb_exit
    s_lshl_b32 s{sT0}, s2, 13
    s_lshl_b32 s{sT1}, s{sC}, 6
    s_add_u32 s{sT0}, s{sT0}, s{sT1}
    s_add_u32 s{sT0}, s{sT0}, {WS_CELL}
    s_load_dword s{sT1}, s[24:25], s{sT0}
    s_waitcnt lgkmcnt(0)
    s_and_b32 s{sT2}, s{sT1}, 0xffff
    s_lshr_b32 s{sLen}, s{sT1}, 16
    s_cmp_gt_u32 s{sT2}, 64
    s_cselect_b32 s{sLen}, s{sLen}, 0
    s_mov_b32 s{sBase}, 0
    s_branch kb_mode2
    kb_m2_go:
    v_add_u32 v{T+3}, s{sBase}, v0
    v_cmp_gt_u32 s[{GE}:{GE+1}], s{sLen}, v{T+3}
    v_cmp_gt_u32 vcc, 128, v0
    s_and_b64 s[{GE}:{GE+1}], vcc, s[{GE}:{GE+1}]
    s_mov_b64 vcc, s[{GE}:{GE+1}]
    s_mul_i32 s{sT0}, s{sC}, {OVF_STRIDE}
    s_add_u32 s{sT0}, s{sT0}, {WS_OVF - WSO}
    v_lshl_add_u32 v{T+4}, v{T+3}, 2, s{sT0}
    v_mov_b32 v{T+5}, 0x40000000
    v_cndmask_b32 v{T+4}, v{T+5}, v{T+4}, vcc
    buffer_load_dword v{CE}, v{T+4}, {sr(S_WS)}, 0 offen
    s_waitcnt vmcnt(0)
    v_lshrrev_b32 v{T+3}, 16, v{CE}
    v_subrev_u32 v{T+3}, s{sNode0}, v{T+3}
    v_cmp_gt_u32 vcc, 98, v{T+3}
    s_and_b64 s[{GE}:{GE+1}], vcc, s[{GE}:{GE+1}]
    s_add_u32 s{sBase}, s{sBase}, 128
    kb_round:
    s_mov_b64 s[{GE+2}:{GE+3}], 0
    v_mov_b32 v{CE+4}, 0
    s_waitcnt lgkmcnt(0)
    s_barrier
    s_branch kb_propose
    kb_exit:
    s_endpgm
    ''')
    return L_END
```
